```python
import torch

def _softmax(x, axis=-1):
    return torch.softmax(x, dim=axis)
def _gelu(x):
    return torch.nn.functional.gelu(x, approximate="tanh")
def _silu(x):
    return torch.nn.functional.silu(x)
def _sigmoid(x):
    return torch.sigmoid(x)
def _layernorm(x, axis=-1, eps=1e-5):
    m = x.mean(dim=axis, keepdim=True)
    v = x.var(dim=axis, keepdim=True, unbiased=False)
    return (x - m) / torch.sqrt(v + eps)
def _scatter_add(tgt, idx, src, axis=0):
    return tgt.clone().index_add_(axis, idx, src)
def _segment_sum(src, seg, n):
    out = torch.zeros((n,) + src.shape[1:], dtype=src.dtype)
    return out.index_add_(0, seg, src)
def _pad(x, pw):
    flat = tuple(v for pair in reversed(pw) for v in pair)
    return torch.nn.functional.pad(x, flat)

kernel_name = 'standalone__deep_cross_pnn__recsys'

def setup_inputs():

    _w = (lambda a: (lambda t: t.to(torch.bfloat16) if t.is_floating_point() else t)(torch.as_tensor(a)))
    B, F, D, V = 4096, 100, 64, min(100000, 100000)
    H = 4 * D
    return {
        "idx": _w((lambda lo, hi, *s: torch.randint(lo, hi, s))(0, V, B, F).to(torch.int64)),
        "table": _w((lambda *s: torch.randn(*s, dtype=torch.bfloat16) * 1.6)(V, D) * (D ** -0.5)),
        "w_p": _w((lambda *s: torch.randn(*s, dtype=torch.bfloat16) * 0.05)(F * F) * ((F * F) ** -0.5)),
        "w1": _w((lambda *s: torch.randn(*s, dtype=torch.bfloat16) * 1.6)(F * D, H) * ((F * D) ** -0.5)),
        "b1": _w((lambda *s: torch.randn(*s, dtype=torch.bfloat16) * 12.8)(H) * 0.01),
        "w2": _w((lambda *s: torch.randn(*s, dtype=torch.bfloat16) * 0.05)(H) * (H ** -0.5)),
        "b2": _w((lambda *s: torch.randn(*s, dtype=torch.bfloat16) * 3.2)(1) * 0.01),
    }

def reference(idx, table, w_p, w1, b1, w2, b2):
    emb = table[idx]
    B = emb.shape[0]; F = emb.shape[1]; D = emb.shape[2]
    ip = torch.einsum('bid,bjd->bij', emb, emb)
    ip = ip.reshape(B, F * F)
    logit_p = ip @ w_p
    z = emb.reshape(B, F * D)
    h = _gelu(z @ w1 + b1)
    logit_d = h @ w2 + b2
    return logit_p + logit_d
```

```python
import sys, os
sys.path.insert(0, 'bench')
from asmlib import kd, build
NAME = "standalone__deep_cross_pnn__recsys_kernel"
HDR = open('standalone__deep_cross_pnn__recsys.s.ref').read().split('; Override')[0]

APS = 22528
def AP(s): return s*APS
BS0 = 3*APS
IDXA = BS0 + 3*16384
IDXP = IDXA + 16384
WP = IDXP + 6400
WP6 = WP + 22*1024
LDSEND = WP6 + 6*256
LDS = 163840
assert LDSEND <= LDS
RED = IDXA
FLOFF = 8 << 20
WSREC = 16 << 20
SPIN = 200000

class G:
    def __init__(s): s.l = []; s.q = []
    def E(s, x): s.l.append("    " + x)
    def L(s, x): s.l.append(x + ":")
    def ds(s, x, tag=None): s.E(x); s.q.append(tag)
    def wait_ds(s, tag=None):
        if tag is None: n = 0
        else:
            c = [i for i, t in enumerate(s.q) if t == tag]
            if not c: return
            n = len(s.q) - 1 - max(c)
        s.E(f"s_waitcnt lgkmcnt({min(n,15)})")
        n = min(n, 15)
        s.q = s.q[len(s.q)-n:] if n else []
    def srd(s, d, p, n):
        s.E(f"s_mov_b32 s{d}, s{p}"); s.E(f"s_mov_b32 s{d+1}, s{p+1}"); s.E(f"s_mov_b32 s{d+2}, {n}"); s.E(f"s_mov_b32 s{d+3}, 0x20000")

def gen(name=NAME, stamps=False, opts=None):
    o = dict(prioL=0, prioC=0)
    if opts: o.update(opts)
    g = G(); E = g.E
    P = name.replace("_kernel", "")[-6:] + "_"
    def stamp(k):
        if stamps: E(f"s_memrealtime s[{80+2*k}:{81+2*k}]")
    g.l.append(f".text\n.globl {name}\n.p2align 8\n.type {name},@function\n{name}:")
    stamp(0)
    E("s_cmp_ge_u32 s2, 256"); E(f"s_cbranch_scc1 {P}END")
    E("s_load_dwordx16 s[4:19], s[0:1], 0"); E("s_load_dwordx4 s[20:23], s[0:1], 64")
    E("v_lshrrev_b32 v1, 6, v0")
    E("s_and_b32 s64, s2, 7"); E("s_lshl_b32 s64, s64, 2")
    E("v_readfirstlane_b32 s69, v1")
    E("s_lshr_b32 s70, s2, 6"); E("s_add_u32 s64, s64, s70")
    E("s_lshr_b32 s67, s2, 3"); E("s_and_b32 s67, s67, 7")
    E("s_and_b32 s65, s67, 3"); E("s_lshr_b32 s66, s67, 2")
    E("s_lshl_b32 s68, s64, 7")
    E("v_and_b32 v250, 63, v0")
    E("s_cmp_ge_u32 s69, 4"); E(f"s_cbranch_scc1 {P}CSTART")
    B1R, W2R = 224, 228
    def load_b1w2(tmp):
        g.srd(48, 12, 512); g.srd(52, 14, 512)
        E(f"v_lshrrev_b32 v{tmp}, 5, v250"); E(f"v_lshlrev_b32 v{tmp}, 5, v{tmp}")
        E(f"v_bfe_u32 v{tmp+1}, v250, 4, 1"); E(f"v_lshl_add_u32 v{tmp}, v{tmp+1}, 3, v{tmp}")
        E("s_lshl_b32 s71, s69, 6")
        E(f"buffer_load_dwordx2 v[{B1R}:{B1R+1}], v{tmp}, s[48:51], s71 offen")
        E(f"buffer_load_dwordx2 v[{B1R+2}:{B1R+3}], v{tmp}, s[48:51], s71 offen offset:16")
        E(f"buffer_load_dwordx2 v[{W2R}:{W2R+1}], v{tmp}, s[52:55], s71 offen")
        E(f"buffer_load_dwordx2 v[{W2R+2}:{W2R+3}], v{tmp}, s[52:55], s71 offen offset:16")
    def load_nonce():
        E("s_lshl_b32 s70, s64, 2"); E("s_load_dword s76, s[20:21], s70")
    VCA0, VCA1, VB0, VB1, VIA, VIP0, VIP1, VP16 = 224, 225, 226, 227, 228, 229, 230, 231
    OFF = 232; VP = 220; SUM = 216; WREG = 208; D = 192; F6 = 238; WA = 246; WA6 = 247
    def F(js, b, h): return ((js*6 + b)*2 + h)*4 if b < 6 else F6 + h*4
    if o['prioL']: E(f"s_setprio {o['prioL']}")
    E("v_lshrrev_b32 v251, 3, v250")
    E("v_and_b32 v252, 7, v250")
    E(f"v_lshlrev_b32 v{VP16}, 4, v252")
    E("v_mul_u32_u24 v253, 400, v251")
    E(f"v_add_u32 v253, v253, v{VP16}")
    E("v_lshlrev_b32 v254, 4, v250")
    E("v_lshrrev_b32 v249, 4, v250")
    E("v_lshlrev_b32 v248, 2, v249")
    E("v_and_b32 v247, 15, v250")
    E("v_xor_b32 v247, v247, v248")
    E("v_lshlrev_b32 v247, 4, v247")
    E(f"v_lshl_add_u32 v{VB0}, v249, 9, v247")
    E(f"v_xor_b32 v{VB1}, 32, v{VB0}")
    E("s_lshl_b32 s73, s69, 12")
    E("s_mul_i32 s74, s69, 1536"); E("s_add_u32 s74, s74, 16384")
    E(f"s_add_u32 s75, s73, {BS0}")
    E("s_mul_i32 s72, s65, 819200"); E("s_lshl_b32 s70, s66, 8"); E("s_add_u32 s72, s72, s70")
    E("s_lshl_b32 s70, s69, 13"); E("s_add_u32 s72, s72, s70")
    E("s_lshl_b32 s70, s69, 5"); E("s_add_u32 s70, s70, s68"); E("s_mul_i32 s70, s70, 400")
    E("s_mul_i32 s71, s65, 100"); E("s_add_u32 s70, s70, s71")
    E("s_lshl_b32 s77, s67, 4"); E("s_lshl_b32 s78, s69, 2"); E("s_add_u32 s77, s77, s78")
    E("s_add_u32 s78, s77, s68"); E("s_mul_i32 s78, s78, 400")
    E("s_mul_i32 s79, s69, 1600"); E(f"s_add_u32 s79, s79, {IDXP}")
    E("s_waitcnt lgkmcnt(0)")
    g.srd(24, 4, 1638400)
    for j in range(4):
        E(f"s_add_u32 m0, s73, {IDXA + j*1024}")
        if j: E(f"s_add_u32 s70, s70, 3200")
        else: E("s_nop 0")
        E("buffer_load_dwordx4 v253, s[24:27], s70 offen lds")
    E("s_mov_b32 m0, s79"); E("s_nop 0")
    E("buffer_load_dwordx4 v254, s[24:27], s78 offen lds")
    E("s_mov_b32 exec_hi, 15")
    E("buffer_load_dwordx4 v254, s[24:27], s78 offen offset:1024 lds")
    E("s_mov_b32 exec_hi, -1")
    g.srd(32, 10, 3276800)
    def issueB(t):
        s = t % 3
        for ii in range(4):
            E(f"s_add_u32 m0, s75, {s*16384 + ii*1024}")
            E(f"s_add_u32 s70, s72, {t*32768 + ii*2048}")
            E(f"buffer_load_dwordx4 v{VB0 if ii < 2 else VB1}, s[32:35], s70 offen lds")
    def issueA(t, off):
        s = t % 3
        for j in range(4):
            E(f"s_add_u32 m0, s73, {AP(s) + j*1024}"); E("s_nop 0")
            E(f"buffer_load_dwordx4 v{off+j}, s[28:31], 0 offen lds")
        E(f"s_add_u32 m0, s74, {AP(s)}"); E("s_nop 0")
        E(f"buffer_load_dwordx4 v{off+4}, s[28:31], 0 offen lds")
        E(f"s_add_u32 m0, s74, {AP(s) + 1024}"); E("s_mov_b32 exec_hi, 0")
        E(f"buffer_load_dwordx4 v{off+5}, s[28:31], 0 offen lds")
        E("s_mov_b32 exec_hi, -1")
    def rdidx(t, off):
        for j in range(4): g.ds(f"ds_read_b32 v{off+j}, v{VIA} offset:{j*1024 + 4*t}", 'idx')
        g.ds(f"ds_read_b32 v{off+4}, v{VIP0} offset:{4*t}", 'idx')
        g.ds(f"ds_read_b32 v{off+5}, v{VIP1} offset:{4*t}", 'idx')
    def cvidx(off):
        for j in range(4): E(f"v_lshl_add_u32 v{off+j}, v{off+j}, 7, v{VCA0 + (j&1)}")
        for j in (4, 5): E(f"v_lshl_add_u32 v{off+j}, v{off+j}, 7, v{VP16}")
    issueB(0); issueB(1)
    g.srd(28, 6, 12800000)
    E("v_lshrrev_b32 v248, 1, v251"); E("v_xor_b32 v248, v248, v252")
    E(f"v_lshlrev_b32 v{VCA0}, 4, v248"); E(f"v_xor_b32 v{VCA1}, 64, v{VCA0}")
    E(f"v_lshlrev_b32 v{VIA}, 7, v251"); E(f"s_add_u32 s70, s73, {IDXA}"); E(f"v_add_u32 v{VIA}, s70, v{VIA}")
    E("s_movk_i32 s71, 400")
    for k, dst in ((0, VIP0), (1, VIP1)):
        if k == 0: E("v_mov_b32 v246, v251")
        else: E("v_and_b32 v246, 3, v251"); E("v_add_u32 v246, 8, v246")
        E("v_mul_u32_u24 v245, 11, v246"); E("v_lshrrev_b32 v245, 5, v245")
        E("v_mul_u32_u24 v244, 3, v245"); E("v_sub_u32 v244, v246, v244")
        E("v_add_u32 v244, s65, v244"); E("v_add_u32 v244, 1, v244"); E("v_and_b32 v244, 3, v244")
        E("v_mul_u32_u24 v244, 100, v244")
        E(f"v_mad_u32_u24 v{dst}, v245, s71, v244"); E(f"v_add_u32 v{dst}, s79, v{dst}")
    E("v_bfe_u32 v246, v250, 2, 2")
    E("v_cmp_eq_u32 vcc, s65, v246")
    E("v_subrev_u32 v245, s65, v246"); E("v_add_u32 v245, 3, v245"); E("v_and_b32 v245, 3, v245")
    E("v_lshlrev_b32 v245, 7, v245"); E("v_lshl_add_u32 v245, v249, 4, v245"); E("v_add_u32 v245, s74, v245")
    for js in range(4):
        E(f"s_add_u32 s70, s77, {js}"); E("s_lshr_b32 s71, s70, 1"); E("s_and_b32 s71, s71, 7"); E("s_lshl_b32 s70, s70, 7")
        E("v_xor_b32 v244, s71, v249"); E("v_lshlrev_b32 v244, 4, v244"); E("v_add_u32 v244, s70, v244")
        E(f"v_add_u32 v243, {js*384}, v245")
        E(f"v_cndmask_b32 v{VP+js}, v243, v244, vcc")
    for js in range(4): E(f"v_mov_b32 v{SUM+js}, 0")
    E(f"v_add_u32 v{WA}, {WP}, v254")
    E(f"v_lshlrev_b32 v{WA6}, 2, v250"); E(f"v_add_u32 v{WA6}, {WP6}, v{WA6}")
    E("s_waitcnt vmcnt(8)")
    rdidx(0, 0); rdidx(1, 6); g.wait_ds()
    cvidx(0); issueA(0, 0); cvidx(6); issueA(1, 6)
    rdidx(2, OFF); g.wait_ds(); cvidx(OFF)
    E("s_barrier")
    E("s_waitcnt vmcnt(6)")
    E("s_barrier")
    stamp(1)
    sched = {t: [] for t in range(26)}
    sched[1].append((6, 6))
    for b in range(6):
        tl = [(6, b)] + [(I, b) for I in range(b+1)]
        st = [4*b+5+k for k in range(4)] if b < 5 else [25]
        for n, x in enumerate(tl): sched[st[n*len(st)//len(tl)]].append(x)
    state = dict(pend=None, wsel=0)
    def wread(I, J):
        w = WREG + 4*state['wsel']; state['wsel'] ^= 1
        if I < 6: g.ds(f"ds_read_b128 v[{w}:{w+3}], v{WA} offset:{(J*(J+1)//2 + I)*1024}", ('w', I, J))
        elif J == 6: g.ds(f"ds_read_b128 v[{w}:{w+3}], v{WA} offset:{21*1024}", ('w', I, J))
        else: g.ds(f"ds_read_b32 v{w}, v{WA6} offset:{J*256}", ('w', I, J))
        return w
    def fm(js, p):
        I, J, w = p
        if I < 6:
            for r in range(4): E(f"v_fmac_f32 v{SUM+js}, v{D+4*js+r}, v{w+r}")
            return 4
        if J == 6: E(f"v_fmac_f32 v{SUM+js}, v{D+js}, v{w+js}")
        else: E(f"v_fmac_f32 v{SUM+js}, v{D+4*js+js}, v{w}")
        return 1
    def mm(js, I, J):
        d = D + 4*js
        E(f"v_mfma_f32_16x16x32_bf16 v[{d}:{d+3}], v[{F(js,I,0)}:{F(js,I,0)+3}], v[{F(js,J,0)}:{F(js,J,0)+3}], 0")
        E(f"v_mfma_f32_16x16x32_bf16 v[{d}:{d+3}], v[{F(js,I,1)}:{F(js,I,1)+3}], v[{F(js,J,1)}:{F(js,J,1)+3}], v[{d}:{d+3}]")
    def tiles(tl):
        for (I, J) in tl:
            w = wread(I, J)
            pend = state['pend']
            if pend is not None: g.wait_ds(('w', pend[0], pend[1]))
            if pend is not None and pend[:2] == (6, 6):
                E("s_nop 7")
                for js in range(4): fm(js, pend)
                pend = None
            for js in range(4):
                if pend is not None: fm(js, pend)
                if (I, J) != (6, 6) or js == 0: mm(js, I, J)
            E("s_nop 1")
            state['pend'] = (I, J, w)
    def flush():
        pend = state['pend']
        g.wait_ds(('w', pend[0], pend[1]))
        E("s_nop 3")
        for js in range(4):
            fm(js, pend)
            if js < 3: E("s_nop 1")
        state['pend'] = None
    for t in range(25):
        s = t % 3
        if t + 2 <= 24:
            issueB(t+2); issueA(t+2, OFF)
        if t + 3 <= 24: rdidx(t+3, OFF)
        if t == 23:
            load_b1w2(248); load_nonce()
        if t == 0:
            for js in range(4):
                m = 0x11111111 << js
                E(f"v_xor_b32 v{D+js}, 64, v{VP+js}")
            for js in range(4):
                m = 0x11111111 << js
                E(f"s_mov_b32 exec_lo, {m:#x}"); E(f"s_mov_b32 exec_hi, {m:#x}")
                g.ds(f"ds_read_b128 v[{F6}:{F6+3}], v{VP+js} offset:{AP(s)}", 'pf')
                g.ds(f"ds_read_b128 v[{F6+4}:{F6+7}], v{D+js} offset:{AP(s)}", 'pf')
        else:
            b = (t-1) >> 2; u = (t-1) & 3
            m = 0x11111111 << u
            E(f"s_mov_b32 exec_lo, {m:#x}"); E(f"s_mov_b32 exec_hi, {m:#x}")
            for js in range(4):
                f0 = F(js, b, 0); f1 = F(js, b, 1)
                E(f"v_xor_b32 v{f1}, 64, v{VP+js}")
                g.ds(f"ds_read_b128 v[{f0}:{f0+3}], v{VP+js} offset:{AP(s)}", 'pf')
                g.ds(f"ds_read_b128 v[{f1}:{f1+3}], v{f1} offset:{AP(s)}", 'pf')
        E("s_mov_b64 exec, -1")
        tiles(sched[t])
        g.wait_ds()
        if t < 24:
            if t + 3 <= 24: cvidx(OFF)
            E(f"s_waitcnt vmcnt({10 if t + 2 <= 24 else 4})")
            E("s_barrier")
            if t == 11: stamp(2)
    stamp(3)
    tiles(sched[25]); flush()
    E("s_nop 1")
    for sh in (1, 2, 4, 8):
        for js in range(4): E(f"v_add_f32_dpp v{SUM+js}, v{SUM+js}, v{SUM+js} row_shr:{sh} row_mask:0xf bank_mask:0xf bound_ctrl:1")
    E("v_lshrrev_b32 v248, 4, v250"); E("v_lshlrev_b32 v248, 6, v248")
    E("s_lshl_b32 s70, s69, 4"); E(f"s_add_u32 s70, s70, {RED + 2048}")
    E("v_add_u32 v248, s70, v248")
    E("s_mov_b32 exec_lo, 0x80008000"); E("s_mov_b32 exec_hi, 0x80008000")
    E(f"ds_write_b128 v248, v[{SUM}:{SUM+3}]")
    E("s_mov_b64 exec, -1")
    g.srd(40, 22, WSREC); g.srd(44, 20, 256)
    E("s_waitcnt vmcnt(0) lgkmcnt(0)")
    E(f"s_cmp_lg_u32 s76, 0"); E(f"s_cbranch_scc1 {P}TAIL")
    E(f"s_branch {P}NONCE_L")
    g.q = []
    g.L(f"{P}CSTART")
    if o['prioC']: E(f"s_setprio {o['prioC']}")
    VA = 128; VBR = 132; VX = 134
    def FA(ks, mb): return 64 + ks*16 + mb*4
    def FB(ks, nb): return 64 + ks*16 + 8 + nb*4
    def ACC(mb, nb): return (mb*2 + nb)*16
    E("s_sub_u32 s72, s69, 4")
    E("s_and_b32 s73, s72, 1"); E("s_lshr_b32 s74, s72, 1")
    E("v_lshlrev_b32 v254, 4, v250")
    E("s_mul_i32 s70, s72, 5120")
    E("s_waitcnt lgkmcnt(0)")
    g.srd(36, 8, 20000)
    for i in range(5):
        E(f"s_add_u32 m0, s70, {AP(2) + i*1024}"); E(f"s_add_u32 s71, s70, {i*1024}")
        E("buffer_load_dwordx4 v254, s[36:39], s71 offen lds")
    g.srd(40, 22, WSREC); g.srd(44, 20, 256)
    E("s_or_b32 s71, s67, s72"); E("s_cmp_lg_u32 s71, 0"); E(f"s_cbranch_scc1 {P}NOLEAD")
    E("s_memrealtime s[78:79]"); E("s_lshl_b32 s70, s64, 2"); E("s_waitcnt lgkmcnt(0)")
    E("s_or_b32 s78, s78, 1"); E("v_mov_b32 v1, s78"); E("v_mov_b32 v2, 0")
    E("s_mov_b64 exec, 1")
    E("buffer_store_dword v1, v2, s[44:47], s70 offen sc0 sc1")
    E("s_mov_b64 exec, -1")
    g.L(f"{P}NOLEAD")
    load_b1w2(248)
    E("v_and_b32 v140, 31, v250"); E("v_lshrrev_b32 v141, 5, v250"); E("v_bfe_u32 v142, v250, 1, 3")
    E("v_xor_b32 v141, v141, v142"); E("v_lshlrev_b32 v141, 4, v141"); E("v_lshl_add_u32 v141, v140, 7, v141")
    E("s_lshl_b32 s70, s73, 13"); E(f"v_add_u32 v{VA}, s70, v141")
    for ks in range(1, 4): E(f"v_xor_b32 v{VA+ks}, {ks<<5}, v{VA}")
    E("v_lshrrev_b32 v140, 5, v250")
    E("v_bfe_u32 v141, v250, 2, 2")
    E("v_lshl_add_u32 v142, v140, 3, v141"); E("v_lshlrev_b32 v142, 8, v142")
    E("v_bfe_u32 v143, v250, 4, 1"); E("v_lshlrev_b32 v143, 1, v143")
    E("v_bfe_u32 v144, v250, 1, 1"); E("v_or_b32 v143, v143, v144")
    E("s_lshl_b32 s70, s74, 3"); E("v_or_b32 v143, s70, v143")
    E("v_lshlrev_b32 v144, 2, v141"); E("v_xor_b32 v143, v143, v144")
    E("v_lshlrev_b32 v144, 1, v140"); E("v_xor_b32 v143, v143, v144")
    E("v_lshl_add_u32 v142, v143, 4, v142")
    E("v_and_b32 v144, 1, v250"); E("v_lshl_add_u32 v142, v144, 3, v142")
    E(f"v_add_u32 v{VBR}, {BS0}, v142"); E(f"v_xor_b32 v142, 64, v142"); E(f"v_add_u32 v{VBR+1}, {BS0}, v142")
    E("v_bfe_u32 v140, v250, 4, 1"); E("v_lshlrev_b32 v140, 15, v140")
    E("v_and_b32 v141, 15, v250"); E("v_lshl_add_u32 v140, v141, 4, v140")
    E("v_lshrrev_b32 v141, 5, v250"); E(f"v_lshl_add_u32 v{VX}, v141, 8, v140")
    E("v_lshrrev_b32 v140, 4, v250")
    E("v_bfe_u32 v141, v250, 2, 2"); E("v_mul_u32_u24 v141, 25, v141")
    E("v_and_b32 v142, 3, v250"); E("v_add_u32 v142, v141, v142")
    E("v_mul_u32_u24 v143, 5000, v140")
    E("v_lshl_add_u32 v145, v142, 1, v143"); E(f"v_add_u32 v145, {AP(2)}, v145")
    E("v_lshl_add_u32 v147, v141, 1, v143"); E(f"v_add_u32 v147, {AP(2)}, v147")
    E("v_mul_u32_u24 v146, 200, v142"); E("v_mul_u32_u24 v143, 50, v140"); E("v_add_u32 v146, v146, v143")
    E(f"v_add_u32 v146, {AP(2)}, v146")
    E(f"v_add_u32 v148, {WP}, v254")
    E(f"v_lshlrev_b32 v149, 2, v250"); E(f"v_add_u32 v149, {WP6}, v149")
    for r in range(56): E(f"v_mov_b32 v{r}, 0")
    E("s_waitcnt vmcnt(4)")
    E("s_barrier")
    big = [(I, J) for J in range(6) for I in range(J+1)] + [(6, 6)]
    for cw in range(4):
        if cw < 3: E(f"s_cmp_lg_u32 s72, {cw}"); E(f"s_cbranch_scc1 {P}WB{cw+1}")
        mine = [(n, t) for n, t in enumerate(big) if n % 4 == cw]
        small = [J for J in range(6) if cw >= 2 and J % 2 == cw % 2]
        r = 0; plan = []
        for n, (I, J) in mine:
            if I == 6:
                E(f"ds_read_u16_d16_hi v{r}, v147"); plan.append((n, I, J, r)); r += 1; continue
            for k in range(4): E(f"ds_read_u16_d16_hi v{r+k}, v145 offset:{200*(1+4*I+k) + 2*(1+4*J)}")
            if I < J:
                for k in range(4): E(f"ds_read_u16_d16_hi v{r+4+k}, v146 offset:{200*(1+4*J) + 2*(1+4*I+k)}")
            plan.append((n, I, J, r)); r += 8
        sp = []
        for J in small:
            E(f"ds_read_u16_d16_hi v{r}, v145 offset:{2*(1+4*J)}"); E(f"ds_read_u16_d16_hi v{r+1}, v146 offset:{200*(1+4*J)}")
            sp.append((J, r)); r += 2
        assert r <= 56
        E("s_waitcnt lgkmcnt(0)")
        for n, I, J, r in plan:
            if I == 6:
                for k in range(4):
                    m = 0x11111111 << k
                    E(f"s_mov_b32 vcc_lo, {m:#x}"); E(f"s_mov_b32 vcc_hi, {m:#x}")
                    E(f"v_cndmask_b32 v{60+k}, 0, v{r}, vcc")
                E(f"ds_write_b128 v148, v[60:63] offset:{n*1024}")
                continue
            if I < J:
                for k in range(4): E(f"v_add_f32 v{r+k}, v{r+k}, v{r+4+k}")
            E(f"ds_write_b128 v148, v[{r}:{r+3}] offset:{n*1024}")
        for J, r in sp:
            E(f"v_add_f32 v{r}, v{r}, v{r+1}"); E(f"ds_write_b32 v149, v{r} offset:{J*256}")
        if cw < 3: E(f"s_branch {P}WBDONE"); g.L(f"{P}WB{cw+1}")
    g.L(f"{P}WBDONE")
    E("s_waitcnt lgkmcnt(0)")
    E("s_barrier")
    stamp(1)
    def Rl(s, ks):
        l = []
        for mb in range(2): l.append(f"ds_read_b128 v[{FA(ks,mb)}:{FA(ks,mb)+3}], v{VA+ks} offset:{AP(s) + mb*4096}")
        for nb in range(2):
            for hf in range(2): l.append(f"ds_read_b64_tr_b16 v[{FB(ks,nb)+2*hf}:{FB(ks,nb)+2*hf+1}], v{VBR+nb} offset:{s*16384 + ks*4096 + hf*1024}")
        return [l[0], l[2], l[3], l[1], l[4], l[5]]
    def Ml(ks, first=False):
        l = []
        for mb, nb in ((0, 0), (1, 0), (0, 1), (1, 1)):
            a = ACC(mb, nb)
            l.append(f"v_mfma_f32_32x32x16_bf16 v[{a}:{a+15}], v[{FB(ks,nb)}:{FB(ks,nb)+3}], v[{FA(ks,mb)}:{FA(ks,mb)+3}], " + ("0" if first else f"v[{a}:{a+15}]"))
        return l
    def inter(ms, rs, tag):
        per = [rs[0:2], rs[2:4], rs[4:6], []]
        for m, r in zip(ms, per):
            E(m)
            for x in r: g.ds(x, tag)
    for t in range(25):
        s = t % 3
        for x in Rl(s, 0): g.ds(x, 0)
        if t == 0:
            for x in Rl(s, 1): g.ds(x, 1)
        else: inter(Ml(3), Rl(s, 1), 1)
        if t == 22: load_nonce()
        g.wait_ds(0); inter(Ml(0, t == 0), Rl(s, 2), 2)
        g.wait_ds(1); inter(Ml(1), Rl(s, 3), 3)
        g.wait_ds(2)
        for m in Ml(2): E(m)
        g.wait_ds()
        if t < 24: E("s_barrier")
        if t == 11: stamp(2)
    for m in Ml(3): E(m)
    stamp(3)
    E("s_lshl_b32 s77, s64, 18"); E("s_lshl_b32 s70, s73, 17"); E("s_add_u32 s77, s77, s70")
    E("s_lshl_b32 s70, s65, 13"); E("s_add_u32 s77, s77, s70")
    E("s_lshl_b32 s70, s66, 12"); E("s_add_u32 s77, s77, s70")
    E("s_lshl_b32 s70, s74, 11"); E("s_add_u32 s77, s77, s70")
    E("s_add_u32 s78, s77, 65536")
    E("s_nop 3")
    for mb, nb in ((0, 0), (1, 0), (0, 1), (1, 1)):
        a = ACC(mb, nb); p = 64 + (mb*2+nb)*8
        for j in range(2):
            for k in range(4): E(f"v_cvt_pk_bf16_f32 v{p+4*j+k}, v{a+8*j+2*k}, v{a+8*j+2*k+1}")
            E(f"buffer_store_dwordx4 v[{p+4*j}:{p+4*j+3}], v{VX}, s[40:43], s{77+mb} offen offset:{nb*1024 + j*512} sc0 sc1")
    E(f"s_cmp_lg_u32 s76, 0"); E(f"s_cbranch_scc1 {P}CFLAG")
    def nonce_poll(lbl, nxt):
        g.L(lbl)
        E("s_lshl_b32 s70, s64, 2"); E("v_mov_b32 v200, 0"); E(f"s_mov_b32 s71, {SPIN}")
        g.L(lbl + "_l")
        E("buffer_load_dword v201, v200, s[44:47], s70 offen sc0 sc1")
        E("s_waitcnt vmcnt(0)")
        E("v_readfirstlane_b32 s76, v201")
        E("s_sub_u32 s71, s71, 1"); E("s_cmp_eq_u32 s71, 0"); E(f"s_cbranch_scc1 {nxt}")
        E("s_cmp_eq_u32 s76, 0"); E(f"s_cbranch_scc1 {lbl}_l")
    nonce_poll(f"{P}NONCE_C", f"{P}CFLAG")
    g.L(f"{P}CFLAG")
    E("s_lshl_b32 s70, s64, 1"); E("s_add_u32 s70, s70, s66"); E("s_lshl_b32 s70, s70, 2"); E("s_add_u32 s70, s70, s72")
    E("s_lshl_b32 s70, s70, 7"); E("s_lshl_b32 s71, s65, 2"); E("s_add_u32 s70, s70, s71"); E(f"s_add_u32 s70, s70, {FLOFF}")
    E("v_mov_b32 v200, 0"); E("v_mov_b32 v201, s76")
    E("s_waitcnt vmcnt(0)")
    E("s_mov_b64 exec, 1")
    E("buffer_store_dword v201, v200, s[40:43], s70 offen sc0 sc1")
    E("s_mov_b64 exec, -1")
    E(f"s_branch {P}TAIL")
    nonce_poll(f"{P}NONCE_L", f"{P}TAIL")
    g.L(f"{P}TAIL")
    stamp(4)
    E("s_lshl_b32 s70, s64, 1"); E("s_lshr_b32 s71, s69, 2"); E("s_add_u32 s70, s70, s71"); E("s_lshl_b32 s70, s70, 2")
    E("s_add_u32 s70, s70, s66"); E("s_and_b32 s71, s69, 2"); E("s_add_u32 s70, s70, s71")
    E("s_lshl_b32 s70, s70, 7"); E(f"s_add_u32 s70, s70, {FLOFF}")
    E("s_lshl_b32 s77, s64, 18"); E("s_lshl_b32 s71, s67, 15"); E("s_add_u32 s77, s77, s71")
    E("s_lshl_b32 s71, s69, 10"); E("s_add_u32 s77, s77, s71")
    E("v_mov_b32 v200, 0"); E("v_lshlrev_b32 v201, 4, v250")
    E(f"s_mov_b32 s71, {SPIN}")
    g.srd(56, 18, 8192)
    E("s_mov_b32 s79, 0xffff0000")
    for k in range(4):
        E(f"v_lshlrev_b32 v{2*k}, 16, v{B1R+k}"); E(f"v_and_b32 v{2*k+1}, s79, v{B1R+k}")
        E(f"v_lshlrev_b32 v{8+2*k}, 16, v{W2R+k}"); E(f"v_and_b32 v{8+2*k+1}, s79, v{W2R+k}")
    g.srd(60, 16, 2)
    E("v_mov_b32 v48, 0")
    E("buffer_load_short_d16_hi v48, v200, s[60:63], 0 offen")
    g.L(f"{P}POLL")
    E("buffer_load_dwordx4 v[204:207], v200, s[40:43], s70 offen sc0 sc1")
    E("s_sub_u32 s71, s71, 1"); E("s_cmp_eq_u32 s71, 0"); E(f"s_cbranch_scc1 {P}POLLED")
    E("s_waitcnt vmcnt(0)")
    for k in range(4): E(f"v_xor_b32 v{204+k}, s76, v{204+k}")
    E("v_or3_b32 v204, v204, v205, v206"); E("v_or_b32 v204, v204, v207")
    E("v_cmp_ne_u32 vcc, 0, v204"); E(f"s_cbranch_vccnz {P}POLL")
    g.L(f"{P}POLLED")
    stamp(5)
    for qq in range(4):
        E(f"s_add_u32 s70, s77, {qq*8192}")
        E(f"buffer_load_dwordx4 v[{16+4*qq}:{19+4*qq}], v201, s[40:43], s70 offen sc0 sc1")
    E("v_mov_b32 v40, 0xbdd2d3e8")
    for qq in range(4):
        E(f"s_waitcnt vmcnt({3-qq})")
        for k in range(4):
            E(f"v_lshlrev_b32 v{32+2*k}, 16, v{16+4*qq+k}"); E(f"v_and_b32 v{33+2*k}, s79, v{16+4*qq+k}")
        for k in range(8): E(f"v_add_f32 v{k}, v{k}, v{32+k}")
    for k in range(8): E(f"v_mul_f32 v{16+k}, v{k}, v{k}")
    for k in range(8): E(f"v_fmaak_f32 v{16+k}, v{16+k}, v40, 0xc0135761")
    for k in range(8): E(f"v_mul_f32 v{16+k}, v{16+k}, v{k}")
    for k in range(8): E(f"v_exp_f32 v{16+k}, v{16+k}")
    for k in range(8): E(f"v_mul_f32 v{k}, v{k}, v{8+k}")
    for k in range(8): E(f"v_add_f32 v{16+k}, 1.0, v{16+k}")
    for k in range(8): E(f"v_rcp_f32 v{16+k}, v{16+k}")
    E("s_lshl_b32 s70, s69, 8"); E(f"s_add_u32 s70, s70, {RED}")
    E("v_lshlrev_b32 v41, 2, v250"); E("v_add_u32 v42, s70, v41")
    E("v_mul_f32 v24, v0, v16"); E("v_mul_f32 v25, v1, v17")
    for k in range(2, 8): E(f"v_fmac_f32 v{24+(k&1)}, v{k}, v{16+k}")
    E("v_add_f32 v24, v24, v25")
    E("ds_write_b32 v42, v24")
    E("s_waitcnt lgkmcnt(0)")
    E("s_barrier")
    if stamps:
        E("s_cmp_eq_u32 s69, 4"); E(f"s_cbranch_scc1 {P}STAMP")
    E("s_cmp_lg_u32 s69, 0"); E(f"s_cbranch_scc1 {P}END")
    E(f"v_add_u32 v41, {RED}, v41")
    for w in range(9): E(f"ds_read_b32 v{w}, v41 offset:{w*256}")
    E("s_lshl_b32 s70, s67, 4"); E("s_add_u32 s70, s70, s68"); E("s_lshl_b32 s70, s70, 1")
    E("v_lshlrev_b32 v43, 1, v250")
    E("s_waitcnt lgkmcnt(0)")
    for k in range(4): E(f"v_add_f32 v{k}, v{k}, v{k+4}")
    E("v_add_f32 v0, v0, v8"); E("v_add_f32 v1, v1, v2"); E("v_add_f32 v0, v0, v3"); E("v_add_f32 v0, v0, v1")
    E("v_mov_b32 v1, v0"); E("s_nop 1"); E("v_permlane32_swap_b32 v0, v1"); E("s_nop 1"); E("v_add_f32 v0, v0, v1")
    E("v_mov_b32 v1, v0"); E("s_nop 1"); E("v_permlane16_swap_b32 v0, v1"); E("s_nop 1"); E("v_add_f32 v0, v0, v1")
    E("v_add_f32 v0, v0, v48")
    E("v_cvt_pk_bf16_f32 v0, v0, v0")
    E("s_mov_b64 exec, 0xffff")
    E("buffer_store_short v0, v43, s[56:59], s70 offen")
    if stamps:
        E("s_mov_b64 exec, -1")
        g.L(f"{P}STAMP")
        E("s_waitcnt vmcnt(0)")
        stamp(6)
        E("s_mul_i32 s70, s2, 112"); E("s_add_u32 s70, s70, 0x8000000")
        E("s_cmp_eq_u32 s69, 0"); E("s_cselect_b32 s71, 56, 0"); E("s_add_u32 s70, s70, s71")
        E("v_mov_b32 v1, s70")
        E("s_waitcnt lgkmcnt(0)")
        E("s_mov_b64 exec, 1")
        for k in range(7):
            E(f"v_mov_b32 v2, s{80+2*k}"); E(f"v_mov_b32 v3, s{81+2*k}")
            E(f"global_store_dwordx2 v1, v[2:3], s[22:23] offset:{8*k}"); E("s_nop 1")
    g.L(f"{P}END")
    E("s_endpgm")
    return "\n".join(x for x in g.l if x is not None) + "\n" + kd(name, vgpr=256)

def official(opts=None):
    asm = HDR + f"; @launch grid=(256,1,1) block=(512,1,1) lds={LDS}\n" + '.amdgcn_target "amdgcn-amd-amdhsa--gfx950"\n' + gen(NAME, False, opts)
    open('standalone__deep_cross_pnn__recsys.s', 'w').write(asm)

def bench(base, variants):
    hdr = []; ks = []
    for nm, op in variants:
        hdr.append(f"; @launch kernel={nm} grid=(256,1,1) block=(512,1,1) lds={LDS}")
        ks.append(gen(nm, True, op))
    asm = "\n".join(hdr) + '\n.amdgcn_target "amdgcn-amd-amdhsa--gfx950"\n' + "\n".join(ks)
    build(asm, base, variants[0][0])
    open(base + ".sh", "w").write("export NST=14\n" + "".join(f"timeout 60 ./run {os.path.basename(base)}.co 1 9 256 {nm}:256:512:{LDS}\n" for nm, _ in variants))

if __name__ == "__main__":
    official()
    bench('g2', [("g2base_kernel", {})])
```

```python
import sys, os
sys.path.insert(0, 'bench')
from asmlib import kd, build
NAME = "standalone__deep_cross_pnn__recsys_kernel"
HDR = open('standalone__deep_cross_pnn__recsys.s.ref').read().split('; Override')[0]

APS = 22528
def AP(s): return s*APS
BS0 = 3*APS
IDXA = BS0 + 3*16384
IDXP = IDXA + 16384
WP = IDXP + 6400
WP6 = WP + 22*1024
LDSEND = WP6 + 6*256
LDS = 163840
assert LDSEND <= LDS
RED = IDXA
FLOFF = 8 << 20
WSREC = 16 << 20
SPIN = 200000

class G:
    def __init__(s): s.l = []; s.q = []
    def E(s, x): s.l.append("    " + x)
    def L(s, x): s.l.append(x + ":")
    def ds(s, x, tag=None): s.E(x); s.q.append(tag)
    def wait_ds(s, tag=None):
        if tag is None: n = 0
        else:
            c = [i for i, t in enumerate(s.q) if t == tag]
            if not c: return
            n = len(s.q) - 1 - max(c)
        s.E(f"s_waitcnt lgkmcnt({min(n,15)})")
        n = min(n, 15)
        s.q = s.q[len(s.q)-n:] if n else []
    def srd(s, d, p, n):
        s.E(f"s_mov_b32 s{d}, s{p}"); s.E(f"s_mov_b32 s{d+1}, s{p+1}"); s.E(f"s_mov_b32 s{d+2}, {n}"); s.E(f"s_mov_b32 s{d+3}, 0x20000")

def gen(name=NAME, stamps=False, opts=None):
    o = dict(prioL=0, prioC=0)
    if opts: o.update(opts)
    g = G(); E = g.E
    P = name.replace("_kernel", "")[-6:] + "_"
    def stamp(k):
        if stamps: E(f"s_memrealtime s[{80+2*k}:{81+2*k}]")
    g.l.append(f".text\n.globl {name}\n.p2align 8\n.type {name},@function\n{name}:")
    stamp(0)
    E("s_cmp_ge_u32 s2, 256"); E(f"s_cbranch_scc1 {P}END")
    E("s_load_dwordx16 s[4:19], s[0:1], 0"); E("s_load_dwordx4 s[20:23], s[0:1], 64")
    E("v_lshrrev_b32 v1, 6, v0")
    E("s_and_b32 s64, s2, 7"); E("s_lshl_b32 s64, s64, 2")
    E("v_readfirstlane_b32 s69, v1")
    E("s_lshr_b32 s70, s2, 6"); E("s_add_u32 s64, s64, s70")
    E("s_lshr_b32 s67, s2, 3"); E("s_and_b32 s67, s67, 7")
    E("s_and_b32 s65, s67, 3"); E("s_lshr_b32 s66, s67, 2")
    E("s_lshl_b32 s68, s64, 7")
    E("v_and_b32 v250, 63, v0")
    E("s_cmp_ge_u32 s69, 4"); E(f"s_cbranch_scc1 {P}CSTART")
    B1R, W2R = 224, 228
    def load_b1w2(tmp):
        g.srd(48, 12, 512); g.srd(52, 14, 512)
        E(f"v_lshrrev_b32 v{tmp}, 5, v250"); E(f"v_lshlrev_b32 v{tmp}, 5, v{tmp}")
        E(f"v_bfe_u32 v{tmp+1}, v250, 4, 1"); E(f"v_lshl_add_u32 v{tmp}, v{tmp+1}, 3, v{tmp}")
        E("s_lshl_b32 s71, s69, 6")
        E(f"buffer_load_dwordx2 v[{B1R}:{B1R+1}], v{tmp}, s[48:51], s71 offen")
        E(f"buffer_load_dwordx2 v[{B1R+2}:{B1R+3}], v{tmp}, s[48:51], s71 offen offset:16")
        E(f"buffer_load_dwordx2 v[{W2R}:{W2R+1}], v{tmp}, s[52:55], s71 offen")
        E(f"buffer_load_dwordx2 v[{W2R+2}:{W2R+3}], v{tmp}, s[52:55], s71 offen offset:16")
    def load_nonce():
        E("s_lshl_b32 s70, s64, 2"); E("s_add_u32 s70, s70, 128"); E("s_load_dword s76, s[20:21], s70")
    VCA0, VCA1, VB0, VB1, VIA, VIP0, VIP1, VP16 = 224, 225, 226, 227, 228, 229, 230, 231
    OFF = 232; VP = 220; SUM = 216; WREG = 208; D = 192; F6 = 238; WA = 246; WA6 = 247
    def F(js, b, h): return ((js*6 + b)*2 + h)*4 if b < 6 else F6 + h*4
    if o['prioL']: E(f"s_setprio {o['prioL']}")
    E("v_lshrrev_b32 v251, 3, v250")
    E("v_and_b32 v252, 7, v250")
    E(f"v_lshlrev_b32 v{VP16}, 4, v252")
    E("v_mul_u32_u24 v253, 400, v251")
    E(f"v_add_u32 v253, v253, v{VP16}")
    E("v_lshlrev_b32 v254, 4, v250")
    E("v_lshrrev_b32 v249, 4, v250")
    E("v_lshlrev_b32 v248, 2, v249")
    E("v_and_b32 v247, 15, v250")
    E("v_xor_b32 v247, v247, v248")
    E("v_lshlrev_b32 v247, 4, v247")
    E(f"v_lshl_add_u32 v{VB0}, v249, 9, v247")
    E(f"v_xor_b32 v{VB1}, 32, v{VB0}")
    E("s_lshl_b32 s73, s69, 12")
    E("s_mul_i32 s74, s69, 1536"); E("s_add_u32 s74, s74, 16384")
    E(f"s_add_u32 s75, s73, {BS0}")
    E("s_mul_i32 s72, s65, 819200"); E("s_lshl_b32 s70, s66, 8"); E("s_add_u32 s72, s72, s70")
    E("s_lshl_b32 s70, s69, 13"); E("s_add_u32 s72, s72, s70")
    E("s_lshl_b32 s70, s69, 5"); E("s_add_u32 s70, s70, s68"); E("s_mul_i32 s70, s70, 400")
    E("s_mul_i32 s71, s65, 100"); E("s_add_u32 s70, s70, s71")
    E("s_lshl_b32 s77, s67, 4"); E("s_lshl_b32 s78, s69, 2"); E("s_add_u32 s77, s77, s78")
    E("s_add_u32 s78, s77, s68"); E("s_mul_i32 s78, s78, 400")
    E("s_mul_i32 s79, s69, 1600"); E(f"s_add_u32 s79, s79, {IDXP}")
    E("s_waitcnt lgkmcnt(0)")
    g.srd(24, 4, 1638400)
    for j in range(4):
        E(f"s_add_u32 m0, s73, {IDXA + j*1024}")
        if j: E(f"s_add_u32 s70, s70, 3200")
        else: E("s_nop 0")
        E("buffer_load_dwordx4 v253, s[24:27], s70 offen lds")
    E("s_mov_b32 m0, s79"); E("s_nop 0")
    E("buffer_load_dwordx4 v254, s[24:27], s78 offen lds")
    E("s_mov_b32 exec_hi, 15")
    E("buffer_load_dwordx4 v254, s[24:27], s78 offen offset:1024 lds")
    E("s_mov_b32 exec_hi, -1")
    g.srd(32, 10, 3276800)
    def issueB(t):
        s = t % 3
        for ii in range(4):
            E(f"s_add_u32 m0, s75, {s*16384 + ii*1024}")
            E(f"s_add_u32 s70, s72, {t*32768 + ii*2048}")
            E(f"buffer_load_dwordx4 v{VB0 if ii < 2 else VB1}, s[32:35], s70 offen lds")
    def issueA(t, off):
        s = t % 3
        for j in range(4):
            E(f"s_add_u32 m0, s73, {AP(s) + j*1024}"); E("s_nop 0")
            E(f"buffer_load_dwordx4 v{off+j}, s[28:31], 0 offen lds")
        E(f"s_add_u32 m0, s74, {AP(s)}"); E("s_nop 0")
        E(f"buffer_load_dwordx4 v{off+4}, s[28:31], 0 offen lds")
        E(f"s_add_u32 m0, s74, {AP(s) + 1024}"); E("s_mov_b32 exec_hi, 0")
        E(f"buffer_load_dwordx4 v{off+5}, s[28:31], 0 offen lds")
        E("s_mov_b32 exec_hi, -1")
    def rdidx(t, off):
        for j in range(4): g.ds(f"ds_read_b32 v{off+j}, v{VIA} offset:{j*1024 + 4*t}", 'idx')
        g.ds(f"ds_read_b32 v{off+4}, v{VIP0} offset:{4*t}", 'idx')
        g.ds(f"ds_read_b32 v{off+5}, v{VIP1} offset:{4*t}", 'idx')
    def cvidx(off):
        for j in range(4): E(f"v_lshl_add_u32 v{off+j}, v{off+j}, 7, v{VCA0 + (j&1)}")
        for j in (4, 5): E(f"v_lshl_add_u32 v{off+j}, v{off+j}, 7, v{VP16}")
    issueB(0); issueB(1)
    g.srd(28, 6, 12800000)
    E("v_lshrrev_b32 v248, 1, v251"); E("v_xor_b32 v248, v248, v252")
    E(f"v_lshlrev_b32 v{VCA0}, 4, v248"); E(f"v_xor_b32 v{VCA1}, 64, v{VCA0}")
    E(f"v_lshlrev_b32 v{VIA}, 7, v251"); E(f"s_add_u32 s70, s73, {IDXA}"); E(f"v_add_u32 v{VIA}, s70, v{VIA}")
    E("s_movk_i32 s71, 400")
    for k, dst in ((0, VIP0), (1, VIP1)):
        if k == 0: E("v_mov_b32 v246, v251")
        else: E("v_and_b32 v246, 3, v251"); E("v_add_u32 v246, 8, v246")
        E("v_mul_u32_u24 v245, 11, v246"); E("v_lshrrev_b32 v245, 5, v245")
        E("v_mul_u32_u24 v244, 3, v245"); E("v_sub_u32 v244, v246, v244")
        E("v_add_u32 v244, s65, v244"); E("v_add_u32 v244, 1, v244"); E("v_and_b32 v244, 3, v244")
        E("v_mul_u32_u24 v244, 100, v244")
        E(f"v_mad_u32_u24 v{dst}, v245, s71, v244"); E(f"v_add_u32 v{dst}, s79, v{dst}")
    E("v_bfe_u32 v246, v250, 2, 2")
    E("v_cmp_eq_u32 vcc, s65, v246")
    E("v_subrev_u32 v245, s65, v246"); E("v_add_u32 v245, 3, v245"); E("v_and_b32 v245, 3, v245")
    E("v_lshlrev_b32 v245, 7, v245"); E("v_lshl_add_u32 v245, v249, 4, v245"); E("v_add_u32 v245, s74, v245")
    for js in range(4):
        E(f"s_add_u32 s70, s77, {js}"); E("s_lshr_b32 s71, s70, 1"); E("s_and_b32 s71, s71, 7"); E("s_lshl_b32 s70, s70, 7")
        E("v_xor_b32 v244, s71, v249"); E("v_lshlrev_b32 v244, 4, v244"); E("v_add_u32 v244, s70, v244")
        E(f"v_add_u32 v243, {js*384}, v245")
        E(f"v_cndmask_b32 v{VP+js}, v243, v244, vcc")
    for js in range(4): E(f"v_mov_b32 v{SUM+js}, 0")
    E(f"v_add_u32 v{WA}, {WP}, v254")
    E(f"v_lshlrev_b32 v{WA6}, 2, v250"); E(f"v_add_u32 v{WA6}, {WP6}, v{WA6}")
    E("s_waitcnt vmcnt(8)")
    rdidx(0, 0); rdidx(1, 6); g.wait_ds()
    cvidx(0); issueA(0, 0); cvidx(6); issueA(1, 6)
    rdidx(2, OFF); g.wait_ds(); cvidx(OFF)
    E("s_barrier")
    E("s_waitcnt vmcnt(6)")
    E("s_barrier")
    stamp(1)
    sched = {t: [] for t in range(26)}
    sched[1].append((6, 6))
    for b in range(6):
        tl = [(6, b)] + [(I, b) for I in range(b+1)]
        st = [4*b+5+k for k in range(4)] if b < 5 else [25]
        for n, x in enumerate(tl): sched[st[n*len(st)//len(tl)]].append(x)
    state = dict(pend=None, wsel=0)
    def wread(I, J):
        w = WREG + 4*state['wsel']; state['wsel'] ^= 1
        if I < 6: g.ds(f"ds_read_b128 v[{w}:{w+3}], v{WA} offset:{(J*(J+1)//2 + I)*1024}", ('w', I, J))
        elif J == 6: g.ds(f"ds_read_b128 v[{w}:{w+3}], v{WA} offset:{21*1024}", ('w', I, J))
        else: g.ds(f"ds_read_b32 v{w}, v{WA6} offset:{J*256}", ('w', I, J))
        return w
    def fm(js, p):
        I, J, w = p
        if I < 6:
            for r in range(4): E(f"v_fmac_f32 v{SUM+js}, v{D+4*js+r}, v{w+r}")
            return 4
        if J == 6: E(f"v_fmac_f32 v{SUM+js}, v{D+js}, v{w+js}")
        else: E(f"v_fmac_f32 v{SUM+js}, v{D+4*js+js}, v{w}")
        return 1
    def mm(js, I, J):
        d = D + 4*js
        E(f"v_mfma_f32_16x16x32_bf16 v[{d}:{d+3}], v[{F(js,I,0)}:{F(js,I,0)+3}], v[{F(js,J,0)}:{F(js,J,0)+3}], 0")
        E(f"v_mfma_f32_16x16x32_bf16 v[{d}:{d+3}], v[{F(js,I,1)}:{F(js,I,1)+3}], v[{F(js,J,1)}:{F(js,J,1)+3}], v[{d}:{d+3}]")
    def tiles(tl):
        for (I, J) in tl:
            w = wread(I, J)
            pend = state['pend']
            if pend is not None: g.wait_ds(('w', pend[0], pend[1]))
            if pend is not None and pend[:2] == (6, 6):
                E("s_nop 7")
                for js in range(4): fm(js, pend)
                pend = None
            for js in range(4):
                if pend is not None: fm(js, pend)
                if (I, J) != (6, 6) or js == 0: mm(js, I, J)
            E("s_nop 1")
            state['pend'] = (I, J, w)
    def flush():
        pend = state['pend']
        g.wait_ds(('w', pend[0], pend[1]))
        E("s_nop 3")
        for js in range(4):
            fm(js, pend)
            if js < 3: E("s_nop 1")
        state['pend'] = None
    for t in range(25):
        s = t % 3
        if t + 2 <= 24:
            issueB(t+2); issueA(t+2, OFF)
        if t + 3 <= 24: rdidx(t+3, OFF)
        if t == 23:
            load_b1w2(248); load_nonce()
        if t == 0:
            for js in range(4):
                m = 0x11111111 << js
                E(f"v_xor_b32 v{D+js}, 64, v{VP+js}")
            for js in range(4):
                m = 0x11111111 << js
                E(f"s_mov_b32 exec_lo, {m:#x}"); E(f"s_mov_b32 exec_hi, {m:#x}")
                g.ds(f"ds_read_b128 v[{F6}:{F6+3}], v{VP+js} offset:{AP(s)}", 'pf')
                g.ds(f"ds_read_b128 v[{F6+4}:{F6+7}], v{D+js} offset:{AP(s)}", 'pf')
        else:
            b = (t-1) >> 2; u = (t-1) & 3
            m = 0x11111111 << u
            E(f"s_mov_b32 exec_lo, {m:#x}"); E(f"s_mov_b32 exec_hi, {m:#x}")
            for js in range(4):
                f0 = F(js, b, 0); f1 = F(js, b, 1)
                E(f"v_xor_b32 v{f1}, 64, v{VP+js}")
                g.ds(f"ds_read_b128 v[{f0}:{f0+3}], v{VP+js} offset:{AP(s)}", 'pf')
                g.ds(f"ds_read_b128 v[{f1}:{f1+3}], v{f1} offset:{AP(s)}", 'pf')
        E("s_mov_b64 exec, -1")
        tiles(sched[t])
        g.wait_ds()
        if t < 24:
            if t + 3 <= 24: cvidx(OFF)
            E(f"s_waitcnt vmcnt({10 if t + 2 <= 24 else 4})")
            E("s_barrier")
            if t == 11: stamp(2)
    stamp(3)
    tiles(sched[25]); flush()
    E("s_nop 1")
    for sh in (1, 2, 4, 8):
        for js in range(4): E(f"v_add_f32_dpp v{SUM+js}, v{SUM+js}, v{SUM+js} row_shr:{sh} row_mask:0xf bank_mask:0xf bound_ctrl:1")
    E("v_lshrrev_b32 v248, 4, v250"); E("v_lshlrev_b32 v248, 6, v248")
    E("s_lshl_b32 s70, s69, 4"); E(f"s_add_u32 s70, s70, {RED + 2048}")
    E("v_add_u32 v248, s70, v248")
    E("s_mov_b32 exec_lo, 0x80008000"); E("s_mov_b32 exec_hi, 0x80008000")
    E(f"ds_write_b128 v248, v[{SUM}:{SUM+3}]")
    E("s_mov_b64 exec, -1")
    g.srd(40, 22, WSREC); g.srd(44, 20, 256)
    E("s_waitcnt vmcnt(0) lgkmcnt(0)")
    E(f"s_cmp_lg_u32 s76, 0"); E(f"s_cbranch_scc1 {P}TAIL")
    E(f"s_branch {P}NONCE_L")
    g.q = []
    g.L(f"{P}CSTART")
    if o['prioC']: E(f"s_setprio {o['prioC']}")
    VA = 128; VBR = 132; VX = 134
    def FA(ks, mb): return 64 + ks*16 + mb*4
    def FB(ks, nb): return 64 + ks*16 + 8 + nb*4
    def ACC(mb, nb): return (mb*2 + nb)*16
    E("s_sub_u32 s72, s69, 4")
    E("s_and_b32 s73, s72, 1"); E("s_lshr_b32 s74, s72, 1")
    E("v_lshlrev_b32 v254, 4, v250")
    E("s_mul_i32 s70, s72, 5120")
    E("s_waitcnt lgkmcnt(0)")
    g.srd(36, 8, 20000)
    for i in range(5):
        E(f"s_add_u32 m0, s70, {AP(2) + i*1024}"); E(f"s_add_u32 s71, s70, {i*1024}")
        E("buffer_load_dwordx4 v254, s[36:39], s71 offen lds")
    g.srd(40, 22, WSREC); g.srd(44, 20, 256)
    E("s_or_b32 s71, s67, s72"); E("s_cmp_lg_u32 s71, 0"); E(f"s_cbranch_scc1 {P}NOLEAD")
    E("s_memrealtime s[78:79]"); E("s_lshl_b32 s70, s64, 2"); E("s_waitcnt lgkmcnt(0)")
    E("s_or_b32 s78, s78, 1"); E("v_mov_b32 v1, s78"); E("v_mov_b32 v2, 0")
    E("s_mov_b64 exec, 1")
    E("buffer_store_dword v1, v2, s[44:47], s70 offen offset:128 sc0 sc1")
    E("s_mov_b64 exec, -1")
    g.L(f"{P}NOLEAD")
    load_b1w2(248)
    E("v_and_b32 v140, 31, v250"); E("v_lshrrev_b32 v141, 5, v250"); E("v_bfe_u32 v142, v250, 1, 3")
    E("v_xor_b32 v141, v141, v142"); E("v_lshlrev_b32 v141, 4, v141"); E("v_lshl_add_u32 v141, v140, 7, v141")
    E("s_lshl_b32 s70, s73, 13"); E(f"v_add_u32 v{VA}, s70, v141")
    for ks in range(1, 4): E(f"v_xor_b32 v{VA+ks}, {ks<<5}, v{VA}")
    E("v_lshrrev_b32 v140, 5, v250")
    E("v_bfe_u32 v141, v250, 2, 2")
    E("v_lshl_add_u32 v142, v140, 3, v141"); E("v_lshlrev_b32 v142, 8, v142")
    E("v_bfe_u32 v143, v250, 4, 1"); E("v_lshlrev_b32 v143, 1, v143")
    E("v_bfe_u32 v144, v250, 1, 1"); E("v_or_b32 v143, v143, v144")
    E("s_lshl_b32 s70, s74, 3"); E("v_or_b32 v143, s70, v143")
    E("v_lshlrev_b32 v144, 2, v141"); E("v_xor_b32 v143, v143, v144")
    E("v_lshlrev_b32 v144, 1, v140"); E("v_xor_b32 v143, v143, v144")
    E("v_lshl_add_u32 v142, v143, 4, v142")
    E("v_and_b32 v144, 1, v250"); E("v_lshl_add_u32 v142, v144, 3, v142")
    E(f"v_add_u32 v{VBR}, {BS0}, v142"); E(f"v_xor_b32 v142, 64, v142"); E(f"v_add_u32 v{VBR+1}, {BS0}, v142")
    E("v_bfe_u32 v140, v250, 4, 1"); E("v_lshlrev_b32 v140, 15, v140")
    E("v_and_b32 v141, 15, v250"); E("v_lshl_add_u32 v140, v141, 4, v140")
    E("v_lshrrev_b32 v141, 5, v250"); E(f"v_lshl_add_u32 v{VX}, v141, 8, v140")
    E("v_lshrrev_b32 v140, 4, v250")
    E("v_bfe_u32 v141, v250, 2, 2"); E("v_mul_u32_u24 v141, 25, v141")
    E("v_and_b32 v142, 3, v250"); E("v_add_u32 v142, v141, v142")
    E("v_mul_u32_u24 v143, 5000, v140")
    E("v_lshl_add_u32 v145, v142, 1, v143"); E(f"v_add_u32 v145, {AP(2)}, v145")
    E("v_lshl_add_u32 v147, v141, 1, v143"); E(f"v_add_u32 v147, {AP(2)}, v147")
    E("v_mul_u32_u24 v146, 200, v142"); E("v_mul_u32_u24 v143, 50, v140"); E("v_add_u32 v146, v146, v143")
    E(f"v_add_u32 v146, {AP(2)}, v146")
    E(f"v_add_u32 v148, {WP}, v254")
    E(f"v_lshlrev_b32 v149, 2, v250"); E(f"v_add_u32 v149, {WP6}, v149")
    for r in range(56): E(f"v_mov_b32 v{r}, 0")
    E("s_waitcnt vmcnt(4)")
    E("s_barrier")
    big = [(I, J) for J in range(6) for I in range(J+1)] + [(6, 6)]
    for cw in range(4):
        if cw < 3: E(f"s_cmp_lg_u32 s72, {cw}"); E(f"s_cbranch_scc1 {P}WB{cw+1}")
        mine = [(n, t) for n, t in enumerate(big) if n % 4 == cw]
        small = [J for J in range(6) if cw >= 2 and J % 2 == cw % 2]
        r = 0; plan = []
        for n, (I, J) in mine:
            if I == 6:
                E(f"ds_read_u16_d16_hi v{r}, v147"); plan.append((n, I, J, r)); r += 1; continue
            for k in range(4): E(f"ds_read_u16_d16_hi v{r+k}, v145 offset:{200*(1+4*I+k) + 2*(1+4*J)}")
            if I < J:
                for k in range(4): E(f"ds_read_u16_d16_hi v{r+4+k}, v146 offset:{200*(1+4*J) + 2*(1+4*I+k)}")
            plan.append((n, I, J, r)); r += 8
        sp = []
        for J in small:
            E(f"ds_read_u16_d16_hi v{r}, v145 offset:{2*(1+4*J)}"); E(f"ds_read_u16_d16_hi v{r+1}, v146 offset:{200*(1+4*J)}")
            sp.append((J, r)); r += 2
        assert r <= 56
        E("s_waitcnt lgkmcnt(0)")
        for n, I, J, r in plan:
            if I == 6:
                for k in range(4):
                    m = 0x11111111 << k
                    E(f"s_mov_b32 vcc_lo, {m:#x}"); E(f"s_mov_b32 vcc_hi, {m:#x}")
                    E(f"v_cndmask_b32 v{60+k}, 0, v{r}, vcc")
                E(f"ds_write_b128 v148, v[60:63] offset:{n*1024}")
                continue
            if I < J:
                for k in range(4): E(f"v_add_f32 v{r+k}, v{r+k}, v{r+4+k}")
            E(f"ds_write_b128 v148, v[{r}:{r+3}] offset:{n*1024}")
        for J, r in sp:
            E(f"v_add_f32 v{r}, v{r}, v{r+1}"); E(f"ds_write_b32 v149, v{r} offset:{J*256}")
        if cw < 3: E(f"s_branch {P}WBDONE"); g.L(f"{P}WB{cw+1}")
    g.L(f"{P}WBDONE")
    E("s_waitcnt lgkmcnt(0)")
    E("s_barrier")
    stamp(1)
    def Rl(s, ks):
        l = []
        for mb in range(2): l.append(f"ds_read_b128 v[{FA(ks,mb)}:{FA(ks,mb)+3}], v{VA+ks} offset:{AP(s) + mb*4096}")
        for nb in range(2):
            for hf in range(2): l.append(f"ds_read_b64_tr_b16 v[{FB(ks,nb)+2*hf}:{FB(ks,nb)+2*hf+1}], v{VBR+nb} offset:{s*16384 + ks*4096 + hf*1024}")
        return [l[0], l[2], l[3], l[1], l[4], l[5]]
    def Ml(ks, first=False):
        l = []
        for mb, nb in ((0, 0), (1, 0), (0, 1), (1, 1)):
            a = ACC(mb, nb)
            l.append(f"v_mfma_f32_32x32x16_bf16 v[{a}:{a+15}], v[{FB(ks,nb)}:{FB(ks,nb)+3}], v[{FA(ks,mb)}:{FA(ks,mb)+3}], " + ("0" if first else f"v[{a}:{a+15}]"))
        return l
    def inter(ms, rs, tag):
        per = [rs[0:2], rs[2:4], rs[4:6], []]
        for m, r in zip(ms, per):
            E(m)
            for x in r: g.ds(x, tag)
    for t in range(25):
        s = t % 3
        for x in Rl(s, 0): g.ds(x, 0)
        if t == 0:
            for x in Rl(s, 1): g.ds(x, 1)
        else: inter(Ml(3), Rl(s, 1), 1)
        if t == 22: load_nonce()
        g.wait_ds(0); inter(Ml(0, t == 0), Rl(s, 2), 2)
        g.wait_ds(1); inter(Ml(1), Rl(s, 3), 3)
        g.wait_ds(2)
        for m in Ml(2): E(m)
        g.wait_ds()
        if t < 24: E("s_barrier")
        if t == 11: stamp(2)
    for m in Ml(3): E(m)
    stamp(3)
    E("s_lshl_b32 s77, s64, 18"); E("s_lshl_b32 s70, s73, 17"); E("s_add_u32 s77, s77, s70")
    E("s_lshl_b32 s70, s65, 13"); E("s_add_u32 s77, s77, s70")
    E("s_lshl_b32 s70, s66, 12"); E("s_add_u32 s77, s77, s70")
    E("s_lshl_b32 s70, s74, 11"); E("s_add_u32 s77, s77, s70")
    E("s_add_u32 s78, s77, 65536")
    E("s_nop 3")
    for mb, nb in ((0, 0), (1, 0), (0, 1), (1, 1)):
        a = ACC(mb, nb); p = 64 + (mb*2+nb)*8
        for j in range(2):
            for k in range(4): E(f"v_cvt_pk_bf16_f32 v{p+4*j+k}, v{a+8*j+2*k}, v{a+8*j+2*k+1}")
            E(f"buffer_store_dwordx4 v[{p+4*j}:{p+4*j+3}], v{VX}, s[40:43], s{77+mb} offen offset:{nb*1024 + j*512} sc0 sc1")
    E(f"s_cmp_lg_u32 s76, 0"); E(f"s_cbranch_scc1 {P}CFLAG")
    def nonce_poll(lbl, nxt):
        g.L(lbl)
        E("s_lshl_b32 s70, s64, 2"); E("v_mov_b32 v200, 0"); E(f"s_mov_b32 s71, {SPIN}")
        g.L(lbl + "_l")
        E("buffer_load_dword v201, v200, s[44:47], s70 offen offset:128 sc0 sc1")
        E("s_waitcnt vmcnt(0)")
        E("v_readfirstlane_b32 s76, v201")
        E("s_sub_u32 s71, s71, 1"); E("s_cmp_eq_u32 s71, 0"); E(f"s_cbranch_scc1 {nxt}")
        E("s_cmp_eq_u32 s76, 0"); E(f"s_cbranch_scc1 {lbl}_l")
    nonce_poll(f"{P}NONCE_C", f"{P}CFLAG")
    g.L(f"{P}CFLAG")
    E("s_lshl_b32 s70, s64, 1"); E("s_add_u32 s70, s70, s66"); E("s_lshl_b32 s70, s70, 2"); E("s_add_u32 s70, s70, s72")
    E("s_lshl_b32 s70, s70, 7"); E("s_lshl_b32 s71, s65, 2"); E("s_add_u32 s70, s70, s71"); E(f"s_add_u32 s70, s70, {FLOFF}")
    E("v_mov_b32 v200, 0"); E("v_mov_b32 v201, s76")
    E("s_waitcnt vmcnt(0)")
    E("s_mov_b64 exec, 1")
    E("buffer_store_dword v201, v200, s[40:43], s70 offen sc0 sc1")
    E("s_mov_b64 exec, -1")
    E(f"s_branch {P}TAIL")
    nonce_poll(f"{P}NONCE_L", f"{P}TAIL")
    g.L(f"{P}TAIL")
    stamp(4)
    E("s_lshl_b32 s70, s64, 1"); E("s_lshr_b32 s71, s69, 2"); E("s_add_u32 s70, s70, s71"); E("s_lshl_b32 s70, s70, 2")
    E("s_add_u32 s70, s70, s66"); E("s_and_b32 s71, s69, 2"); E("s_add_u32 s70, s70, s71")
    E("s_lshl_b32 s70, s70, 7"); E(f"s_add_u32 s70, s70, {FLOFF}")
    E("s_lshl_b32 s77, s64, 18"); E("s_lshl_b32 s71, s67, 15"); E("s_add_u32 s77, s77, s71")
    E("s_lshl_b32 s71, s69, 10"); E("s_add_u32 s77, s77, s71")
    E("v_mov_b32 v200, 0"); E("v_lshlrev_b32 v201, 4, v250")
    E(f"s_mov_b32 s71, {SPIN}")
    g.srd(56, 18, 8192)
    E("s_mov_b32 s79, 0xffff0000")
    for k in range(4):
        E(f"v_lshlrev_b32 v{2*k}, 16, v{B1R+k}"); E(f"v_and_b32 v{2*k+1}, s79, v{B1R+k}")
        E(f"v_lshlrev_b32 v{8+2*k}, 16, v{W2R+k}"); E(f"v_and_b32 v{8+2*k+1}, s79, v{W2R+k}")
    g.srd(60, 16, 2)
    E("v_mov_b32 v48, 0")
    E("buffer_load_short_d16_hi v48, v200, s[60:63], 0 offen")
    g.L(f"{P}POLL")
    E("buffer_load_dwordx4 v[204:207], v200, s[40:43], s70 offen sc0 sc1")
    E("s_sub_u32 s71, s71, 1"); E("s_cmp_eq_u32 s71, 0"); E(f"s_cbranch_scc1 {P}POLLED")
    E("s_waitcnt vmcnt(0)")
    for k in range(4): E(f"v_xor_b32 v{204+k}, s76, v{204+k}")
    E("v_or3_b32 v204, v204, v205, v206"); E("v_or_b32 v204, v204, v207")
    E("v_cmp_ne_u32 vcc, 0, v204"); E(f"s_cbranch_vccnz {P}POLL")
    g.L(f"{P}POLLED")
    stamp(5)
    for qq in range(4):
        E(f"s_add_u32 s70, s77, {qq*8192}")
        E(f"buffer_load_dwordx4 v[{16+4*qq}:{19+4*qq}], v201, s[40:43], s70 offen sc0 sc1")
    E("v_mov_b32 v40, 0xbdd2d3e8")
    for qq in range(4):
        E(f"s_waitcnt vmcnt({3-qq})")
        for k in range(4):
            E(f"v_lshlrev_b32 v{32+2*k}, 16, v{16+4*qq+k}"); E(f"v_and_b32 v{33+2*k}, s79, v{16+4*qq+k}")
        for k in range(8): E(f"v_add_f32 v{k}, v{k}, v{32+k}")
    for k in range(8): E(f"v_mul_f32 v{16+k}, v{k}, v{k}")
    for k in range(8): E(f"v_fmaak_f32 v{16+k}, v{16+k}, v40, 0xc0135761")
    for k in range(8): E(f"v_mul_f32 v{16+k}, v{16+k}, v{k}")
    for k in range(8): E(f"v_exp_f32 v{16+k}, v{16+k}")
    for k in range(8): E(f"v_mul_f32 v{k}, v{k}, v{8+k}")
    for k in range(8): E(f"v_add_f32 v{16+k}, 1.0, v{16+k}")
    for k in range(8): E(f"v_rcp_f32 v{16+k}, v{16+k}")
    E("s_lshl_b32 s70, s69, 8"); E(f"s_add_u32 s70, s70, {RED}")
    E("v_lshlrev_b32 v41, 2, v250"); E("v_add_u32 v42, s70, v41")
    E("v_mul_f32 v24, v0, v16"); E("v_mul_f32 v25, v1, v17")
    for k in range(2, 8): E(f"v_fmac_f32 v{24+(k&1)}, v{k}, v{16+k}")
    E("v_add_f32 v24, v24, v25")
    E("ds_write_b32 v42, v24")
    E("s_waitcnt lgkmcnt(0)")
    E("s_barrier")
    if stamps:
        E("s_cmp_eq_u32 s69, 4"); E(f"s_cbranch_scc1 {P}STAMP")
    E("s_cmp_lg_u32 s69, 0"); E(f"s_cbranch_scc1 {P}END")
    E(f"v_add_u32 v41, {RED}, v41")
    for w in range(9): E(f"ds_read_b32 v{w}, v41 offset:{w*256}")
    E("s_lshl_b32 s70, s67, 4"); E("s_add_u32 s70, s70, s68"); E("s_lshl_b32 s70, s70, 1")
    E("v_lshlrev_b32 v43, 1, v250")
    E("s_waitcnt lgkmcnt(0)")
    for k in range(4): E(f"v_add_f32 v{k}, v{k}, v{k+4}")
    E("v_add_f32 v0, v0, v8"); E("v_add_f32 v1, v1, v2"); E("v_add_f32 v0, v0, v3"); E("v_add_f32 v0, v0, v1")
    E("v_mov_b32 v1, v0"); E("s_nop 1"); E("v_permlane32_swap_b32 v0, v1"); E("s_nop 1"); E("v_add_f32 v0, v0, v1")
    E("v_mov_b32 v1, v0"); E("s_nop 1"); E("v_permlane16_swap_b32 v0, v1"); E("s_nop 1"); E("v_add_f32 v0, v0, v1")
    E("v_add_f32 v0, v0, v48")
    E("v_cvt_pk_bf16_f32 v0, v0, v0")
    E("s_mov_b64 exec, 0xffff")
    E("buffer_store_short v0, v43, s[56:59], s70 offen")
    if stamps:
        E("s_mov_b64 exec, -1")
        g.L(f"{P}STAMP")
        E("s_waitcnt vmcnt(0)")
        stamp(6)
        if stamps == 'dbg':
            E("s_cmp_lg_u32 s69, 0"); E(f"s_cbranch_scc1 {P}END")
            E("s_waitcnt lgkmcnt(0)")
            E("s_mov_b64 exec, 1"); E("v_mov_b32 v1, 0")
            E("s_not_b32 s71, s80"); E("v_mov_b32 v2, s71"); E("buffer_atomic_umax v2, v1, s[44:47], 0 offen sc1")
            for k in range(1, 7):
                E(f"v_mov_b32 v{2+k}, s{80+2*k}"); E(f"buffer_atomic_umax v{2+k}, v1, s[44:47], 0 offen offset:{4*k} sc1")
            E(f"v_mov_b32 v10, s80"); E(f"buffer_atomic_umax v10, v1, s[44:47], 0 offen offset:28 sc1")
            E("s_endpgm")
        E("s_mul_i32 s70, s2, 112"); E("s_add_u32 s70, s70, 0x8000000")
        E("s_cmp_eq_u32 s69, 0"); E("s_cselect_b32 s71, 56, 0"); E("s_add_u32 s70, s70, s71")
        E("v_mov_b32 v1, s70")
        E("s_waitcnt lgkmcnt(0)")
        E("s_mov_b64 exec, 1")
        for k in range(7):
            E(f"v_mov_b32 v2, s{80+2*k}"); E(f"v_mov_b32 v3, s{81+2*k}")
            E(f"global_store_dwordx2 v1, v[2:3], s[22:23] offset:{8*k}"); E("s_nop 1")
    g.L(f"{P}END")
    E("s_endpgm")
    return "\n".join(x for x in g.l if x is not None) + "\n" + kd(name, vgpr=256)

def official(opts=None, path='standalone__deep_cross_pnn__recsys.s', stamps=False):
    asm = HDR + f"; @launch grid=(256,1,1) block=(512,1,1) lds={LDS}\n" + '.amdgcn_target "amdgcn-amd-amdhsa--gfx950"\n' + gen(NAME, stamps, opts)
    open(path, 'w').write(asm)

def bench(base, variants):
    hdr = []; ks = []
    for nm, op in variants:
        hdr.append(f"; @launch kernel={nm} grid=(256,1,1) block=(512,1,1) lds={LDS}")
        ks.append(gen(nm, True, op))
    asm = "\n".join(hdr) + '\n.amdgcn_target "amdgcn-amd-amdhsa--gfx950"\n' + "\n".join(ks)
    build(asm, base, variants[0][0])
    open(base + ".sh", "w").write("export NST=14\n" + "".join(f"timeout 60 ./run {os.path.basename(base)}.co 1 9 256 {nm}:256:512:{LDS}\n" for nm, _ in variants))

if __name__ == "__main__":
    official()
    official(path='v_dbg.s', stamps='dbg')
    bench('g2', [("g2base_kernel", {})])
```

```python
import sys, os
sys.path.insert(0, 'bench')
from asmlib import kd, build
NAME = "standalone__deep_cross_pnn__recsys_kernel"
HDR = open('standalone__deep_cross_pnn__recsys.s.ref').read().split('; Override')[0]

APS = 22528
def AP(s): return s*APS
BS0 = 3*APS
IDXA = BS0 + 3*16384
IDXP = IDXA + 16384
WP = IDXP + 6400
WP6 = WP + 22*1024
LDSEND = WP6 + 6*256
LDS = 163840
assert LDSEND <= LDS
RED = IDXA
FLOFF = 8 << 20
WSREC = 16 << 20
SPIN = 200000

class G:
    def __init__(s): s.l = []; s.q = []
    def E(s, x): s.l.append("    " + x)
    def L(s, x): s.l.append(x + ":")
    def ds(s, x, tag=None): s.E(x); s.q.append(tag)
    def wait_ds(s, tag=None):
        if tag is None: n = 0
        else:
            c = [i for i, t in enumerate(s.q) if t == tag]
            if not c: return
            n = len(s.q) - 1 - max(c)
        s.E(f"s_waitcnt lgkmcnt({min(n,15)})")
        n = min(n, 15)
        s.q = s.q[len(s.q)-n:] if n else []
    def srd(s, d, p, n):
        s.E(f"s_mov_b32 s{d}, s{p}"); s.E(f"s_mov_b32 s{d+1}, s{p+1}"); s.E(f"s_mov_b32 s{d+2}, {n}"); s.E(f"s_mov_b32 s{d+3}, 0x20000")

def gen(name=NAME, stamps=False, opts=None):
    o = dict(prioL=0, prioC=2, il=0, lead=2, dord=0, nopnn=0, nocr=0, nocm=0, nofr=0, chk=22, rot=2, rsel=0, lfl=' sc1', pfl=' sc1')
    if opts: o.update(opts)
    g = G(); E = g.E
    P = "L" + name.replace("_kernel", "")[-10:] + "_"
    role = dict(L=True)
    def stamp(k):
        if stamps and o.get('clk') and role['L'] and k in (1, 2, 3): E(f"s_memtime s[{80+2*k}:{81+2*k}]")
        elif stamps: E(f"s_memrealtime s[{80+2*k}:{81+2*k}]")
    g.l.append(f".text\n.globl {name}\n.p2align 8\n.type {name},@function\n{name}:")
    stamp(0)
    E("s_cmp_ge_u32 s2, 256"); E(f"s_cbranch_scc1 {P}END")
    E("s_load_dwordx16 s[4:19], s[0:1], 0"); E("s_load_dwordx4 s[20:23], s[0:1], 64")
    E("v_lshrrev_b32 v1, 6, v0")
    E("s_and_b32 s64, s2, 7"); E("s_lshl_b32 s64, s64, 2")
    E("v_readfirstlane_b32 s69, v1")
    E("s_lshr_b32 s70, s2, 6"); E("s_add_u32 s64, s64, s70")
    E("s_lshr_b32 s67, s2, 3"); E("s_and_b32 s67, s67, 7")
    E("s_and_b32 s65, s67, 3"); E("s_lshr_b32 s66, s67, 2")
    E("s_lshl_b32 s68, s64, 7")
    RB = o['rot']
    def dl(t): return 0 if (t == 0 or not RB) else (1 if ((t-1) & RB) == 0 else -1)
    if RB:
        E(f"s_lshr_b32 s94, s2, {6 + o['rsel']}"); E("s_xor_b32 s94, s94, s66"); E("s_and_b32 s94, s94, 1")
    E("v_and_b32 v250, 63, v0")
    E("s_cmp_ge_u32 s69, 4"); E(f"s_cbranch_scc1 {P}CSTART")
    B1R, W2R = 224, 228
    def load_b1w2(tmp):
        g.srd(48, 12, 512); g.srd(52, 14, 512)
        E(f"v_lshrrev_b32 v{tmp}, 4, v250"); E(f"v_lshlrev_b32 v{tmp}, 3, v{tmp}")
        E("s_lshl_b32 s71, s69, 6")
        E(f"buffer_load_dwordx2 v[{B1R}:{B1R+1}], v{tmp}, s[48:51], s71 offen")
        E(f"buffer_load_dwordx2 v[{B1R+2}:{B1R+3}], v{tmp}, s[48:51], s71 offen offset:32")
        E(f"buffer_load_dwordx2 v[{W2R}:{W2R+1}], v{tmp}, s[52:55], s71 offen")
        E(f"buffer_load_dwordx2 v[{W2R+2}:{W2R+3}], v{tmp}, s[52:55], s71 offen offset:32")
    VCA0, VCA1, VB0, VB1, VIA, VIP0, VIP1, VP16 = 224, 225, 226, 227, 228, 229, 230, 231
    OFF = 232; VP = 220; SUM = 216; WREG = 208; D = 192; F6 = 238; WA = 246; WA6 = 247
    def F(js, b, h): return ((js*6 + b)*2 + h)*4 if b < 6 else F6 + h*4
    if o['prioL']: E(f"s_setprio {o['prioL']}")
    E("v_lshrrev_b32 v251, 3, v250")
    E("v_and_b32 v252, 7, v250")
    E(f"v_lshlrev_b32 v{VP16}, 4, v252")
    E("v_mul_u32_u24 v253, 400, v251")
    E(f"v_add_u32 v253, v253, v{VP16}")
    E("v_lshlrev_b32 v254, 4, v250")
    E("v_lshrrev_b32 v249, 4, v250")
    E("v_lshlrev_b32 v248, 2, v249")
    E("v_and_b32 v247, 15, v250")
    E("v_xor_b32 v247, v247, v248")
    E("v_lshlrev_b32 v247, 4, v247")
    E(f"v_lshl_add_u32 v{VB0}, v249, 9, v247")
    E(f"v_xor_b32 v{VB1}, 32, v{VB0}")
    E("s_lshl_b32 s73, s69, 12")
    E("s_mul_i32 s74, s69, 1536"); E("s_add_u32 s74, s74, 16384")
    E(f"s_add_u32 s75, s73, {BS0}")
    E("s_mul_i32 s72, s65, 819200"); E("s_lshl_b32 s70, s66, 8"); E("s_add_u32 s72, s72, s70")
    E("s_lshl_b32 s70, s69, 13"); E("s_add_u32 s72, s72, s70")
    if RB:
        E(f"s_mul_i32 s70, s94, {RB*32768}"); E("s_add_u32 s95, s72, s70"); E("s_sub_u32 s96, s72, s70")
        E(f"s_mul_i32 s97, s94, {RB*4}"); E(f"s_mul_i32 s98, s94, {RB*8}")
    def SB(t): return {0: 72, 1: 95, -1: 96}[dl(t)]
    ist = dict(d=0)
    def idxadj(t):
        d = dl(t) - ist['d']; ist['d'] = dl(t)
        if d == 0: return
        sr = 97 if abs(d) == 1 else 98
        for v in (VIA, VIP0, VIP1):
            if d > 0: E(f"v_add_u32 v{v}, s{sr}, v{v}")
            else: E(f"v_subrev_u32 v{v}, s{sr}, v{v}")
    E("s_lshl_b32 s70, s69, 5"); E("s_add_u32 s70, s70, s68"); E("s_mul_i32 s70, s70, 400")
    E("s_mul_i32 s71, s65, 100"); E("s_add_u32 s70, s70, s71")
    E("s_lshl_b32 s77, s67, 4"); E("s_lshl_b32 s78, s69, 2"); E("s_add_u32 s77, s77, s78")
    E("s_add_u32 s78, s77, s68"); E("s_mul_i32 s78, s78, 400")
    E("s_mul_i32 s79, s69, 1600"); E(f"s_add_u32 s79, s79, {IDXP}")
    E("s_waitcnt lgkmcnt(0)")
    g.srd(24, 4, 1638400)
    for j in range(4):
        E(f"s_add_u32 m0, s73, {IDXA + j*1024}")
        if j: E(f"s_add_u32 s70, s70, 3200")
        else: E("s_nop 0")
        E("buffer_load_dwordx4 v253, s[24:27], s70 offen lds")
    E("s_mov_b32 m0, s79"); E("s_nop 0")
    E("buffer_load_dwordx4 v254, s[24:27], s78 offen lds")
    E("s_mov_b32 exec_hi, 15")
    E("buffer_load_dwordx4 v254, s[24:27], s78 offen offset:1024 lds")
    E("s_mov_b32 exec_hi, -1")
    g.srd(32, 10, 3276800)
    def issueB(t):
        s = t % 3
        for ii in range(4):
            E(f"s_add_u32 m0, s75, {s*16384 + ii*1024}")
            E(f"s_add_u32 s70, s{SB(t)}, {t*32768 + ii*2048}")
            E(f"buffer_load_dwordx4 v{VB0 if ii < 2 else VB1}, s[32:35], s70 offen lds")
    def issueA(t, off):
        s = t % 3
        for j in range(4):
            E(f"s_add_u32 m0, s73, {AP(s) + j*1024}"); E("s_nop 0")
            E(f"buffer_load_dwordx4 v{off+j}, s[28:31], 0 offen lds")
        E(f"s_add_u32 m0, s74, {AP(s)}"); E("s_nop 0")
        E(f"buffer_load_dwordx4 v{off+4}, s[28:31], 0 offen lds")
        E(f"s_add_u32 m0, s74, {AP(s) + 1024}"); E("s_mov_b32 exec_hi, 0")
        E(f"buffer_load_dwordx4 v{off+5}, s[28:31], 0 offen lds")
        E("s_mov_b32 exec_hi, -1")
    def rdidx(t, off):
        idxadj(t)
        for j in range(4): g.ds(f"ds_read_b32 v{off+j}, v{VIA} offset:{j*1024 + 4*t}", 'idx')
        g.ds(f"ds_read_b32 v{off+4}, v{VIP0} offset:{4*t}", 'idx')
        g.ds(f"ds_read_b32 v{off+5}, v{VIP1} offset:{4*t}", 'idx')
    def cvidx(off):
        for j in range(4): E(f"v_lshl_add_u32 v{off+j}, v{off+j}, 7, v{VCA0 + (j&1)}")
        for j in (4, 5): E(f"v_lshl_add_u32 v{off+j}, v{off+j}, 7, v{VP16}")
    issueB(0); issueB(1)
    g.srd(28, 6, 12800000)
    E("v_lshrrev_b32 v248, 1, v251"); E("v_xor_b32 v248, v248, v252")
    E(f"v_lshlrev_b32 v{VCA0}, 4, v248"); E(f"v_xor_b32 v{VCA1}, 64, v{VCA0}")
    E(f"v_lshlrev_b32 v{VIA}, 7, v251"); E(f"s_add_u32 s70, s73, {IDXA}"); E(f"v_add_u32 v{VIA}, s70, v{VIA}")
    E("s_movk_i32 s71, 400")
    for k, dst in ((0, VIP0), (1, VIP1)):
        if k == 0: E("v_mov_b32 v246, v251")
        else: E("v_and_b32 v246, 3, v251"); E("v_add_u32 v246, 8, v246")
        E("v_mul_u32_u24 v245, 11, v246"); E("v_lshrrev_b32 v245, 5, v245")
        E("v_mul_u32_u24 v244, 3, v245"); E("v_sub_u32 v244, v246, v244")
        E("v_add_u32 v244, s65, v244"); E("v_add_u32 v244, 1, v244"); E("v_and_b32 v244, 3, v244")
        E("v_mul_u32_u24 v244, 100, v244")
        E(f"v_mad_u32_u24 v{dst}, v245, s71, v244"); E(f"v_add_u32 v{dst}, s79, v{dst}")
    E("v_bfe_u32 v246, v250, 2, 2")
    E("v_cmp_eq_u32 vcc, s65, v246")
    E("v_subrev_u32 v245, s65, v246"); E("v_add_u32 v245, 3, v245"); E("v_and_b32 v245, 3, v245")
    E("v_lshlrev_b32 v245, 7, v245"); E("v_lshl_add_u32 v245, v249, 4, v245"); E("v_add_u32 v245, s74, v245")
    for js in range(4):
        E(f"s_add_u32 s70, s77, {js}"); E("s_lshr_b32 s71, s70, 1"); E("s_and_b32 s71, s71, 7"); E("s_lshl_b32 s70, s70, 7")
        E("v_xor_b32 v244, s71, v249"); E("v_lshlrev_b32 v244, 4, v244"); E("v_add_u32 v244, s70, v244")
        E(f"v_add_u32 v243, {js*384}, v245")
        E(f"v_cndmask_b32 v{VP+js}, v243, v244, vcc")
    for js in range(4): E(f"v_mov_b32 v{SUM+js}, 0")
    E(f"v_add_u32 v{WA}, {WP}, v254")
    E(f"v_lshlrev_b32 v{WA6}, 2, v250"); E(f"v_add_u32 v{WA6}, {WP6}, v{WA6}")
    E("s_waitcnt vmcnt(8)")
    rdidx(0, 0); rdidx(1, 6); g.wait_ds()
    cvidx(0); issueA(0, 0); cvidx(6); issueA(1, 6)
    rdidx(2, OFF); g.wait_ds(); cvidx(OFF)
    E("s_barrier")
    E("s_waitcnt vmcnt(6)")
    E("s_barrier")
    stamp(1)
    sched = {t: [] for t in range(26)}
    sched[1].append((6, 6))
    for b in range(6):
        tl = [(6, b)] + [(I, b) for I in range(b+1)]
        st = [4*b+5+k for k in range(4)] if b < 5 else [25]
        for n, x in enumerate(tl): sched[st[n*len(st)//len(tl)]].append(x)
    state = dict(pend=None, wsel=0)
    def wread(I, J):
        w = WREG + 4*state['wsel']; state['wsel'] ^= 1
        if I < 6: g.ds(f"ds_read_b128 v[{w}:{w+3}], v{WA} offset:{(J*(J+1)//2 + I)*1024}", ('w', I, J))
        elif J == 6: g.ds(f"ds_read_b128 v[{w}:{w+3}], v{WA} offset:{21*1024}", ('w', I, J))
        else: g.ds(f"ds_read_b32 v{w}, v{WA6} offset:{J*256}", ('w', I, J))
        return w
    def fm(js, p):
        I, J, w = p
        if I < 6:
            for r in range(4): E(f"v_fmac_f32 v{SUM+js}, v{D+4*js+r}, v{w+r}")
            return 4
        if J == 6: E(f"v_fmac_f32 v{SUM+js}, v{D+js}, v{w+js}")
        else: E(f"v_fmac_f32 v{SUM+js}, v{D+4*js+js}, v{w}")
        return 1
    def mm(js, I, J):
        d = D + 4*js
        E(f"v_mfma_f32_16x16x32_bf16 v[{d}:{d+3}], v[{F(js,I,0)}:{F(js,I,0)+3}], v[{F(js,J,0)}:{F(js,J,0)+3}], 0")
        E(f"v_mfma_f32_16x16x32_bf16 v[{d}:{d+3}], v[{F(js,I,1)}:{F(js,I,1)+3}], v[{F(js,J,1)}:{F(js,J,1)+3}], v[{d}:{d+3}]")
    def tiles(tl):
        for (I, J) in tl:
            w = wread(I, J)
            pend = state['pend']
            if pend is not None: g.wait_ds(('w', pend[0], pend[1]))
            if pend is not None and pend[:2] == (6, 6):
                E("s_nop 7")
                for js in range(4): fm(js, pend)
                pend = None
            for js in range(4):
                if pend is not None: fm(js, pend)
                if (I, J) != (6, 6) or js == 0: mm(js, I, J)
            E("s_nop 1")
            state['pend'] = (I, J, w)
    def flush():
        pend = state['pend']
        g.wait_ds(('w', pend[0], pend[1]))
        E("s_nop 3")
        for js in range(4):
            fm(js, pend)
            if js < 3: E("s_nop 1")
        state['pend'] = None
    OFFS = [[232, 233, 234, 235, 236, 237], [248, 249, 251, 252, 253, 255]]
    def dma_items(t, off):
        s = t % 3; it = []
        def mkB(ii):
            def f():
                E(f"s_add_u32 m0, s75, {s*16384 + ii*1024}")
                E(f"s_add_u32 s70, s{SB(t)}, {t*32768 + ii*2048}")
                E(f"buffer_load_dwordx4 v{VB0 if ii < 2 else VB1}, s[32:35], s70 offen lds")
            return f
        def mkA(j):
            def f():
                if j < 4: E(f"s_add_u32 m0, s73, {AP(s) + j*1024}"); E("s_nop 0")
                elif j == 4: E(f"s_add_u32 m0, s74, {AP(s)}"); E("s_nop 0")
                else: E(f"s_add_u32 m0, s74, {AP(s) + 1024}"); E("s_mov_b32 exec_hi, 0")
                E(f"buffer_load_dwordx4 v{off[j]}, s[28:31], 0 offen lds")
                if j == 5: E("s_mov_b32 exec_hi, -1")
            return f
        Bs = [mkB(i) for i in range(4)]; As = [mkA(j) for j in range(6)]
        if o['dord'] == 0: return Bs + As
        if o['dord'] == 1: return As + Bs
        return [As[0], Bs[0], As[1], Bs[1], As[2], Bs[2], As[3], Bs[3], As[4], As[5]]
    def rdidx2(t, off):
        idxadj(t)
        for j in range(4): g.ds(f"ds_read_b32 v{off[j]}, v{VIA} offset:{j*1024 + 4*t}", 'idx')
        g.ds(f"ds_read_b32 v{off[4]}, v{VIP0} offset:{4*t}", 'idx')
        g.ds(f"ds_read_b32 v{off[5]}, v{VIP1} offset:{4*t}", 'idx')
    def cvidx2(off):
        for j in range(4): E(f"v_lshl_add_u32 v{off[j]}, v{off[j]}, 7, v{VCA0 + (j&1)}")
        for j in (4, 5): E(f"v_lshl_add_u32 v{off[j]}, v{off[j]}, 7, v{VP16}")
    def tile_items(tl):
        it = []
        for (I, J) in tl:
            loc = {}
            def head(I=I, J=J, loc=loc):
                loc['w'] = wread(I, J)
                pend = state['pend']
                if pend is not None: g.wait_ds(('w', pend[0], pend[1]))
                if pend is not None and pend[:2] == (6, 6):
                    E("s_nop 7")
                    for js in range(4): fm(js, pend)
                    pend = None
                loc['pend'] = pend
            def part(js, I=I, J=J, loc=loc, head=head):
                if js == 0: head()
                if loc['pend'] is not None: fm(js, loc['pend'])
                if (I, J) != (6, 6) or js == 0: mm(js, I, J)
                if js == 3:
                    E("s_nop 1"); state['pend'] = (I, J, loc['w'])
            for js in range(4): it.append(lambda js=js, part=part: part(js))
        return it
    for t in range(25):
        s = t % 3
        dm = dma_items(t+2, OFFS[t & 1]) if t + 2 <= 24 else []
        wk = []
        def frag(half, t=t, s=s):
            if t == 0:
                for js in (2*half, 2*half+1): E(f"v_xor_b32 v{D+js}, 64, v{VP+js}")
                for js in (2*half, 2*half+1):
                    m = 0x11111111 << js
                    E(f"s_mov_b32 exec_lo, {m:#x}"); E(f"s_mov_b32 exec_hi, {m:#x}")
                    g.ds(f"ds_read_b128 v[{F6}:{F6+3}], v{VP+js} offset:{AP(s)}", 'pf')
                    g.ds(f"ds_read_b128 v[{F6+4}:{F6+7}], v{D+js} offset:{AP(s)}", 'pf')
            else:
                b = (t-1) >> 2; u = (t-1) & 3
                m = 0x11111111 << u
                E(f"s_mov_b32 exec_lo, {m:#x}"); E(f"s_mov_b32 exec_hi, {m:#x}")
                for js in (2*half, 2*half+1):
                    f0 = F(js, b, 0); f1 = F(js, b, 1)
                    E(f"v_xor_b32 v{f1}, 64, v{VP+js}")
                    g.ds(f"ds_read_b128 v[{f0}:{f0+3}], v{VP+js} offset:{AP(s)}", 'pf')
                    g.ds(f"ds_read_b128 v[{f1}:{f1+3}], v{f1} offset:{AP(s)}", 'pf')
            E("s_mov_b64 exec, -1")
        if t + 3 <= 24: wk.append(lambda t=t: rdidx2(t+3, OFFS[(t+1) & 1]))
        if not o['nofr']: wk.append(lambda: frag(0)); wk.append(lambda: frag(1))
        if not o['nopnn']: wk += tile_items(sched[t])
        if t + 3 <= 24:
            def cvl(t=t): g.wait_ds('idx'); cvidx2(OFFS[(t+1) & 1])
            wk.append(cvl)
        if t == 23:
            load_b1w2(232)
            g.srd(44, 20, 256); E("s_lshl_b32 s71, s64, 2")
            E("buffer_load_dword v234, off, s[44:47], s71 sc0 sc1")
        if not o['il']:
            for f in dm + wk: f()
        else:
            lead = o['lead']; nd = len(dm); nw = len(wk)
            seq = dm[:lead]; rest = dm[lead:]
            k = 0
            for i, w in enumerate(wk):
                seq.append(w)
                tgt = ((i+1) * len(rest)) // nw if o['il'] == 1 else min(len(rest), (i+1)*o['il'] - (i+1))
                while k < tgt: seq.append(rest[k]); k += 1
            seq += rest[k:]
            for f in seq: f()
        g.wait_ds()
        if t < 24:
            E(f"s_waitcnt vmcnt({10 if t + 2 <= 24 else 5})")
            E("s_barrier")
            if t == 11: stamp(2)
    stamp(3)
    if not o['nopnn']: tiles(sched[25]); flush()
    E("s_nop 1")
    for sh in (1, 2, 4, 8):
        for js in range(4): E(f"v_add_f32_dpp v{SUM+js}, v{SUM+js}, v{SUM+js} row_shr:{sh} row_mask:0xf bank_mask:0xf bound_ctrl:1")
    E("v_lshrrev_b32 v248, 4, v250"); E("v_lshlrev_b32 v248, 6, v248")
    E("s_lshl_b32 s70, s69, 4"); E(f"s_add_u32 s70, s70, {RED + 2048}")
    E("v_add_u32 v248, s70, v248")
    E("s_mov_b32 exec_lo, 0x80008000"); E("s_mov_b32 exec_hi, 0x80008000")
    E(f"ds_write_b128 v248, v[{SUM}:{SUM+3}]")
    E("s_mov_b64 exec, -1")
    g.srd(40, 22, WSREC); g.srd(44, 20, 256)
    E("s_waitcnt vmcnt(0) lgkmcnt(0)")
    def nonce_wait(lbl, vr):
        E(f"v_readfirstlane_b32 s78, v{vr}")
        E("s_cmp_lg_u32 s78, 0"); E(f"s_cbranch_scc1 {lbl}_x")
        E(f"s_mov_b32 s71, {SPIN}"); E("s_lshl_b32 s79, s64, 2")
        g.L(lbl)
        E(f"buffer_load_dword v{vr}, off, s[44:47], s79 sc0 sc1")
        E("s_waitcnt vmcnt(0)")
        E(f"v_readfirstlane_b32 s78, v{vr}")
        E("s_sub_u32 s71, s71, 1"); E("s_cmp_eq_u32 s71, 0"); E(f"s_cbranch_scc1 {lbl}_x")
        E("s_cmp_eq_u32 s78, 0"); E(f"s_cbranch_scc1 {lbl}")
        g.L(lbl + "_x")
    nonce_wait(f"{P}NWL", 234)
    E(f"s_branch {P}TAIL")
    g.q = []; role['L'] = False
    g.L(f"{P}CSTART")
    if o['prioC']: E(f"s_setprio {o['prioC']}")
    VA = 128; VBR = 130; VX = 134; CLR = 136; RDY = 150
    def FA(ks, st): return 64 + ks*32 + st*4
    def FB(ks, nt): return 64 + ks*32 + 16 + nt*4
    def ACC(nt, st): return (st*4 + nt)*4
    E("s_sub_u32 s72, s69, 4")
    E("s_and_b32 s73, s72, 1"); E("s_lshr_b32 s74, s72, 1")
    E("v_lshlrev_b32 v254, 4, v250")
    E("s_mul_i32 s70, s72, 5120")
    E("s_memrealtime s[96:97]")
    E("s_waitcnt lgkmcnt(0)")
    g.srd(36, 8, 20000)
    for i in range(5):
        E(f"s_add_u32 m0, s70, {AP(2) + i*1024}"); E(f"s_add_u32 s71, s70, {i*1024}")
        E("buffer_load_dwordx4 v254, s[36:39], s71 offen lds")
    g.srd(40, 22, WSREC); g.srd(44, 20, 256)
    load_b1w2(248)
    E("v_and_b32 v140, 15, v250"); E("v_lshrrev_b32 v141, 4, v250"); E("v_bfe_u32 v142, v250, 1, 3")
    E("v_xor_b32 v142, v141, v142"); E("v_lshlrev_b32 v142, 4, v142"); E("v_lshl_add_u32 v142, v140, 7, v142")
    E("s_lshl_b32 s70, s73, 13"); E(f"v_add_u32 v{VA}, s70, v142"); E(f"v_xor_b32 v{VA+1}, 64, v{VA}")
    E("v_bfe_u32 v142, v250, 2, 2")
    E("v_lshl_add_u32 v143, v141, 3, v142"); E("v_lshlrev_b32 v143, 8, v143")
    E("v_bfe_u32 v144, v250, 1, 1"); E("s_lshl_b32 s70, s74, 3"); E("v_or_b32 v144, s70, v144")
    E("v_lshlrev_b32 v142, 2, v142"); E("v_xor_b32 v144, v144, v142")
    E("v_and_b32 v142, 1, v141"); E("v_lshlrev_b32 v142, 1, v142"); E("v_xor_b32 v144, v144, v142")
    E("v_lshl_add_u32 v143, v144, 4, v143")
    E("v_and_b32 v144, 1, v250"); E("v_lshl_add_u32 v143, v144, 3, v143")
    for nt in range(4):
        E(f"v_xor_b32 v142, {nt*32}, v143"); E(f"v_add_u32 v{VBR+nt}, {BS0}, v142")
    E(f"v_lshlrev_b32 v{VX}, 4, v250")
    E("v_lshrrev_b32 v140, 4, v250")
    E("v_bfe_u32 v141, v250, 2, 2"); E("v_mul_u32_u24 v141, 25, v141")
    E("v_and_b32 v142, 3, v250")
    if RB in (1, 2): E(f"s_mul_i32 s70, s94, {RB}"); E("v_xor_b32 v142, s70, v142")
    E("v_add_u32 v142, v141, v142")
    E("v_mul_u32_u24 v143, 5000, v140")
    E("v_lshl_add_u32 v145, v142, 1, v143"); E(f"v_add_u32 v145, {AP(2)}, v145")
    E("v_lshl_add_u32 v147, v141, 1, v143"); E(f"v_add_u32 v147, {AP(2)}, v147")
    E("v_mul_u32_u24 v146, 200, v142"); E("v_mul_u32_u24 v143, 50, v140"); E("v_add_u32 v146, v146, v143")
    E(f"v_add_u32 v146, {AP(2)}, v146")
    E(f"v_add_u32 v148, {WP}, v254")
    E(f"v_lshlrev_b32 v149, 2, v250"); E(f"v_add_u32 v149, {WP6}, v149")
    wb_ = {}
    def WBASE(which, delta):
        if delta == 0: return which
        return wb_[(which, delta)]
    if RB:
        keys = set()
        for tr in range(0, 25):
            for J in range(6):
                dc = dl(1+4*J) if RB == 4 else 0
                keys.add((145, RB*(200*dl(tr) + 2*dc))); keys.add((146, RB*(2*dl(tr) + 200*dc)))
        nx = 64
        for k in sorted(keys):
            if k[1] == 0: continue
            E(f"s_mul_i32 s70, s94, {k[1]}"); E(f"v_add_u32 v{nx}, s70, v{k[0]}"); wb_[k] = nx; nx += 1
    def B1(tr, J): return WBASE(145, RB*(200*dl(tr) + 2*(dl(1+4*J) if RB == 4 else 0)))
    def B2(tr, J): return WBASE(146, RB*(2*dl(tr) + 200*(dl(1+4*J) if RB == 4 else 0)))
    for r in range(56): E(f"v_mov_b32 v{r}, 0")
    E("s_waitcnt vmcnt(4)")
    E("s_barrier")
    big = [(I, J) for J in range(6) for I in range(J+1)] + [(6, 6)]
    for cw in range(4):
        if cw < 3: E(f"s_cmp_lg_u32 s72, {cw}"); E(f"s_cbranch_scc1 {P}WB{cw+1}")
        mine = [(n, t) for n, t in enumerate(big) if n % 4 == cw]
        small = [J for J in range(6) if cw >= 2 and J % 2 == cw % 2]
        r = 0; plan = []
        for n, (I, J) in mine:
            if I == 6:
                E(f"ds_read_u16_d16_hi v{r}, v147"); plan.append((n, I, J, r)); r += 1; continue
            for k in range(4): E(f"ds_read_u16_d16_hi v{r+k}, v{B1(1+4*I+k, J)} offset:{200*(1+4*I+k) + 2*(1+4*J)}")
            if I < J:
                for k in range(4): E(f"ds_read_u16_d16_hi v{r+4+k}, v{B2(1+4*I+k, J)} offset:{200*(1+4*J) + 2*(1+4*I+k)}")
            plan.append((n, I, J, r)); r += 8
        sp = []
        for J in small:
            E(f"ds_read_u16_d16_hi v{r}, v{B1(0, J)} offset:{2*(1+4*J)}"); E(f"ds_read_u16_d16_hi v{r+1}, v{B2(0, J)} offset:{200*(1+4*J)}")
            sp.append((J, r)); r += 2
        assert r <= 56
        E("s_waitcnt lgkmcnt(0)")
        for n, I, J, r in plan:
            if I == 6:
                for k in range(4):
                    m = 0x11111111 << k
                    E(f"s_mov_b32 vcc_lo, {m:#x}"); E(f"s_mov_b32 vcc_hi, {m:#x}")
                    E(f"v_cndmask_b32 v{60+k}, 0, v{r}, vcc")
                E(f"ds_write_b128 v148, v[60:63] offset:{n*1024}")
                continue
            if I < J:
                for k in range(4): E(f"v_add_f32 v{r+k}, v{r+k}, v{r+4+k}")
            E(f"ds_write_b128 v148, v[{r}:{r+3}] offset:{n*1024}")
        for J, r in sp:
            E(f"v_add_f32 v{r}, v{r}, v{r+1}"); E(f"ds_write_b32 v149, v{r} offset:{J*256}")
        if cw < 3: E(f"s_branch {P}WBDONE"); g.L(f"{P}WB{cw+1}")
    g.L(f"{P}WBDONE")
    E("s_waitcnt lgkmcnt(0)")
    E("s_barrier")
    stamp(1)
    def Rl(s, ks):
        la = [f"ds_read_b128 v[{FA(ks,st)}:{FA(ks,st)+3}], v{VA+ks} offset:{AP(s) + st*2048}" for st in range(4)]
        lb = [[f"ds_read_b64_tr_b16 v[{FB(ks,nt)+2*hf}:{FB(ks,nt)+2*hf+1}], v{VBR+nt} offset:{s*16384 + ks*8192 + hf*1024}" for hf in range(2)] for nt in range(4)]
        if o['nocr'] == 1: return []
        return [la[0]] + lb[0] + [la[1]] + lb[1] + [la[2]] + lb[2] + [la[3]] + lb[3]
    MORD = [(0,0),(0,1),(1,0),(1,1),(0,2),(1,2),(2,0),(2,1),(2,2),(0,3),(1,3),(2,3),(3,0),(3,1),(3,2),(3,3)]
    def Ml(ks, first=False):
        l = []
        for nt, st in MORD:
            a = ACC(nt, st)
            l.append(f"v_mfma_f32_16x16x32_bf16 v[{a}:{a+3}], v[{FB(ks,nt)}:{FB(ks,nt)+3}], v[{FA(ks,st)}:{FA(ks,st)+3}], " + ("0" if first else f"v[{a}:{a+3}]"))
        if o['nocm']: return ["s_nop 0"]*16
        return l
    def inter(ms, rs, tag):
        for i, m in enumerate(ms):
            E(m)
            if i < len(rs): g.ds(rs[i], tag)
    for t in range(25):
        s = t % 3
        if t == 0:
            for x in Rl(s, 0): g.ds(x, 0)
        else: inter(Ml(1), Rl(s, 0), 0)
        if t == 1:
            E("s_or_b32 s70, s72, s67"); E("s_cmp_lg_u32 s70, 0"); E(f"s_cbranch_scc1 {P}NOLEAD")
            E("s_lshl_b32 s70, s64, 2")
            E("s_or_b32 s96, s96, 1"); E(f"v_mov_b32 v{RDY}, s96")
            E("s_mov_b64 exec, 1")
            E(f"buffer_store_dword v{RDY}, off, s[44:47], s70 sc0 sc1")
            E("s_mov_b64 exec, -1")
            g.L(f"{P}NOLEAD")
        if t == o['chk']:
            E("s_lshl_b32 s79, s64, 2")
            E(f"buffer_load_dword v{RDY+2}, off, s[44:47], s79 sc0 sc1")
        g.wait_ds(0); inter(Ml(0, t == 0), Rl(s, 1), 1)
        g.wait_ds()
        if t < 24: E("s_barrier")
        if t == 11: stamp(2)
    for m in Ml(1): E(m)
    stamp(3)
    E("s_lshl_b32 s77, s64, 18"); E("s_lshl_b32 s70, s73, 17"); E("s_add_u32 s77, s77, s70")
    E("s_lshl_b32 s70, s65, 13"); E("s_add_u32 s77, s77, s70")
    E("s_lshl_b32 s70, s66, 12"); E("s_add_u32 s77, s77, s70")
    E("s_lshl_b32 s70, s74, 11"); E("s_add_u32 s77, s77, s70")
    def xstores(fl):
        for st in range(4):
            if st: E("s_add_u32 s77, s77, 32768")
            for cp in range(2):
                p = 64 + (st*2+cp)*4
                for h in range(2):
                    a = ACC(2*cp+h, st)
                    E(f"v_cvt_pk_bf16_f32 v{p+2*h}, v{a}, v{a+1}"); E(f"v_cvt_pk_bf16_f32 v{p+2*h+1}, v{a+2}, v{a+3}")
                E(f"buffer_store_dwordx4 v[{p}:{p+3}], v{VX}, s[40:43], s77 offen offset:{cp*1024}{fl}")
    E("s_lshl_b32 s75, s64, 1"); E("s_add_u32 s75, s75, s66"); E("s_lshl_b32 s75, s75, 2"); E("s_add_u32 s75, s75, s72")
    E("s_lshl_b32 s75, s75, 7"); E("s_lshl_b32 s71, s65, 2"); E("s_add_u32 s75, s75, s71"); E(f"s_add_u32 s75, s75, {FLOFF}")
    E("s_waitcnt vmcnt(0)")
    xstores(" sc0 sc1")
    nonce_wait(f"{P}NWC", RDY+2)
    E("s_nop 0"); E(f"v_mov_b32 v{RDY}, s78")
    E("s_waitcnt vmcnt(0)")
    E("s_mov_b64 exec, 1")
    E(f"buffer_store_dword v{RDY}, off, s[40:43], s75 sc0 sc1")
    E("s_mov_b64 exec, -1")
    g.L(f"{P}TAIL")
    if not o.get('st4'): stamp(4)
    E("s_lshl_b32 s77, s64, 18"); E("s_lshl_b32 s71, s67, 15"); E("s_add_u32 s77, s77, s71")
    E("s_lshl_b32 s71, s69, 10"); E("s_add_u32 s77, s77, s71")
    E("v_mov_b32 v200, 0"); E("v_lshlrev_b32 v201, 4, v250")
    E(f"s_mov_b32 s71, {SPIN}")
    g.srd(56, 18, 8192)
    E("s_mov_b32 s79, 0xffff0000")
    for k in range(4):
        E(f"v_lshlrev_b32 v{2*k}, 16, v{B1R+k}"); E(f"v_and_b32 v{2*k+1}, s79, v{B1R+k}")
        E(f"v_lshlrev_b32 v{8+2*k}, 16, v{W2R+k}"); E(f"v_and_b32 v{8+2*k+1}, s79, v{W2R+k}")
    g.srd(60, 16, 2)
    E("v_mov_b32 v48, 0")
    E("buffer_load_short_d16_hi v48, v200, s[60:63], 0 offen")
    for qq in range(1, 4): E(f"s_add_u32 s{71+qq}, s77, {qq*8192}")
    E("v_mov_b32 v40, 0xbdd2d3e8")
    E("s_lshl_b32 s70, s64, 1"); E("s_lshr_b32 s75, s69, 2"); E("s_add_u32 s70, s70, s75"); E("s_lshl_b32 s70, s70, 2")
    E("s_add_u32 s70, s70, s66"); E("s_and_b32 s75, s69, 2"); E("s_add_u32 s70, s70, s75")
    E("s_lshl_b32 s70, s70, 7"); E(f"s_add_u32 s70, s70, {FLOFF}")
    g.L(f"{P}POLL")
    E(f"buffer_load_dwordx4 v[204:207], off, s[40:43], s70{o['pfl']}")
    E("s_sub_u32 s71, s71, 1"); E("s_cmp_eq_u32 s71, 0"); E(f"s_cbranch_scc1 {P}POLLED")
    E("s_waitcnt vmcnt(0)")
    for k in range(4): E(f"v_xor_b32 v{204+k}, s78, v{204+k}")
    E("v_or3_b32 v204, v204, v205, v206"); E("v_or_b32 v204, v204, v207")
    E("v_cmp_ne_u32 vcc, 0, v204"); E(f"s_cbranch_vccnz {P}POLL")
    g.L(f"{P}POLLED")
    if o.get('st4'): stamp(4)
    for qq in range(4):
        E(f"buffer_load_dwordx4 v[{16+4*qq}:{19+4*qq}], v201, s[40:43], s{71+qq if qq else 77} offen{o['lfl']}")
    g.L(f"{P}POLLX")
    E("s_waitcnt vmcnt(0)")
    stamp(5)
    for qq in range(4):
        for k in range(4):
            E(f"v_lshlrev_b32 v{32+2*k}, 16, v{16+4*qq+k}"); E(f"v_and_b32 v{33+2*k}, s79, v{16+4*qq+k}")
        for k in range(8): E(f"v_add_f32 v{k}, v{k}, v{32+k}")
    for k in range(8): E(f"v_mul_f32 v{16+k}, v{k}, v{k}")
    for k in range(8): E(f"v_fmaak_f32 v{16+k}, v{16+k}, v40, 0xc0135761")
    for k in range(8): E(f"v_mul_f32 v{16+k}, v{16+k}, v{k}")
    for k in range(8): E(f"v_exp_f32 v{16+k}, v{16+k}")
    for k in range(8): E(f"v_mul_f32 v{k}, v{k}, v{8+k}")
    for k in range(8): E(f"v_add_f32 v{16+k}, 1.0, v{16+k}")
    for k in range(8): E(f"v_rcp_f32 v{16+k}, v{16+k}")
    E("s_lshl_b32 s70, s69, 8"); E(f"s_add_u32 s70, s70, {RED}")
    E("v_lshlrev_b32 v41, 2, v250"); E("v_add_u32 v42, s70, v41")
    E("v_mul_f32 v24, v0, v16"); E("v_mul_f32 v25, v1, v17")
    for k in range(2, 8): E(f"v_fmac_f32 v{24+(k&1)}, v{k}, v{16+k}")
    E("v_add_f32 v24, v24, v25")
    E("ds_write_b32 v42, v24")
    E("s_waitcnt lgkmcnt(0)")
    E("s_barrier")
    if stamps:
        E("s_cmp_eq_u32 s69, 4"); E(f"s_cbranch_scc1 {P}STAMP")
    E("s_cmp_lg_u32 s69, 0"); E(f"s_cbranch_scc1 {P}END")
    E(f"v_add_u32 v41, {RED}, v41")
    for w in range(9): E(f"ds_read_b32 v{w}, v41 offset:{w*256}")
    E("s_lshl_b32 s70, s67, 4"); E("s_add_u32 s70, s70, s68"); E("s_lshl_b32 s70, s70, 1")
    E("v_lshlrev_b32 v43, 1, v250")
    E("s_waitcnt lgkmcnt(0)")
    for k in range(4): E(f"v_add_f32 v{k}, v{k}, v{k+4}")
    E("v_add_f32 v0, v0, v8"); E("v_add_f32 v1, v1, v2"); E("v_add_f32 v0, v0, v3"); E("v_add_f32 v0, v0, v1")
    E("v_mov_b32 v1, v0"); E("s_nop 1"); E("v_permlane32_swap_b32 v0, v1"); E("s_nop 1"); E("v_add_f32 v0, v0, v1")
    E("v_mov_b32 v1, v0"); E("s_nop 1"); E("v_permlane16_swap_b32 v0, v1"); E("s_nop 1"); E("v_add_f32 v0, v0, v1")
    E("v_add_f32 v0, v0, v48")
    E("v_cvt_pk_bf16_f32 v0, v0, v0")
    E("s_mov_b64 exec, 0xffff")
    E("buffer_store_short v0, v43, s[56:59], s70 offen")
    if stamps:
        E("s_mov_b64 exec, -1")
        g.L(f"{P}STAMP")
        E("s_waitcnt vmcnt(0)")
        stamp(6)
        if stamps == 'dbg':
            E("s_cmp_lg_u32 s69, 0"); E(f"s_cbranch_scc1 {P}END")
            E("s_waitcnt lgkmcnt(0)")
            E("s_mov_b64 exec, 1"); E("v_mov_b32 v1, 0")
            E("s_not_b32 s71, s80"); E("v_mov_b32 v2, s71"); E("buffer_atomic_umax v2, v1, s[44:47], 0 offen sc1")
            for k in range(1, 7):
                E(f"v_mov_b32 v{2+k}, s{80+2*k}"); E(f"buffer_atomic_umax v{2+k}, v1, s[44:47], 0 offen offset:{4*k} sc1")
            E(f"v_mov_b32 v10, s80"); E(f"buffer_atomic_umax v10, v1, s[44:47], 0 offen offset:28 sc1")
            E("s_endpgm")
        E("s_mul_i32 s70, s2, 112"); E("s_add_u32 s70, s70, 0x8000000")
        E("s_cmp_eq_u32 s69, 0"); E("s_cselect_b32 s71, 56, 0"); E("s_add_u32 s70, s70, s71")
        E("v_mov_b32 v1, s70")
        E("s_waitcnt lgkmcnt(0)")
        if o.get('clk'):
            E("s_cmp_lg_u32 s69, 0"); E(f"s_cbranch_scc1 {P}NOCLK")
            for k in (2, 3, 1):
                E(f"s_sub_u32 s{80+2*k}, s{80+2*k}, s82"); E(f"s_add_u32 s{80+2*k}, s{80+2*k}, s80"); E(f"s_addc_u32 s{81+2*k}, s81, 0")
            g.L(f"{P}NOCLK")
        E("s_mov_b64 exec, 1")
        for k in range(7):
            E(f"v_mov_b32 v2, s{80+2*k}"); E(f"v_mov_b32 v3, s{81+2*k}")
            E(f"global_store_dwordx2 v1, v[2:3], s[22:23] offset:{8*k}"); E("s_nop 1")
    g.L(f"{P}END")
    E("s_endpgm")
    return "\n".join(x for x in g.l if x is not None) + "\n" + kd(name, vgpr=256)

def official(opts=None, path='standalone__deep_cross_pnn__recsys.s', stamps=False):
    asm = HDR + f"; @launch grid=(256,1,1) block=(512,1,1) lds={LDS}\n" + '.amdgcn_target "amdgcn-amd-amdhsa--gfx950"\n' + gen(NAME, stamps, opts)
    open(path, 'w').write(asm)

def bench(base, variants):
    hdr = []; ks = []
    for nm, op in variants:
        hdr.append(f"; @launch kernel={nm} grid=(256,1,1) block=(512,1,1) lds={LDS}")
        ks.append(gen(nm, True, op))
    asm = "\n".join(hdr) + '\n.amdgcn_target "amdgcn-amd-amdhsa--gfx950"\n' + "\n".join(ks)
    build(asm, base, variants[0][0])
    open(base + ".sh", "w").write("export NST=14\n" + "".join(f"timeout 60 ./run {os.path.basename(base)}.co 1 15 256 {nm}:256:512:{LDS}\n" for nm, _ in variants))

if __name__ == "__main__":
    official(path='v4.s')
    bench('g4', [("g4a_kernel", dict(st4=1)), ("g4n_kernel", dict(st4=1, lfl=' nt'))])
```

```python
import sys, os
sys.path.insert(0, 'bench')
from asmlib import kd, build
NAME = "standalone__deep_cross_pnn__recsys_kernel"
HDR = open('standalone__deep_cross_pnn__recsys.s.ref').read().split('; Override')[0]

APS = 22528
def AP(s): return s*APS
BS0 = 3*APS
IDXA = BS0 + 3*16384
IDXP = IDXA + 16384
WP = IDXP + 6400
WP6 = WP + 22*1024
LDSEND = WP6 + 6*256
LDS = 163840
assert LDSEND <= LDS
RED = IDXA
FLOFF = 8 << 20
WSREC = 16 << 20
SPIN = 200000

class G:
    def __init__(s): s.l = []; s.q = []
    def E(s, x): s.l.append("    " + x)
    def L(s, x): s.l.append(x + ":")
    def ds(s, x, tag=None): s.E(x); s.q.append(tag)
    def wait_ds(s, tag=None):
        if tag is None: n = 0
        else:
            c = [i for i, t in enumerate(s.q) if t == tag]
            if not c: return
            n = len(s.q) - 1 - max(c)
        s.E(f"s_waitcnt lgkmcnt({min(n,15)})")
        n = min(n, 15)
        s.q = s.q[len(s.q)-n:] if n else []
    def srd(s, d, p, n):
        s.E(f"s_mov_b32 s{d}, s{p}"); s.E(f"s_mov_b32 s{d+1}, s{p+1}"); s.E(f"s_mov_b32 s{d+2}, {n}"); s.E(f"s_mov_b32 s{d+3}, 0x20000")

def gen(name=NAME, stamps=False, opts=None):
    o = dict(prioL=0, prioC=2, il=0, lead=2, dord=0, nopnn=0, nocr=0, nocm=0, nofr=0, chk=22, rot=2, rsel=0, lfl=' sc1', pfl=' sc1')
    if opts: o.update(opts)
    g = G(); E = g.E
    P = "L" + name.replace("_kernel", "")[-10:] + "_"
    role = dict(L=True)
    def stamp(k):
        if stamps and o.get('clk') and role['L'] and k in (1, 2, 3): E(f"s_memtime s[{80+2*k}:{81+2*k}]")
        elif stamps: E(f"s_memrealtime s[{80+2*k}:{81+2*k}]")
    g.l.append(f".text\n.globl {name}\n.p2align 8\n.type {name},@function\n{name}:")
    stamp(0)
    E("s_cmp_ge_u32 s2, 256"); E(f"s_cbranch_scc1 {P}END")
    E("s_load_dwordx16 s[4:19], s[0:1], 0"); E("s_load_dwordx4 s[20:23], s[0:1], 64")
    E("v_lshrrev_b32 v1, 6, v0")
    E("s_and_b32 s64, s2, 7"); E("s_lshl_b32 s64, s64, 2")
    E("v_readfirstlane_b32 s69, v1")
    E("s_lshr_b32 s70, s2, 6"); E("s_add_u32 s64, s64, s70")
    E("s_lshr_b32 s67, s2, 3"); E("s_and_b32 s67, s67, 7")
    E("s_and_b32 s65, s67, 3"); E("s_lshr_b32 s66, s67, 2")
    E("s_lshl_b32 s68, s64, 7")
    RB = o['rot']
    def dl(t): return 0 if (t == 0 or not RB) else (1 if ((t-1) & RB) == 0 else -1)
    if RB:
        E(f"s_lshr_b32 s94, s2, {6 + o['rsel']}"); E("s_xor_b32 s94, s94, s66"); E("s_and_b32 s94, s94, 1")
    E("v_and_b32 v250, 63, v0")
    E("s_cmp_ge_u32 s69, 4"); E(f"s_cbranch_scc1 {P}CSTART")
    B1R, W2R = 224, 228
    def load_b1w2(tmp):
        g.srd(48, 12, 512); g.srd(52, 14, 512)
        E(f"v_lshrrev_b32 v{tmp}, 4, v250"); E(f"v_lshlrev_b32 v{tmp}, 3, v{tmp}")
        E("s_lshl_b32 s71, s69, 6")
        E(f"buffer_load_dwordx2 v[{B1R}:{B1R+1}], v{tmp}, s[48:51], s71 offen")
        E(f"buffer_load_dwordx2 v[{B1R+2}:{B1R+3}], v{tmp}, s[48:51], s71 offen offset:32")
        E(f"buffer_load_dwordx2 v[{W2R}:{W2R+1}], v{tmp}, s[52:55], s71 offen")
        E(f"buffer_load_dwordx2 v[{W2R+2}:{W2R+3}], v{tmp}, s[52:55], s71 offen offset:32")
    VCA0, VCA1, VB0, VB1, VIA, VIP0, VIP1, VP16 = 224, 225, 226, 227, 228, 229, 230, 231
    OFF = 232; VP = 220; SUM = 216; WREG = 208; D = 192; F6 = 238; WA = 246; WA6 = 247
    def F(js, b, h): return ((js*6 + b)*2 + h)*4 if b < 6 else F6 + h*4
    if o['prioL']: E(f"s_setprio {o['prioL']}")
    E("v_lshrrev_b32 v251, 3, v250")
    E("v_and_b32 v252, 7, v250")
    E(f"v_lshlrev_b32 v{VP16}, 4, v252")
    E("v_mul_u32_u24 v253, 400, v251")
    E(f"v_add_u32 v253, v253, v{VP16}")
    E("v_lshlrev_b32 v254, 4, v250")
    E("v_lshrrev_b32 v249, 4, v250")
    E("v_lshlrev_b32 v248, 2, v249")
    E("v_and_b32 v247, 15, v250")
    E("v_xor_b32 v247, v247, v248")
    E("v_lshlrev_b32 v247, 4, v247")
    E(f"v_lshl_add_u32 v{VB0}, v249, 9, v247")
    E(f"v_xor_b32 v{VB1}, 32, v{VB0}")
    E("s_lshl_b32 s73, s69, 12")
    E("s_mul_i32 s74, s69, 1536"); E("s_add_u32 s74, s74, 16384")
    E(f"s_add_u32 s75, s73, {BS0}")
    E("s_mul_i32 s72, s65, 819200"); E("s_lshl_b32 s70, s66, 8"); E("s_add_u32 s72, s72, s70")
    E("s_lshl_b32 s70, s69, 13"); E("s_add_u32 s72, s72, s70")
    if RB:
        E(f"s_mul_i32 s70, s94, {RB*32768}"); E("s_add_u32 s95, s72, s70"); E("s_sub_u32 s96, s72, s70")
        E(f"s_mul_i32 s97, s94, {RB*4}"); E(f"s_mul_i32 s98, s94, {RB*8}")
    def SB(t): return {0: 72, 1: 95, -1: 96}[dl(t)]
    ist = dict(d=0)
    def idxadj(t):
        d = dl(t) - ist['d']; ist['d'] = dl(t)
        if d == 0: return
        sr = 97 if abs(d) == 1 else 98
        for v in (VIA, VIP0, VIP1):
            if d > 0: E(f"v_add_u32 v{v}, s{sr}, v{v}")
            else: E(f"v_subrev_u32 v{v}, s{sr}, v{v}")
    E("s_lshl_b32 s70, s69, 5"); E("s_add_u32 s70, s70, s68"); E("s_mul_i32 s70, s70, 400")
    E("s_mul_i32 s71, s65, 100"); E("s_add_u32 s70, s70, s71")
    E("s_lshl_b32 s77, s67, 4"); E("s_lshl_b32 s78, s69, 2"); E("s_add_u32 s77, s77, s78")
    E("s_add_u32 s78, s77, s68"); E("s_mul_i32 s78, s78, 400")
    E("s_mul_i32 s79, s69, 1600"); E(f"s_add_u32 s79, s79, {IDXP}")
    E("s_waitcnt lgkmcnt(0)")
    g.srd(24, 4, 1638400)
    for j in range(4):
        E(f"s_add_u32 m0, s73, {IDXA + j*1024}")
        if j: E(f"s_add_u32 s70, s70, 3200")
        else: E("s_nop 0")
        E("buffer_load_dwordx4 v253, s[24:27], s70 offen lds")
    E("s_mov_b32 m0, s79"); E("s_nop 0")
    E("buffer_load_dwordx4 v254, s[24:27], s78 offen lds")
    E("s_mov_b32 exec_hi, 15")
    E("buffer_load_dwordx4 v254, s[24:27], s78 offen offset:1024 lds")
    E("s_mov_b32 exec_hi, -1")
    g.srd(32, 10, 3276800)
    def issueB(t):
        s = t % 3
        for ii in range(4):
            E(f"s_add_u32 m0, s75, {s*16384 + ii*1024}")
            E(f"s_add_u32 s70, s{SB(t)}, {t*32768 + ii*2048}")
            E(f"buffer_load_dwordx4 v{VB0 if ii < 2 else VB1}, s[32:35], s70 offen lds")
    def issueA(t, off):
        s = t % 3
        for j in range(4):
            E(f"s_add_u32 m0, s73, {AP(s) + j*1024}"); E("s_nop 0")
            E(f"buffer_load_dwordx4 v{off+j}, s[28:31], 0 offen lds")
        E(f"s_add_u32 m0, s74, {AP(s)}"); E("s_nop 0")
        E(f"buffer_load_dwordx4 v{off+4}, s[28:31], 0 offen lds")
        E(f"s_add_u32 m0, s74, {AP(s) + 1024}"); E("s_mov_b32 exec_hi, 0")
        E(f"buffer_load_dwordx4 v{off+5}, s[28:31], 0 offen lds")
        E("s_mov_b32 exec_hi, -1")
    def rdidx(t, off):
        idxadj(t)
        for j in range(4): g.ds(f"ds_read_b32 v{off+j}, v{VIA} offset:{j*1024 + 4*t}", 'idx')
        g.ds(f"ds_read_b32 v{off+4}, v{VIP0} offset:{4*t}", 'idx')
        g.ds(f"ds_read_b32 v{off+5}, v{VIP1} offset:{4*t}", 'idx')
    def cvidx(off):
        for j in range(4): E(f"v_lshl_add_u32 v{off+j}, v{off+j}, 7, v{VCA0 + (j&1)}")
        for j in (4, 5): E(f"v_lshl_add_u32 v{off+j}, v{off+j}, 7, v{VP16}")
    issueB(0); issueB(1)
    g.srd(28, 6, 12800000)
    E("v_lshrrev_b32 v248, 1, v251"); E("v_xor_b32 v248, v248, v252")
    E(f"v_lshlrev_b32 v{VCA0}, 4, v248"); E(f"v_xor_b32 v{VCA1}, 64, v{VCA0}")
    E(f"v_lshlrev_b32 v{VIA}, 7, v251"); E(f"s_add_u32 s70, s73, {IDXA}"); E(f"v_add_u32 v{VIA}, s70, v{VIA}")
    E("s_movk_i32 s71, 400")
    for k, dst in ((0, VIP0), (1, VIP1)):
        if k == 0: E("v_mov_b32 v246, v251")
        else: E("v_and_b32 v246, 3, v251"); E("v_add_u32 v246, 8, v246")
        E("v_mul_u32_u24 v245, 11, v246"); E("v_lshrrev_b32 v245, 5, v245")
        E("v_mul_u32_u24 v244, 3, v245"); E("v_sub_u32 v244, v246, v244")
        E("v_add_u32 v244, s65, v244"); E("v_add_u32 v244, 1, v244"); E("v_and_b32 v244, 3, v244")
        E("v_mul_u32_u24 v244, 100, v244")
        E(f"v_mad_u32_u24 v{dst}, v245, s71, v244"); E(f"v_add_u32 v{dst}, s79, v{dst}")
    E("v_bfe_u32 v246, v250, 2, 2")
    E("v_cmp_eq_u32 vcc, s65, v246")
    E("v_subrev_u32 v245, s65, v246"); E("v_add_u32 v245, 3, v245"); E("v_and_b32 v245, 3, v245")
    E("v_lshlrev_b32 v245, 7, v245"); E("v_lshl_add_u32 v245, v249, 4, v245"); E("v_add_u32 v245, s74, v245")
    for js in range(4):
        E(f"s_add_u32 s70, s77, {js}"); E("s_lshr_b32 s71, s70, 1"); E("s_and_b32 s71, s71, 7"); E("s_lshl_b32 s70, s70, 7")
        E("v_xor_b32 v244, s71, v249"); E("v_lshlrev_b32 v244, 4, v244"); E("v_add_u32 v244, s70, v244")
        E(f"v_add_u32 v243, {js*384}, v245")
        E(f"v_cndmask_b32 v{VP+js}, v243, v244, vcc")
    for js in range(4): E(f"v_mov_b32 v{SUM+js}, 0")
    E(f"v_add_u32 v{WA}, {WP}, v254")
    E(f"v_lshlrev_b32 v{WA6}, 2, v250"); E(f"v_add_u32 v{WA6}, {WP6}, v{WA6}")
    E("s_waitcnt vmcnt(8)")
    rdidx(0, 0); rdidx(1, 6); g.wait_ds()
    cvidx(0); issueA(0, 0); cvidx(6); issueA(1, 6)
    rdidx(2, OFF); g.wait_ds(); cvidx(OFF)
    E("s_barrier")
    E("s_waitcnt vmcnt(6)")
    E("s_barrier")
    stamp(1)
    sched = {t: [] for t in range(26)}
    sched[1].append((6, 6))
    for b in range(6):
        tl = [(6, b)] + [(I, b) for I in range(b+1)]
        st = [4*b+5+k for k in range(4)] if b < 5 else [25]
        for n, x in enumerate(tl): sched[st[n*len(st)//len(tl)]].append(x)
    state = dict(pend=None, wsel=0)
    def wread(I, J):
        w = WREG + 4*state['wsel']; state['wsel'] ^= 1
        if I < 6: g.ds(f"ds_read_b128 v[{w}:{w+3}], v{WA} offset:{(J*(J+1)//2 + I)*1024}", ('w', I, J))
        elif J == 6: g.ds(f"ds_read_b128 v[{w}:{w+3}], v{WA} offset:{21*1024}", ('w', I, J))
        else: g.ds(f"ds_read_b32 v{w}, v{WA6} offset:{J*256}", ('w', I, J))
        return w
    def fm(js, p):
        I, J, w = p
        if I < 6:
            for r in range(4): E(f"v_fmac_f32 v{SUM+js}, v{D+4*js+r}, v{w+r}")
            return 4
        if J == 6: E(f"v_fmac_f32 v{SUM+js}, v{D+js}, v{w+js}")
        else: E(f"v_fmac_f32 v{SUM+js}, v{D+4*js+js}, v{w}")
        return 1
    def mm(js, I, J):
        d = D + 4*js
        E(f"v_mfma_f32_16x16x32_bf16 v[{d}:{d+3}], v[{F(js,I,0)}:{F(js,I,0)+3}], v[{F(js,J,0)}:{F(js,J,0)+3}], 0")
        E(f"v_mfma_f32_16x16x32_bf16 v[{d}:{d+3}], v[{F(js,I,1)}:{F(js,I,1)+3}], v[{F(js,J,1)}:{F(js,J,1)+3}], v[{d}:{d+3}]")
    def tiles(tl):
        for (I, J) in tl:
            w = wread(I, J)
            pend = state['pend']
            if pend is not None: g.wait_ds(('w', pend[0], pend[1]))
            if pend is not None and pend[:2] == (6, 6):
                E("s_nop 7")
                for js in range(4): fm(js, pend)
                pend = None
            for js in range(4):
                if pend is not None: fm(js, pend)
                if (I, J) != (6, 6) or js == 0: mm(js, I, J)
            E("s_nop 1")
            state['pend'] = (I, J, w)
    def flush():
        pend = state['pend']
        g.wait_ds(('w', pend[0], pend[1]))
        E("s_nop 3")
        for js in range(4):
            fm(js, pend)
            if js < 3: E("s_nop 1")
        state['pend'] = None
    OFFS = [[232, 233, 234, 235, 236, 237], [248, 249, 251, 252, 253, 255]]
    def dma_items(t, off):
        s = t % 3; it = []
        def mkB(ii):
            def f():
                E(f"s_add_u32 m0, s75, {s*16384 + ii*1024}")
                E(f"s_add_u32 s70, s{SB(t)}, {t*32768 + ii*2048}")
                E(f"buffer_load_dwordx4 v{VB0 if ii < 2 else VB1}, s[32:35], s70 offen lds")
            return f
        def mkA(j):
            def f():
                if j < 4: E(f"s_add_u32 m0, s73, {AP(s) + j*1024}"); E("s_nop 0")
                elif j == 4: E(f"s_add_u32 m0, s74, {AP(s)}"); E("s_nop 0")
                else: E(f"s_add_u32 m0, s74, {AP(s) + 1024}"); E("s_mov_b32 exec_hi, 0")
                E(f"buffer_load_dwordx4 v{off[j]}, s[28:31], 0 offen lds")
                if j == 5: E("s_mov_b32 exec_hi, -1")
            return f
        Bs = [mkB(i) for i in range(4)]; As = [mkA(j) for j in range(6)]
        if o['dord'] == 0: return Bs + As
        if o['dord'] == 1: return As + Bs
        return [As[0], Bs[0], As[1], Bs[1], As[2], Bs[2], As[3], Bs[3], As[4], As[5]]
    def rdidx2(t, off):
        idxadj(t)
        for j in range(4): g.ds(f"ds_read_b32 v{off[j]}, v{VIA} offset:{j*1024 + 4*t}", 'idx')
        g.ds(f"ds_read_b32 v{off[4]}, v{VIP0} offset:{4*t}", 'idx')
        g.ds(f"ds_read_b32 v{off[5]}, v{VIP1} offset:{4*t}", 'idx')
    def cvidx2(off):
        for j in range(4): E(f"v_lshl_add_u32 v{off[j]}, v{off[j]}, 7, v{VCA0 + (j&1)}")
        for j in (4, 5): E(f"v_lshl_add_u32 v{off[j]}, v{off[j]}, 7, v{VP16}")
    def tile_items(tl):
        it = []
        for (I, J) in tl:
            loc = {}
            def head(I=I, J=J, loc=loc):
                loc['w'] = wread(I, J)
                pend = state['pend']
                if pend is not None: g.wait_ds(('w', pend[0], pend[1]))
                if pend is not None and pend[:2] == (6, 6):
                    E("s_nop 7")
                    for js in range(4): fm(js, pend)
                    pend = None
                loc['pend'] = pend
            def part(js, I=I, J=J, loc=loc, head=head):
                if js == 0: head()
                if loc['pend'] is not None: fm(js, loc['pend'])
                if (I, J) != (6, 6) or js == 0: mm(js, I, J)
                if js == 3:
                    E("s_nop 1"); state['pend'] = (I, J, loc['w'])
            for js in range(4): it.append(lambda js=js, part=part: part(js))
        return it
    for t in range(25):
        s = t % 3
        dm = dma_items(t+2, OFFS[t & 1]) if t + 2 <= 24 else []
        wk = []
        def frag(half, t=t, s=s):
            if t == 0:
                for js in (2*half, 2*half+1): E(f"v_xor_b32 v{D+js}, 64, v{VP+js}")
                for js in (2*half, 2*half+1):
                    m = 0x11111111 << js
                    E(f"s_mov_b32 exec_lo, {m:#x}"); E(f"s_mov_b32 exec_hi, {m:#x}")
                    g.ds(f"ds_read_b128 v[{F6}:{F6+3}], v{VP+js} offset:{AP(s)}", 'pf')
                    g.ds(f"ds_read_b128 v[{F6+4}:{F6+7}], v{D+js} offset:{AP(s)}", 'pf')
            else:
                b = (t-1) >> 2; u = (t-1) & 3
                m = 0x11111111 << u
                E(f"s_mov_b32 exec_lo, {m:#x}"); E(f"s_mov_b32 exec_hi, {m:#x}")
                for js in (2*half, 2*half+1):
                    f0 = F(js, b, 0); f1 = F(js, b, 1)
                    E(f"v_xor_b32 v{f1}, 64, v{VP+js}")
                    g.ds(f"ds_read_b128 v[{f0}:{f0+3}], v{VP+js} offset:{AP(s)}", 'pf')
                    g.ds(f"ds_read_b128 v[{f1}:{f1+3}], v{f1} offset:{AP(s)}", 'pf')
            E("s_mov_b64 exec, -1")
        if t + 3 <= 24: wk.append(lambda t=t: rdidx2(t+3, OFFS[(t+1) & 1]))
        if not o['nofr']: wk.append(lambda: frag(0)); wk.append(lambda: frag(1))
        if not o['nopnn']: wk += tile_items(sched[t])
        if t + 3 <= 24:
            def cvl(t=t): g.wait_ds('idx'); cvidx2(OFFS[(t+1) & 1])
            wk.append(cvl)
        if t == 23:
            load_b1w2(232)
            g.srd(44, 20, 256); E("s_lshl_b32 s71, s64, 2")
            E("buffer_load_dword v234, off, s[44:47], s71 offset:128 sc0 sc1")
        if not o['il']:
            for f in dm + wk: f()
        else:
            lead = o['lead']; nd = len(dm); nw = len(wk)
            seq = dm[:lead]; rest = dm[lead:]
            k = 0
            for i, w in enumerate(wk):
                seq.append(w)
                tgt = ((i+1) * len(rest)) // nw if o['il'] == 1 else min(len(rest), (i+1)*o['il'] - (i+1))
                while k < tgt: seq.append(rest[k]); k += 1
            seq += rest[k:]
            for f in seq: f()
        g.wait_ds()
        if t < 24:
            E(f"s_waitcnt vmcnt({10 if t + 2 <= 24 else 5})")
            E("s_barrier")
            if t == 11: stamp(2)
    stamp(3)
    if not o['nopnn']: tiles(sched[25]); flush()
    E("s_nop 1")
    for sh in (1, 2, 4, 8):
        for js in range(4): E(f"v_add_f32_dpp v{SUM+js}, v{SUM+js}, v{SUM+js} row_shr:{sh} row_mask:0xf bank_mask:0xf bound_ctrl:1")
    E("v_lshrrev_b32 v248, 4, v250"); E("v_lshlrev_b32 v248, 6, v248")
    E("s_lshl_b32 s70, s69, 4"); E(f"s_add_u32 s70, s70, {RED + 2048}")
    E("v_add_u32 v248, s70, v248")
    E("s_mov_b32 exec_lo, 0x80008000"); E("s_mov_b32 exec_hi, 0x80008000")
    E(f"ds_write_b128 v248, v[{SUM}:{SUM+3}]")
    E("s_mov_b64 exec, -1")
    g.srd(40, 22, WSREC); g.srd(44, 20, 256)
    E("s_waitcnt vmcnt(0) lgkmcnt(0)")
    def nonce_wait(lbl, vr):
        E(f"v_readfirstlane_b32 s78, v{vr}")
        E("s_cmp_lg_u32 s78, 0"); E(f"s_cbranch_scc1 {lbl}_x")
        E(f"s_mov_b32 s71, {SPIN}"); E("s_lshl_b32 s79, s64, 2")
        g.L(lbl)
        E(f"buffer_load_dword v{vr}, off, s[44:47], s79 offset:128 sc0 sc1")
        E("s_waitcnt vmcnt(0)")
        E(f"v_readfirstlane_b32 s78, v{vr}")
        E("s_sub_u32 s71, s71, 1"); E("s_cmp_eq_u32 s71, 0"); E(f"s_cbranch_scc1 {lbl}_x")
        E("s_cmp_eq_u32 s78, 0"); E(f"s_cbranch_scc1 {lbl}")
        g.L(lbl + "_x")
    nonce_wait(f"{P}NWL", 234)
    E(f"s_branch {P}TAIL")
    g.q = []; role['L'] = False
    g.L(f"{P}CSTART")
    if o['prioC']: E(f"s_setprio {o['prioC']}")
    VA = 128; VBR = 130; VX = 134; CLR = 136; RDY = 150
    def FA(ks, st): return 64 + ks*32 + st*4
    def FB(ks, nt): return 64 + ks*32 + 16 + nt*4
    def ACC(nt, st): return (st*4 + nt)*4
    E("s_sub_u32 s72, s69, 4")
    E("s_and_b32 s73, s72, 1"); E("s_lshr_b32 s74, s72, 1")
    E("v_lshlrev_b32 v254, 4, v250")
    E("s_mul_i32 s70, s72, 5120")
    E("s_memrealtime s[96:97]")
    E("s_waitcnt lgkmcnt(0)")
    g.srd(36, 8, 20000)
    for i in range(5):
        E(f"s_add_u32 m0, s70, {AP(2) + i*1024}"); E(f"s_add_u32 s71, s70, {i*1024}")
        E("buffer_load_dwordx4 v254, s[36:39], s71 offen lds")
    g.srd(40, 22, WSREC); g.srd(44, 20, 256)
    load_b1w2(248)
    E("v_and_b32 v140, 15, v250"); E("v_lshrrev_b32 v141, 4, v250"); E("v_bfe_u32 v142, v250, 1, 3")
    E("v_xor_b32 v142, v141, v142"); E("v_lshlrev_b32 v142, 4, v142"); E("v_lshl_add_u32 v142, v140, 7, v142")
    E("s_lshl_b32 s70, s73, 13"); E(f"v_add_u32 v{VA}, s70, v142"); E(f"v_xor_b32 v{VA+1}, 64, v{VA}")
    E("v_bfe_u32 v142, v250, 2, 2")
    E("v_lshl_add_u32 v143, v141, 3, v142"); E("v_lshlrev_b32 v143, 8, v143")
    E("v_bfe_u32 v144, v250, 1, 1"); E("s_lshl_b32 s70, s74, 3"); E("v_or_b32 v144, s70, v144")
    E("v_lshlrev_b32 v142, 2, v142"); E("v_xor_b32 v144, v144, v142")
    E("v_and_b32 v142, 1, v141"); E("v_lshlrev_b32 v142, 1, v142"); E("v_xor_b32 v144, v144, v142")
    E("v_lshl_add_u32 v143, v144, 4, v143")
    E("v_and_b32 v144, 1, v250"); E("v_lshl_add_u32 v143, v144, 3, v143")
    for nt in range(4):
        E(f"v_xor_b32 v142, {nt*32}, v143"); E(f"v_add_u32 v{VBR+nt}, {BS0}, v142")
    E(f"v_lshlrev_b32 v{VX}, 4, v250")
    E("v_lshrrev_b32 v140, 4, v250")
    E("v_bfe_u32 v141, v250, 2, 2"); E("v_mul_u32_u24 v141, 25, v141")
    E("v_and_b32 v142, 3, v250")
    if RB in (1, 2): E(f"s_mul_i32 s70, s94, {RB}"); E("v_xor_b32 v142, s70, v142")
    E("v_add_u32 v142, v141, v142")
    E("v_mul_u32_u24 v143, 5000, v140")
    E("v_lshl_add_u32 v145, v142, 1, v143"); E(f"v_add_u32 v145, {AP(2)}, v145")
    E("v_lshl_add_u32 v147, v141, 1, v143"); E(f"v_add_u32 v147, {AP(2)}, v147")
    E("v_mul_u32_u24 v146, 200, v142"); E("v_mul_u32_u24 v143, 50, v140"); E("v_add_u32 v146, v146, v143")
    E(f"v_add_u32 v146, {AP(2)}, v146")
    E(f"v_add_u32 v148, {WP}, v254")
    E(f"v_lshlrev_b32 v149, 2, v250"); E(f"v_add_u32 v149, {WP6}, v149")
    wb_ = {}
    def WBASE(which, delta):
        if delta == 0: return which
        return wb_[(which, delta)]
    if RB:
        keys = set()
        for tr in range(0, 25):
            for J in range(6):
                dc = dl(1+4*J) if RB == 4 else 0
                keys.add((145, RB*(200*dl(tr) + 2*dc))); keys.add((146, RB*(2*dl(tr) + 200*dc)))
        nx = 64
        for k in sorted(keys):
            if k[1] == 0: continue
            E(f"s_mul_i32 s70, s94, {k[1]}"); E(f"v_add_u32 v{nx}, s70, v{k[0]}"); wb_[k] = nx; nx += 1
    def B1(tr, J): return WBASE(145, RB*(200*dl(tr) + 2*(dl(1+4*J) if RB == 4 else 0)))
    def B2(tr, J): return WBASE(146, RB*(2*dl(tr) + 200*(dl(1+4*J) if RB == 4 else 0)))
    for r in range(56): E(f"v_mov_b32 v{r}, 0")
    E("s_waitcnt vmcnt(4)")
    E("s_barrier")
    big = [(I, J) for J in range(6) for I in range(J+1)] + [(6, 6)]
    for cw in range(4):
        if cw < 3: E(f"s_cmp_lg_u32 s72, {cw}"); E(f"s_cbranch_scc1 {P}WB{cw+1}")
        mine = [(n, t) for n, t in enumerate(big) if n % 4 == cw]
        small = [J for J in range(6) if cw >= 2 and J % 2 == cw % 2]
        r = 0; plan = []
        for n, (I, J) in mine:
            if I == 6:
                E(f"ds_read_u16_d16_hi v{r}, v147"); plan.append((n, I, J, r)); r += 1; continue
            for k in range(4): E(f"ds_read_u16_d16_hi v{r+k}, v{B1(1+4*I+k, J)} offset:{200*(1+4*I+k) + 2*(1+4*J)}")
            if I < J:
                for k in range(4): E(f"ds_read_u16_d16_hi v{r+4+k}, v{B2(1+4*I+k, J)} offset:{200*(1+4*J) + 2*(1+4*I+k)}")
            plan.append((n, I, J, r)); r += 8
        sp = []
        for J in small:
            E(f"ds_read_u16_d16_hi v{r}, v{B1(0, J)} offset:{2*(1+4*J)}"); E(f"ds_read_u16_d16_hi v{r+1}, v{B2(0, J)} offset:{200*(1+4*J)}")
            sp.append((J, r)); r += 2
        assert r <= 56
        E("s_waitcnt lgkmcnt(0)")
        for n, I, J, r in plan:
            if I == 6:
                for k in range(4):
                    m = 0x11111111 << k
                    E(f"s_mov_b32 vcc_lo, {m:#x}"); E(f"s_mov_b32 vcc_hi, {m:#x}")
                    E(f"v_cndmask_b32 v{60+k}, 0, v{r}, vcc")
                E(f"ds_write_b128 v148, v[60:63] offset:{n*1024}")
                continue
            if I < J:
                for k in range(4): E(f"v_add_f32 v{r+k}, v{r+k}, v{r+4+k}")
            E(f"ds_write_b128 v148, v[{r}:{r+3}] offset:{n*1024}")
        for J, r in sp:
            E(f"v_add_f32 v{r}, v{r}, v{r+1}"); E(f"ds_write_b32 v149, v{r} offset:{J*256}")
        if cw < 3: E(f"s_branch {P}WBDONE"); g.L(f"{P}WB{cw+1}")
    g.L(f"{P}WBDONE")
    E("s_waitcnt lgkmcnt(0)")
    E("s_barrier")
    stamp(1)
    def Rl(s, ks):
        la = [f"ds_read_b128 v[{FA(ks,st)}:{FA(ks,st)+3}], v{VA+ks} offset:{AP(s) + st*2048}" for st in range(4)]
        lb = [[f"ds_read_b64_tr_b16 v[{FB(ks,nt)+2*hf}:{FB(ks,nt)+2*hf+1}], v{VBR+nt} offset:{s*16384 + ks*8192 + hf*1024}" for hf in range(2)] for nt in range(4)]
        if o['nocr'] == 1: return []
        return [la[0]] + lb[0] + [la[1]] + lb[1] + [la[2]] + lb[2] + [la[3]] + lb[3]
    MORD = [(0,0),(0,1),(1,0),(1,1),(0,2),(1,2),(2,0),(2,1),(2,2),(0,3),(1,3),(2,3),(3,0),(3,1),(3,2),(3,3)]
    def Ml(ks, first=False):
        l = []
        for nt, st in MORD:
            a = ACC(nt, st)
            l.append(f"v_mfma_f32_16x16x32_bf16 v[{a}:{a+3}], v[{FB(ks,nt)}:{FB(ks,nt)+3}], v[{FA(ks,st)}:{FA(ks,st)+3}], " + ("0" if first else f"v[{a}:{a+3}]"))
        if o['nocm']: return ["s_nop 0"]*16
        return l
    def inter(ms, rs, tag):
        for i, m in enumerate(ms):
            E(m)
            if i < len(rs): g.ds(rs[i], tag)
    for t in range(25):
        s = t % 3
        if t == 0:
            for x in Rl(s, 0): g.ds(x, 0)
        else: inter(Ml(1), Rl(s, 0), 0)
        if t == 1:
            E("s_or_b32 s70, s72, s67"); E("s_cmp_lg_u32 s70, 0"); E(f"s_cbranch_scc1 {P}NOLEAD")
            E("s_lshl_b32 s70, s64, 2")
            E("s_or_b32 s96, s96, 1"); E(f"v_mov_b32 v{RDY}, s96")
            E("s_mov_b64 exec, 1")
            E(f"buffer_store_dword v{RDY}, off, s[44:47], s70 offset:128 sc0 sc1")
            E("s_mov_b64 exec, -1")
            g.L(f"{P}NOLEAD")
        if t == o['chk']:
            E("s_lshl_b32 s79, s64, 2")
            E(f"buffer_load_dword v{RDY+2}, off, s[44:47], s79 offset:128 sc0 sc1")
        g.wait_ds(0); inter(Ml(0, t == 0), Rl(s, 1), 1)
        g.wait_ds()
        if t < 24: E("s_barrier")
        if t == 11: stamp(2)
    for m in Ml(1): E(m)
    stamp(3)
    E("s_lshl_b32 s77, s64, 18"); E("s_lshl_b32 s70, s73, 17"); E("s_add_u32 s77, s77, s70")
    E("s_lshl_b32 s70, s65, 13"); E("s_add_u32 s77, s77, s70")
    E("s_lshl_b32 s70, s66, 12"); E("s_add_u32 s77, s77, s70")
    E("s_lshl_b32 s70, s74, 11"); E("s_add_u32 s77, s77, s70")
    def xstores(fl):
        for st in range(4):
            if st: E("s_add_u32 s77, s77, 32768")
            for cp in range(2):
                p = 64 + (st*2+cp)*4
                for h in range(2):
                    a = ACC(2*cp+h, st)
                    E(f"v_cvt_pk_bf16_f32 v{p+2*h}, v{a}, v{a+1}"); E(f"v_cvt_pk_bf16_f32 v{p+2*h+1}, v{a+2}, v{a+3}")
                E(f"buffer_store_dwordx4 v[{p}:{p+3}], v{VX}, s[40:43], s77 offen offset:{cp*1024}{fl}")
    E("s_lshl_b32 s75, s64, 1"); E("s_add_u32 s75, s75, s66"); E("s_lshl_b32 s75, s75, 2"); E("s_add_u32 s75, s75, s72")
    E("s_lshl_b32 s75, s75, 7"); E("s_lshl_b32 s71, s65, 2"); E("s_add_u32 s75, s75, s71"); E(f"s_add_u32 s75, s75, {FLOFF}")
    E("s_waitcnt vmcnt(0)")
    xstores(" sc0 sc1")
    nonce_wait(f"{P}NWC", RDY+2)
    E("s_nop 0"); E(f"v_mov_b32 v{RDY}, s78")
    E("s_waitcnt vmcnt(0)")
    E("s_mov_b64 exec, 1")
    E(f"buffer_store_dword v{RDY}, off, s[40:43], s75 sc0 sc1")
    E("s_mov_b64 exec, -1")
    g.L(f"{P}TAIL")
    if not o.get('st4'): stamp(4)
    E("s_lshl_b32 s77, s64, 18"); E("s_lshl_b32 s71, s67, 15"); E("s_add_u32 s77, s77, s71")
    E("s_lshl_b32 s71, s69, 10"); E("s_add_u32 s77, s77, s71")
    E("v_mov_b32 v200, 0"); E("v_lshlrev_b32 v201, 4, v250")
    E(f"s_mov_b32 s71, {SPIN}")
    g.srd(56, 18, 8192)
    E("s_mov_b32 s79, 0xffff0000")
    for k in range(4):
        E(f"v_lshlrev_b32 v{2*k}, 16, v{B1R+k}"); E(f"v_and_b32 v{2*k+1}, s79, v{B1R+k}")
        E(f"v_lshlrev_b32 v{8+2*k}, 16, v{W2R+k}"); E(f"v_and_b32 v{8+2*k+1}, s79, v{W2R+k}")
    g.srd(60, 16, 2)
    E("v_mov_b32 v48, 0")
    E("buffer_load_short_d16_hi v48, v200, s[60:63], 0 offen")
    for qq in range(1, 4): E(f"s_add_u32 s{71+qq}, s77, {qq*8192}")
    E("v_mov_b32 v40, 0xbdd2d3e8")
    E("s_lshl_b32 s70, s64, 1"); E("s_lshr_b32 s75, s69, 2"); E("s_add_u32 s70, s70, s75"); E("s_lshl_b32 s70, s70, 2")
    E("s_add_u32 s70, s70, s66"); E("s_and_b32 s75, s69, 2"); E("s_add_u32 s70, s70, s75")
    E("s_lshl_b32 s70, s70, 7"); E(f"s_add_u32 s70, s70, {FLOFF}")
    g.L(f"{P}POLL")
    E(f"buffer_load_dwordx4 v[204:207], off, s[40:43], s70{o['pfl']}")
    E("s_sub_u32 s71, s71, 1"); E("s_cmp_eq_u32 s71, 0"); E(f"s_cbranch_scc1 {P}POLLED")
    E("s_waitcnt vmcnt(0)")
    for k in range(4): E(f"v_xor_b32 v{204+k}, s78, v{204+k}")
    E("v_or3_b32 v204, v204, v205, v206"); E("v_or_b32 v204, v204, v207")
    E("v_cmp_ne_u32 vcc, 0, v204"); E(f"s_cbranch_vccnz {P}POLL")
    g.L(f"{P}POLLED")
    if o.get('st4'): stamp(4)
    for qq in range(4):
        E(f"buffer_load_dwordx4 v[{16+4*qq}:{19+4*qq}], v201, s[40:43], s{71+qq if qq else 77} offen{o['lfl']}")
    g.L(f"{P}POLLX")
    E("s_waitcnt vmcnt(0)")
    stamp(5)
    for qq in range(4):
        for k in range(4):
            E(f"v_lshlrev_b32 v{32+2*k}, 16, v{16+4*qq+k}"); E(f"v_and_b32 v{33+2*k}, s79, v{16+4*qq+k}")
        for k in range(8): E(f"v_add_f32 v{k}, v{k}, v{32+k}")
    for k in range(8): E(f"v_mul_f32 v{16+k}, v{k}, v{k}")
    for k in range(8): E(f"v_fmaak_f32 v{16+k}, v{16+k}, v40, 0xc0135761")
    for k in range(8): E(f"v_mul_f32 v{16+k}, v{16+k}, v{k}")
    for k in range(8): E(f"v_exp_f32 v{16+k}, v{16+k}")
    for k in range(8): E(f"v_mul_f32 v{k}, v{k}, v{8+k}")
    for k in range(8): E(f"v_add_f32 v{16+k}, 1.0, v{16+k}")
    for k in range(8): E(f"v_rcp_f32 v{16+k}, v{16+k}")
    E("s_lshl_b32 s70, s69, 8"); E(f"s_add_u32 s70, s70, {RED}")
    E("v_lshlrev_b32 v41, 2, v250"); E("v_add_u32 v42, s70, v41")
    E("v_mul_f32 v24, v0, v16"); E("v_mul_f32 v25, v1, v17")
    for k in range(2, 8): E(f"v_fmac_f32 v{24+(k&1)}, v{k}, v{16+k}")
    E("v_add_f32 v24, v24, v25")
    E("ds_write_b32 v42, v24")
    E("s_waitcnt lgkmcnt(0)")
    E("s_barrier")
    if stamps:
        E("s_cmp_eq_u32 s69, 4"); E(f"s_cbranch_scc1 {P}STAMP")
    E("s_cmp_lg_u32 s69, 0"); E(f"s_cbranch_scc1 {P}END")
    E(f"v_add_u32 v41, {RED}, v41")
    for w in range(9): E(f"ds_read_b32 v{w}, v41 offset:{w*256}")
    E("s_lshl_b32 s70, s67, 4"); E("s_add_u32 s70, s70, s68"); E("s_lshl_b32 s70, s70, 1")
    E("v_lshlrev_b32 v43, 1, v250")
    E("s_waitcnt lgkmcnt(0)")
    for k in range(4): E(f"v_add_f32 v{k}, v{k}, v{k+4}")
    E("v_add_f32 v0, v0, v8"); E("v_add_f32 v1, v1, v2"); E("v_add_f32 v0, v0, v3"); E("v_add_f32 v0, v0, v1")
    E("v_mov_b32 v1, v0"); E("s_nop 1"); E("v_permlane32_swap_b32 v0, v1"); E("s_nop 1"); E("v_add_f32 v0, v0, v1")
    E("v_mov_b32 v1, v0"); E("s_nop 1"); E("v_permlane16_swap_b32 v0, v1"); E("s_nop 1"); E("v_add_f32 v0, v0, v1")
    E("v_add_f32 v0, v0, v48")
    E("v_cvt_pk_bf16_f32 v0, v0, v0")
    E("s_mov_b64 exec, 0xffff")
    E("buffer_store_short v0, v43, s[56:59], s70 offen")
    if stamps:
        E("s_mov_b64 exec, -1")
        g.L(f"{P}STAMP")
        E("s_waitcnt vmcnt(0)")
        stamp(6)
        if stamps == 'dbg':
            E("s_waitcnt lgkmcnt(0)")
            E("s_mov_b64 exec, 1"); E("s_lshl_b32 s71, s69, 3"); E("v_mov_b32 v1, s71")
            E("s_not_b32 s71, s80"); E("v_mov_b32 v2, s71"); E("buffer_atomic_umax v2, v1, s[44:47], 0 offen sc1")
            for k in range(1, 7):
                E(f"v_mov_b32 v{2+k}, s{80+2*k}"); E(f"buffer_atomic_umax v{2+k}, v1, s[44:47], 0 offen offset:{4*k} sc1")
            E(f"v_mov_b32 v10, s80"); E(f"buffer_atomic_umax v10, v1, s[44:47], 0 offen offset:28 sc1")
            E("s_endpgm")
        E("s_mul_i32 s70, s2, 112"); E("s_add_u32 s70, s70, 0x8000000")
        E("s_cmp_eq_u32 s69, 0"); E("s_cselect_b32 s71, 56, 0"); E("s_add_u32 s70, s70, s71")
        E("v_mov_b32 v1, s70")
        E("s_waitcnt lgkmcnt(0)")
        if o.get('clk'):
            E("s_cmp_lg_u32 s69, 0"); E(f"s_cbranch_scc1 {P}NOCLK")
            for k in (2, 3, 1):
                E(f"s_sub_u32 s{80+2*k}, s{80+2*k}, s82"); E(f"s_add_u32 s{80+2*k}, s{80+2*k}, s80"); E(f"s_addc_u32 s{81+2*k}, s81, 0")
            g.L(f"{P}NOCLK")
        E("s_mov_b64 exec, 1")
        for k in range(7):
            E(f"v_mov_b32 v2, s{80+2*k}"); E(f"v_mov_b32 v3, s{81+2*k}")
            E(f"global_store_dwordx2 v1, v[2:3], s[22:23] offset:{8*k}"); E("s_nop 1")
    g.L(f"{P}END")
    E("s_endpgm")
    return "\n".join(x for x in g.l if x is not None) + "\n" + kd(name, vgpr=256)

def official(opts=None, path='standalone__deep_cross_pnn__recsys.s', stamps=False):
    asm = HDR + f"; @launch grid=(256,1,1) block=(512,1,1) lds={LDS}\n" + '.amdgcn_target "amdgcn-amd-amdhsa--gfx950"\n' + gen(NAME, stamps, opts)
    open(path, 'w').write(asm)

def bench(base, variants):
    hdr = []; ks = []
    for nm, op in variants:
        hdr.append(f"; @launch kernel={nm} grid=(256,1,1) block=(512,1,1) lds={LDS}")
        ks.append(gen(nm, True, op))
    asm = "\n".join(hdr) + '\n.amdgcn_target "amdgcn-amd-amdhsa--gfx950"\n' + "\n".join(ks)
    build(asm, base, variants[0][0])
    open(base + ".sh", "w").write("export NST=14\n" + "".join(f"timeout 60 ./run {os.path.basename(base)}.co 1 15 256 {nm}:256:512:{LDS}\n" for nm, _ in variants))

if __name__ == "__main__":
    official(path='v4.s')
    bench('g4', [("g4a_kernel", dict(st4=1)), ("g4n_kernel", dict(st4=1, lfl=' nt'))])
```

```python
import gen4, sys
K='cdna_kernels/'
gen4.official(path=K+'v4.s')
gen4.official(dict(st4=1), path=K+'v4dbg.s', stamps='dbg')
gen4.official(dict(rot=0), path=K+'v4r0.s')
gen4.official(dict(prioC=0), path=K+'v4p0.s')
gen4.official(dict(rot=0, st4=1), path=K+'v4r0dbg.s', stamps='dbg')
```

```python
import sys, os
sys.path.insert(0, 'bench')
from asmlib import kd, build
NAME = "standalone__deep_cross_pnn__recsys_kernel"
HDR = open('standalone__deep_cross_pnn__recsys.s.ref').read().split('; Override')[0]

APS = 22528
def AP(s): return s*APS
BS0 = 3*APS
IDXA = BS0 + 3*16384
IDXP = IDXA + 16384
WP = IDXP + 6400
WP6 = WP + 22*1024
LDSEND = WP6 + 6*256
LDS = 163840
assert LDSEND <= LDS
RED = IDXA
FLOFF = 8 << 20
WSREC = 16 << 20
SPIN = 200000

class G:
    def __init__(s): s.l = []; s.q = []
    def E(s, x): s.l.append("    " + x)
    def L(s, x): s.l.append(x + ":")
    def ds(s, x, tag=None): s.E(x); s.q.append(tag)
    def wait_ds(s, tag=None):
        if tag is None: n = 0
        else:
            c = [i for i, t in enumerate(s.q) if t == tag]
            if not c: return
            n = len(s.q) - 1 - max(c)
        s.E(f"s_waitcnt lgkmcnt({min(n,15)})")
        n = min(n, 15)
        s.q = s.q[len(s.q)-n:] if n else []
    def srd(s, d, p, n):
        s.E(f"s_mov_b32 s{d}, s{p}"); s.E(f"s_mov_b32 s{d+1}, s{p+1}"); s.E(f"s_mov_b32 s{d+2}, {n}"); s.E(f"s_mov_b32 s{d+3}, 0x20000")

def gen(name=NAME, stamps=False, opts=None):
    o = dict(prioL=0, prioC=2, il=1, lead=6, spread=1, dord=1, nopnn=0, nocr=0, nocm=0, nofr=0, chk=22, rot=1, rsel=0, sh=1, lfl=' sc1', pfl=' sc1')
    if opts: o.update(opts)
    g = G(); E = g.E
    P = "L" + name.replace("_kernel", "")[-10:] + "_"
    role = dict(L=True)
    def stamp(k):
        if stamps and o.get('clk') and role['L'] and k in (1, 2, 3): E(f"s_memtime s[{80+2*k}:{81+2*k}]")
        elif stamps: E(f"s_memrealtime s[{80+2*k}:{81+2*k}]")
    g.l.append(f".text\n.globl {name}\n.p2align 8\n.type {name},@function\n{name}:")
    stamp(0)
    E("s_cmp_ge_u32 s2, 256"); E(f"s_cbranch_scc1 {P}END")
    E("s_load_dwordx16 s[4:19], s[0:1], 0"); E("s_load_dwordx4 s[20:23], s[0:1], 64")
    E("v_lshrrev_b32 v1, 6, v0")
    E("s_and_b32 s64, s2, 7"); E("s_lshl_b32 s64, s64, 2")
    E("v_readfirstlane_b32 s69, v1")
    E("s_lshr_b32 s70, s2, 6"); E("s_add_u32 s64, s64, s70")
    E("s_lshr_b32 s67, s2, 3"); E("s_and_b32 s67, s67, 7")
    E("s_and_b32 s65, s67, 3"); E("s_lshr_b32 s66, s67, 2")
    E("s_lshl_b32 s68, s64, 7")
    RB = o['rot']
    def cls(t):
        if t == 0 or not RB: return '0'
        blk = (t-1)//RB
        if blk == 0: return 'A'
        if blk == 24//RB - 1: return 'D'
        return 'B' if blk % 2 == 0 else 'C'
    CV = {'0': (0, 0), 'A': (1, 0), 'D': (-1, 0), 'B': (0, 1), 'C': (0, -1)}
    if RB:
        assert RB in (1, 2)
        E(f"s_lshr_b32 s94, s2, {6 + o['rsel']}"); E("s_xor_b32 s94, s94, s66"); E("s_and_b32 s94, s94, 1")
        if o['sh'] == 0: E("s_mov_b32 s99, s94")
        else:
            if o['sh'] == 1: E("s_and_b32 s70, s65, 1")
            elif o['sh'] == 2: E("s_lshr_b32 s70, s65, 1")
            else: E("s_lshr_b32 s70, s2, 7")
            E("s_and_b32 s70, s70, s94")
            E("s_sub_u32 s94, s94, s70"); E("s_sub_u32 s99, s94, s70")
    E("v_and_b32 v250, 63, v0")
    E("s_cmp_ge_u32 s69, 4"); E(f"s_cbranch_scc1 {P}CSTART")
    B1R, W2R = 224, 232
    def load_b1w2(tmp):
        g.srd(48, 12, 512); g.srd(52, 14, 512)
        E(f"v_lshrrev_b32 v{tmp}, 4, v250"); E(f"v_lshlrev_b32 v{tmp}, 3, v{tmp}")
        E("s_lshl_b32 s71, s72, 7")
        for j in range(4): E(f"buffer_load_dwordx2 v[{B1R+2*j}:{B1R+2*j+1}], v{tmp}, s[48:51], s71 offen offset:{32*j}")
        for j in range(4): E(f"buffer_load_dwordx2 v[{W2R+2*j}:{W2R+2*j+1}], v{tmp}, s[52:55], s71 offen offset:{32*j}")
    VCA0, VCA1, VB0, VB1, VIA, VIP0, VIP1, VP16 = 224, 225, 226, 227, 228, 229, 230, 231
    OFF = 232; VP = 220; SUM = 216; WREG = 208; D = 192; F6 = 238; WA = 246; WA6 = 247
    def F(js, b, h): return ((js*6 + b)*2 + h)*4 if b < 6 else F6 + h*4
    if o['prioL']: E(f"s_setprio {o['prioL']}")
    E("v_lshrrev_b32 v251, 3, v250")
    E("v_and_b32 v252, 7, v250")
    E(f"v_lshlrev_b32 v{VP16}, 4, v252")
    E("v_mul_u32_u24 v253, 400, v251")
    E(f"v_add_u32 v253, v253, v{VP16}")
    E("v_lshlrev_b32 v254, 4, v250")
    E("v_lshrrev_b32 v249, 4, v250")
    E("v_lshlrev_b32 v248, 2, v249")
    E("v_and_b32 v247, 15, v250")
    E("v_xor_b32 v247, v247, v248")
    E("v_lshlrev_b32 v247, 4, v247")
    E(f"v_lshl_add_u32 v{VB0}, v249, 9, v247")
    E(f"v_xor_b32 v{VB1}, 32, v{VB0}")
    E("s_lshl_b32 s73, s69, 12")
    E("s_mul_i32 s74, s69, 1536"); E("s_add_u32 s74, s74, 16384")
    E(f"s_add_u32 s75, s73, {BS0}")
    E("s_mul_i32 s72, s65, 819200"); E("s_lshl_b32 s70, s66, 8"); E("s_add_u32 s72, s72, s70")
    E("s_lshl_b32 s70, s69, 13"); E("s_add_u32 s72, s72, s70")
    if RB:
        E(f"s_mul_i32 s70, s94, {RB*32768}"); E("s_add_u32 s95, s72, s70"); E("s_sub_u32 s96, s72, s70")
        E(f"s_mul_i32 s70, s99, {RB*32768}"); E("s_add_u32 s100, s72, s70"); E("s_sub_u32 s101, s72, s70")
        E(f"s_mul_i32 s97, s94, {RB*4}"); E(f"s_mul_i32 s98, s99, {RB*8}")
        E("s_add_u32 s36, s94, s99"); E(f"s_mul_i32 s36, s36, {RB*4}")
    def SB(t): return {'0': 72, 'A': 95, 'D': 96, 'B': 100, 'C': 101}[cls(t)]
    ist = dict(c='0')
    def idxadj(t):
        tr = ist['c'] + cls(t); ist['c'] = cls(t)
        if tr[0] == tr[1]: return
        sg, sr = {'0A': (1, 97), 'AC': (-1, 36), 'CB': (1, 98), 'BC': (-1, 98), 'BD': (-1, 36)}[tr]
        for v in (VIA, VIP0, VIP1):
            if sg > 0: E(f"v_add_u32 v{v}, s{sr}, v{v}")
            else: E(f"v_subrev_u32 v{v}, s{sr}, v{v}")
    E("s_lshl_b32 s70, s69, 5"); E("s_add_u32 s70, s70, s68"); E("s_mul_i32 s70, s70, 400")
    E("s_mul_i32 s71, s65, 100"); E("s_add_u32 s70, s70, s71")
    E("s_lshl_b32 s77, s67, 4"); E("s_lshl_b32 s78, s69, 2"); E("s_add_u32 s77, s77, s78")
    E("s_add_u32 s78, s77, s68"); E("s_mul_i32 s78, s78, 400")
    E("s_mul_i32 s79, s69, 1600"); E(f"s_add_u32 s79, s79, {IDXP}")
    E("s_waitcnt lgkmcnt(0)")
    g.srd(24, 4, 1638400)
    for j in range(4):
        E(f"s_add_u32 m0, s73, {IDXA + j*1024}")
        if j: E(f"s_add_u32 s70, s70, 3200")
        else: E("s_nop 0")
        E("buffer_load_dwordx4 v253, s[24:27], s70 offen lds")
    E("s_mov_b32 m0, s79"); E("s_nop 0")
    E("buffer_load_dwordx4 v254, s[24:27], s78 offen lds")
    E("s_mov_b32 exec_hi, 15")
    E("buffer_load_dwordx4 v254, s[24:27], s78 offen offset:1024 lds")
    E("s_mov_b32 exec_hi, -1")
    g.srd(32, 10, 3276800)
    def issueB(t):
        s = t % 3
        for ii in range(4):
            E(f"s_add_u32 m0, s75, {s*16384 + ii*1024}")
            E(f"s_add_u32 s70, s{SB(t)}, {t*32768 + ii*2048}")
            E(f"buffer_load_dwordx4 v{VB0 if ii < 2 else VB1}, s[32:35], s70 offen lds")
    def issueA(t, off):
        s = t % 3
        for j in range(4):
            E(f"s_add_u32 m0, s73, {AP(s) + j*1024}"); E("s_nop 0")
            E(f"buffer_load_dwordx4 v{off+j}, s[28:31], 0 offen lds")
        E(f"s_add_u32 m0, s74, {AP(s)}"); E("s_nop 0")
        E(f"buffer_load_dwordx4 v{off+4}, s[28:31], 0 offen lds")
        E(f"s_add_u32 m0, s74, {AP(s) + 1024}"); E("s_mov_b32 exec_hi, 0")
        E(f"buffer_load_dwordx4 v{off+5}, s[28:31], 0 offen lds")
        E("s_mov_b32 exec_hi, -1")
    def rdidx(t, off):
        idxadj(t)
        for j in range(4): g.ds(f"ds_read_b32 v{off+j}, v{VIA} offset:{j*1024 + 4*t}", 'idx')
        g.ds(f"ds_read_b32 v{off+4}, v{VIP0} offset:{4*t}", 'idx')
        g.ds(f"ds_read_b32 v{off+5}, v{VIP1} offset:{4*t}", 'idx')
    def cvidx(off):
        for j in range(4): E(f"v_lshl_add_u32 v{off+j}, v{off+j}, 7, v{VCA0 + (j&1)}")
        for j in (4, 5): E(f"v_lshl_add_u32 v{off+j}, v{off+j}, 7, v{VP16}")
    issueB(0); issueB(1)
    g.srd(28, 6, 12800000)
    E("v_lshrrev_b32 v248, 1, v251"); E("v_xor_b32 v248, v248, v252")
    E(f"v_lshlrev_b32 v{VCA0}, 4, v248"); E(f"v_xor_b32 v{VCA1}, 64, v{VCA0}")
    E(f"v_lshlrev_b32 v{VIA}, 7, v251"); E(f"s_add_u32 s70, s73, {IDXA}"); E(f"v_add_u32 v{VIA}, s70, v{VIA}")
    E("s_movk_i32 s71, 400")
    for k, dst in ((0, VIP0), (1, VIP1)):
        if k == 0: E("v_mov_b32 v246, v251")
        else: E("v_and_b32 v246, 3, v251"); E("v_add_u32 v246, 8, v246")
        E("v_mul_u32_u24 v245, 11, v246"); E("v_lshrrev_b32 v245, 5, v245")
        E("v_mul_u32_u24 v244, 3, v245"); E("v_sub_u32 v244, v246, v244")
        E("v_add_u32 v244, s65, v244"); E("v_add_u32 v244, 1, v244"); E("v_and_b32 v244, 3, v244")
        E("v_mul_u32_u24 v244, 100, v244")
        E(f"v_mad_u32_u24 v{dst}, v245, s71, v244"); E(f"v_add_u32 v{dst}, s79, v{dst}")
    E("v_bfe_u32 v246, v250, 2, 2")
    E("v_cmp_eq_u32 vcc, s65, v246")
    E("v_subrev_u32 v245, s65, v246"); E("v_add_u32 v245, 3, v245"); E("v_and_b32 v245, 3, v245")
    E("v_lshlrev_b32 v245, 7, v245"); E("v_lshl_add_u32 v245, v249, 4, v245"); E("v_add_u32 v245, s74, v245")
    for js in range(4):
        E(f"s_add_u32 s70, s77, {js}"); E("s_lshr_b32 s71, s70, 1"); E("s_and_b32 s71, s71, 7"); E("s_lshl_b32 s70, s70, 7")
        E("v_xor_b32 v244, s71, v249"); E("v_lshlrev_b32 v244, 4, v244"); E("v_add_u32 v244, s70, v244")
        E(f"v_add_u32 v243, {js*384}, v245")
        E(f"v_cndmask_b32 v{VP+js}, v243, v244, vcc")
    for js in range(4): E(f"v_mov_b32 v{SUM+js}, 0")
    E(f"v_add_u32 v{WA}, {WP}, v254")
    E(f"v_lshlrev_b32 v{WA6}, 2, v250"); E(f"v_add_u32 v{WA6}, {WP6}, v{WA6}")
    E("s_waitcnt vmcnt(8)")
    rdidx(0, 0); rdidx(1, 6); g.wait_ds()
    cvidx(0); issueA(0, 0); cvidx(6); issueA(1, 6)
    rdidx(2, OFF); g.wait_ds(); cvidx(OFF)
    E("s_barrier")
    E("s_waitcnt vmcnt(6)")
    E("s_barrier")
    stamp(1)
    sched = {t: [] for t in range(26)}
    sched[1].append((6, 6))
    dfb = o.get('dfb', 5)
    if not o.get('spread'):
        for b in range(6):
            tl = [(6, b)] + [(I, b) for I in range(b+1)]
            st = [4*b+5+k for k in range(4)] if b < dfb else [25]
            for n, x in enumerate(tl): sched[st[n*len(st)//len(tl)]].append(x)
    else:
        allt = [(x, 4*b+5) for b in range(6) for x in [(6, b)] + [(I, b) for I in range(b+1)]]
        nin = o['spread']; last = o.get('last', 24)
        for n, (x, e) in enumerate(allt):
            if n < nin:
                t = max(e, 5 + (n*(last-4))//nin)
                sched[min(t, 25)].append(x)
            else: sched[25].append(x)
    state = dict(pend=None, wsel=0)
    def wread(I, J):
        w = WREG + 4*state['wsel']; state['wsel'] ^= 1
        if I < 6: g.ds(f"ds_read_b128 v[{w}:{w+3}], v{WA} offset:{(J*(J+1)//2 + I)*1024}", ('w', I, J))
        elif J == 6: g.ds(f"ds_read_b128 v[{w}:{w+3}], v{WA} offset:{21*1024}", ('w', I, J))
        else: g.ds(f"ds_read_b32 v{w}, v{WA6} offset:{J*256}", ('w', I, J))
        return w
    def fm(js, p):
        I, J, w = p
        if I < 6:
            for r in range(4): E(f"v_fmac_f32 v{SUM+js}, v{D+4*js+r}, v{w+r}")
            return 4
        if J == 6: E(f"v_fmac_f32 v{SUM+js}, v{D+js}, v{w+js}")
        else: E(f"v_fmac_f32 v{SUM+js}, v{D+4*js+js}, v{w}")
        return 1
    def mm(js, I, J):
        d = D + 4*js
        E(f"v_mfma_f32_16x16x32_bf16 v[{d}:{d+3}], v[{F(js,I,0)}:{F(js,I,0)+3}], v[{F(js,J,0)}:{F(js,J,0)+3}], 0")
        E(f"v_mfma_f32_16x16x32_bf16 v[{d}:{d+3}], v[{F(js,I,1)}:{F(js,I,1)+3}], v[{F(js,J,1)}:{F(js,J,1)+3}], v[{d}:{d+3}]")
    def tiles(tl):
        for (I, J) in tl:
            w = wread(I, J)
            pend = state['pend']
            if pend is not None: g.wait_ds(('w', pend[0], pend[1]))
            if pend is not None and pend[:2] == (6, 6):
                E("s_nop 7")
                for js in range(4): fm(js, pend)
                pend = None
            for js in range(4):
                if pend is not None: fm(js, pend)
                if (I, J) != (6, 6) or js == 0: mm(js, I, J)
            E("s_nop 1")
            state['pend'] = (I, J, w)
    def flush():
        pend = state['pend']
        g.wait_ds(('w', pend[0], pend[1]))
        E("s_nop 3")
        for js in range(4):
            fm(js, pend)
            if js < 3: E("s_nop 1")
        state['pend'] = None
    OFFS = [[232, 233, 234, 235, 236, 237], [248, 249, 251, 252, 253, 255]]
    def dma_items(t, off):
        s = t % 3; it = []
        def mkB(ii):
            def f():
                E(f"s_add_u32 m0, s75, {s*16384 + ii*1024}")
                E(f"s_add_u32 s70, s{SB(t)}, {t*32768 + ii*2048}")
                E(f"buffer_load_dwordx4 v{VB0 if ii < 2 else VB1}, s[32:35], s70 offen lds")
            return f
        def mkA(j):
            def f():
                if j < 4: E(f"s_add_u32 m0, s73, {AP(s) + j*1024}"); E("s_nop 0")
                elif j == 4: E(f"s_add_u32 m0, s74, {AP(s)}"); E("s_nop 0")
                else: E(f"s_add_u32 m0, s74, {AP(s) + 1024}"); E("s_mov_b32 exec_hi, 0")
                E(f"buffer_load_dwordx4 v{off[j]}, s[28:31], 0 offen lds")
                if j == 5: E("s_mov_b32 exec_hi, -1")
            return f
        Bs = [mkB(i) for i in range(4)]; As = [mkA(j) for j in range(6)]
        if o['dord'] == 0: return Bs + As
        if o['dord'] == 1: return As + Bs
        return [As[0], Bs[0], As[1], Bs[1], As[2], Bs[2], As[3], Bs[3], As[4], As[5]]
    def rdidx2(t, off):
        idxadj(t)
        for j in range(4): g.ds(f"ds_read_b32 v{off[j]}, v{VIA} offset:{j*1024 + 4*t}", 'idx')
        g.ds(f"ds_read_b32 v{off[4]}, v{VIP0} offset:{4*t}", 'idx')
        g.ds(f"ds_read_b32 v{off[5]}, v{VIP1} offset:{4*t}", 'idx')
    def cvidx2(off):
        for j in range(4): E(f"v_lshl_add_u32 v{off[j]}, v{off[j]}, 7, v{VCA0 + (j&1)}")
        for j in (4, 5): E(f"v_lshl_add_u32 v{off[j]}, v{off[j]}, 7, v{VP16}")
    def tile_items(tl):
        it = []
        for (I, J) in tl:
            loc = {}
            def head(I=I, J=J, loc=loc):
                loc['w'] = wread(I, J)
                pend = state['pend']
                if pend is not None: g.wait_ds(('w', pend[0], pend[1]))
                if pend is not None and pend[:2] == (6, 6):
                    E("s_nop 7")
                    for js in range(4): fm(js, pend)
                    pend = None
                loc['pend'] = pend
            def part(js, I=I, J=J, loc=loc, head=head):
                if js == 0: head()
                if loc['pend'] is not None: fm(js, loc['pend'])
                if (I, J) != (6, 6) or js == 0: mm(js, I, J)
                if js == 3:
                    E("s_nop 1"); state['pend'] = (I, J, loc['w'])
            for js in range(4): it.append(lambda js=js, part=part: part(js))
        return it
    for t in range(25):
        s = t % 3
        dm = dma_items(t+2, OFFS[t & 1]) if t + 2 <= 24 else []
        wk = []
        def frag(half, t=t, s=s):
            if t == 0:
                for js in (2*half, 2*half+1): E(f"v_xor_b32 v{D+js}, 64, v{VP+js}")
                for js in (2*half, 2*half+1):
                    m = 0x11111111 << js
                    E(f"s_mov_b32 exec_lo, {m:#x}"); E(f"s_mov_b32 exec_hi, {m:#x}")
                    g.ds(f"ds_read_b128 v[{F6}:{F6+3}], v{VP+js} offset:{AP(s)}", 'pf')
                    g.ds(f"ds_read_b128 v[{F6+4}:{F6+7}], v{D+js} offset:{AP(s)}", 'pf')
            else:
                b = (t-1) >> 2; u = (t-1) & 3
                m = 0x11111111 << u
                E(f"s_mov_b32 exec_lo, {m:#x}"); E(f"s_mov_b32 exec_hi, {m:#x}")
                for js in (2*half, 2*half+1):
                    f0 = F(js, b, 0); f1 = F(js, b, 1)
                    E(f"v_xor_b32 v{f1}, 64, v{VP+js}")
                    g.ds(f"ds_read_b128 v[{f0}:{f0+3}], v{VP+js} offset:{AP(s)}", 'pf')
                    g.ds(f"ds_read_b128 v[{f1}:{f1+3}], v{f1} offset:{AP(s)}", 'pf')
            E("s_mov_b64 exec, -1")
        if t + 3 <= 24: wk.append(lambda t=t: rdidx2(t+3, OFFS[(t+1) & 1]))
        if not o['nofr']: wk.append(lambda: frag(0)); wk.append(lambda: frag(1))
        if not o['nopnn']: wk += tile_items(sched[t])
        if t + 3 <= 24:
            def cvl(t=t): g.wait_ds('idx'); cvidx2(OFFS[(t+1) & 1])
            wk.append(cvl)
        if not o['il']:
            for f in dm + wk: f()
        else:
            lead = o['lead']; nd = len(dm); nw = len(wk)
            seq = dm[:lead]; rest = dm[lead:]
            k = 0
            for i, w in enumerate(wk):
                seq.append(w)
                tgt = ((i+1) * len(rest)) // nw if o['il'] == 1 else min(len(rest), (i+1)*o['il'] - (i+1))
                while k < tgt: seq.append(rest[k]); k += 1
            seq += rest[k:]
            for f in seq: f()
        g.wait_ds()
        if t < 24:
            E(f"s_waitcnt vmcnt({(10 + 10*o.get('deep', 0)) if t + 2 <= 24 else 0})")
            E("s_barrier")
            if t == 11: stamp(2)
    stamp(3)
    if not o['nopnn']: tiles(sched[25]); flush()
    E("s_nop 1")
    for sh in (1, 2, 4, 8):
        for js in range(4): E(f"v_add_f32_dpp v{SUM+js}, v{SUM+js}, v{SUM+js} row_shr:{sh} row_mask:0xf bank_mask:0xf bound_ctrl:1")
    E("v_lshrrev_b32 v248, 4, v250"); E("v_lshlrev_b32 v248, 6, v248")
    E("s_lshl_b32 s70, s69, 4"); E(f"s_add_u32 s70, s70, {RED + 2048}")
    E("v_add_u32 v248, s70, v248")
    E("s_mov_b32 exec_lo, 0x80008000"); E("s_mov_b32 exec_hi, 0x80008000")
    E(f"ds_write_b128 v248, v[{SUM}:{SUM+3}]")
    E("s_mov_b64 exec, -1")
    E("s_waitcnt lgkmcnt(0)")
    stamp(4)
    E("s_barrier")
    if stamps:
        stamp(5); g.srd(44, 20, 256)
        E("s_cmp_eq_u32 s69, 0"); E(f"s_cbranch_scc1 {P}STAMP")
    E("s_endpgm")
    def nonce_wait(lbl, vr):
        E(f"v_readfirstlane_b32 s78, v{vr}")
        E("s_cmp_lg_u32 s78, 0"); E(f"s_cbranch_scc1 {lbl}_x")
        E(f"s_mov_b32 s71, {SPIN}"); E("s_lshl_b32 s79, s64, 2")
        g.L(lbl)
        E(f"buffer_load_dword v{vr}, off, s[44:47], s79 offset:128 sc0 sc1")
        E("s_waitcnt vmcnt(0)")
        E(f"v_readfirstlane_b32 s78, v{vr}")
        E("s_sub_u32 s71, s71, 1"); E("s_cmp_eq_u32 s71, 0"); E(f"s_cbranch_scc1 {lbl}_x")
        E("s_cmp_eq_u32 s78, 0"); E(f"s_cbranch_scc1 {lbl}")
        g.L(lbl + "_x")
    g.q = []; role['L'] = False
    g.L(f"{P}CSTART")
    if o['prioC']: E(f"s_setprio {o['prioC']}")
    VA = 128; VBR = 130; VX = 134; CLR = 136; RDY = 150
    def FA(ks, st): return 64 + ks*32 + st*4
    def FB(ks, nt): return 64 + ks*32 + 16 + nt*4
    def ACC(nt, st): return (st*4 + nt)*4
    E("s_sub_u32 s72, s69, 4")
    E("s_and_b32 s73, s72, 1"); E("s_lshr_b32 s74, s72, 1")
    E("v_lshlrev_b32 v254, 4, v250")
    E("s_mul_i32 s70, s72, 5120")
    E("s_memrealtime s[96:97]")
    E("s_waitcnt lgkmcnt(0)")
    g.srd(36, 8, 20000)
    for i in range(5):
        E(f"s_add_u32 m0, s70, {AP(2) + i*1024}"); E(f"s_add_u32 s71, s70, {i*1024}")
        E("buffer_load_dwordx4 v254, s[36:39], s71 offen lds")
    g.srd(40, 22, WSREC); g.srd(44, 20, 256)
    load_b1w2(248)
    E("v_and_b32 v140, 15, v250"); E("v_lshrrev_b32 v141, 4, v250"); E("v_bfe_u32 v142, v250, 1, 3")
    E("v_xor_b32 v142, v141, v142"); E("v_lshlrev_b32 v142, 4, v142"); E("v_lshl_add_u32 v142, v140, 7, v142")
    E("s_lshl_b32 s70, s73, 13"); E(f"v_add_u32 v{VA}, s70, v142"); E(f"v_xor_b32 v{VA+1}, 64, v{VA}")
    E("v_bfe_u32 v142, v250, 2, 2")
    E("v_lshl_add_u32 v143, v141, 3, v142"); E("v_lshlrev_b32 v143, 8, v143")
    E("v_bfe_u32 v144, v250, 1, 1"); E("s_lshl_b32 s70, s74, 3"); E("v_or_b32 v144, s70, v144")
    E("v_lshlrev_b32 v142, 2, v142"); E("v_xor_b32 v144, v144, v142")
    E("v_and_b32 v142, 1, v141"); E("v_lshlrev_b32 v142, 1, v142"); E("v_xor_b32 v144, v144, v142")
    E("v_lshl_add_u32 v143, v144, 4, v143")
    E("v_and_b32 v144, 1, v250"); E("v_lshl_add_u32 v143, v144, 3, v143")
    for nt in range(4):
        E(f"v_xor_b32 v142, {nt*32}, v143"); E(f"v_add_u32 v{VBR+nt}, {BS0}, v142")
    E(f"v_lshlrev_b32 v{VX}, 4, v250")
    E("v_lshrrev_b32 v140, 4, v250")
    E("v_bfe_u32 v141, v250, 2, 2"); E("v_mul_u32_u24 v141, 25, v141")
    E("v_and_b32 v142, 3, v250")
    E("v_add_u32 v144, v141, v142")
    E("v_mul_u32_u24 v143, 5000, v140"); E(f"v_add_u32 v143, {AP(2)}, v143")
    E("v_lshl_add_u32 v147, v141, 1, v143")
    E("v_mul_u32_u24 v141, 50, v140"); E(f"v_add_u32 v141, {AP(2)}, v141")
    def var(J): return 1 if not RB else (0 if J == 0 else 2 if J == 5 else 1)
    JL = {0: 152, 1: 153, 2: 154}; BA1 = {0: 155, 1: 145, 2: 156}; BA2 = {0: 157, 1: 146, 2: 158}
    if RB:
        E(f"s_mul_i32 s70, s94, {RB}"); E(f"s_mul_i32 s71, s99, {RB}")
        lo = {1: 0x55555555, 2: 0x33333333}[RB]; fa = {1: 0x11111111, 2: 0x33333333}[RB]; fd = {1: 0x88888888, 2: 0xcccccccc}[RB]
        E("v_add_u32 v159, s71, v144"); E("v_subrev_u32 v160, s71, v144")
        E(f"s_mov_b32 vcc_lo, {lo:#x}"); E(f"s_mov_b32 vcc_hi, {lo:#x}")
        E(f"v_cndmask_b32 v{JL[1]}, v160, v159, vcc")
        E("v_add_u32 v159, s70, v144"); E("v_subrev_u32 v160, s70, v144")
        E(f"s_mov_b32 vcc_lo, {fa:#x}"); E(f"s_mov_b32 vcc_hi, {fa:#x}")
        E(f"v_cndmask_b32 v{JL[0]}, v{JL[1]}, v159, vcc")
        E(f"s_mov_b32 vcc_lo, {fd:#x}"); E(f"s_mov_b32 vcc_hi, {fd:#x}")
        E(f"v_cndmask_b32 v{JL[2]}, v{JL[1]}, v160, vcc")
    else: E(f"v_mov_b32 v{JL[1]}, v144")
    E("s_movk_i32 s75, 200")
    for vr in ((0, 1, 2) if RB else (1,)):
        E(f"v_lshl_add_u32 v{BA1[vr]}, v{JL[vr]}, 1, v143")
        E(f"v_mad_i32_i24 v{BA2[vr]}, v{JL[vr]}, s75, v141")
    E(f"v_add_u32 v148, {WP}, v254")
    E(f"v_lshlrev_b32 v149, 2, v250"); E(f"v_add_u32 v149, {WP6}, v149")
    wb_ = {}
    if RB:
        E(f"s_mul_i32 s75, s94, {200*RB}"); E(f"s_mul_i32 s76, s99, {200*RB}"); E(f"s_mul_i32 s77, s94, {2*RB}"); E(f"s_mul_i32 s78, s99, {2*RB}")
        keys = []
        for J in range(6):
            for I in range(J+1):
                for k in range(4):
                    c = cls(1+4*I+k)
                    for w in ((1, 2) if I < J else (1,)):
                        if (w, var(J), c) not in keys: keys.append((w, var(J), c))
        nx = 64
        for (w, vr, c) in keys:
            ca, cb = CV[c]; sr = (75 if ca else 76) + (2 if w == 2 else 0)
            src = (BA1 if w == 1 else BA2)[vr]
            if ca + cb > 0: E(f"v_add_u32 v{nx}, s{sr}, v{src}")
            else: E(f"v_subrev_u32 v{nx}, s{sr}, v{src}")
            wb_[(w, vr, c)] = nx; nx += 1
        assert nx <= 128
    def B1(tr, J): return BA1[var(J)] if cls(tr) == '0' else wb_[(1, var(J), cls(tr))]
    def B2(tr, J): return BA2[var(J)] if cls(tr) == '0' else wb_[(2, var(J), cls(tr))]
    for r in range(56): E(f"v_mov_b32 v{r}, 0")
    E("s_waitcnt vmcnt(8)")
    E("s_barrier")
    big = [(I, J) for J in range(6) for I in range(J+1)] + [(6, 6)]
    for cw in range(4):
        if cw < 3: E(f"s_cmp_lg_u32 s72, {cw}"); E(f"s_cbranch_scc1 {P}WB{cw+1}")
        mine = [(n, t) for n, t in enumerate(big) if n % 4 == cw]
        small = [J for J in range(6) if cw >= 2 and J % 2 == cw % 2]
        r = 0; plan = []
        for n, (I, J) in mine:
            if I == 6:
                E(f"ds_read_u16_d16_hi v{r}, v147"); plan.append((n, I, J, r)); r += 1; continue
            for k in range(4): E(f"ds_read_u16_d16_hi v{r+k}, v{B1(1+4*I+k, J)} offset:{200*(1+4*I+k) + 2*(1+4*J)}")
            if I < J:
                for k in range(4): E(f"ds_read_u16_d16_hi v{r+4+k}, v{B2(1+4*I+k, J)} offset:{200*(1+4*J) + 2*(1+4*I+k)}")
            plan.append((n, I, J, r)); r += 8
        sp = []
        for J in small:
            E(f"ds_read_u16_d16_hi v{r}, v{B1(0, J)} offset:{2*(1+4*J)}"); E(f"ds_read_u16_d16_hi v{r+1}, v{B2(0, J)} offset:{200*(1+4*J)}")
            sp.append((J, r)); r += 2
        assert r <= 56
        E("s_waitcnt lgkmcnt(0)")
        for n, I, J, r in plan:
            if I == 6:
                for k in range(4):
                    m = 0x11111111 << k
                    E(f"s_mov_b32 vcc_lo, {m:#x}"); E(f"s_mov_b32 vcc_hi, {m:#x}")
                    E(f"v_cndmask_b32 v{60+k}, 0, v{r}, vcc")
                E(f"ds_write_b128 v148, v[60:63] offset:{n*1024}")
                continue
            if I < J:
                for k in range(4): E(f"v_add_f32 v{r+k}, v{r+k}, v{r+4+k}")
            E(f"ds_write_b128 v148, v[{r}:{r+3}] offset:{n*1024}")
        for J, r in sp:
            E(f"v_add_f32 v{r}, v{r}, v{r+1}"); E(f"ds_write_b32 v149, v{r} offset:{J*256}")
        if cw < 3: E(f"s_branch {P}WBDONE"); g.L(f"{P}WB{cw+1}")
    g.L(f"{P}WBDONE")
    E("s_waitcnt lgkmcnt(0)")
    E("s_barrier")
    stamp(1)
    def Rl(s, ks):
        la = [f"ds_read_b128 v[{FA(ks,st)}:{FA(ks,st)+3}], v{VA+ks} offset:{AP(s) + st*2048}" for st in range(4)]
        lb = [[f"ds_read_b64_tr_b16 v[{FB(ks,nt)+2*hf}:{FB(ks,nt)+2*hf+1}], v{VBR+nt} offset:{s*16384 + ks*8192 + hf*1024}" for hf in range(2)] for nt in range(4)]
        if o['nocr'] == 1: return []
        return [la[0]] + lb[0] + [la[1]] + lb[1] + [la[2]] + lb[2] + [la[3]] + lb[3]
    MORD = [(0,0),(0,1),(1,0),(1,1),(0,2),(1,2),(2,0),(2,1),(2,2),(0,3),(1,3),(2,3),(3,0),(3,1),(3,2),(3,3)]
    def Ml(ks, first=False):
        l = []
        for nt, st in MORD:
            a = ACC(nt, st)
            l.append(f"v_mfma_f32_16x16x32_bf16 v[{a}:{a+3}], v[{FB(ks,nt)}:{FB(ks,nt)+3}], v[{FA(ks,st)}:{FA(ks,st)+3}], " + ("0" if first else f"v[{a}:{a+3}]"))
        if o['nocm']: return ["s_nop 0"]*16
        return l
    def inter(ms, rs, tag):
        for i, m in enumerate(ms):
            E(m)
            if i < len(rs): g.ds(rs[i], tag)
    for t in range(25):
        s = t % 3
        if t == 0:
            for x in Rl(s, 0): g.ds(x, 0)
        else: inter(Ml(1), Rl(s, 0), 0)
        if t == 1:
            E("s_or_b32 s70, s72, s67"); E("s_cmp_lg_u32 s70, 0"); E(f"s_cbranch_scc1 {P}NOLEAD")
            E("s_lshl_b32 s70, s64, 2")
            E("s_or_b32 s96, s96, 1"); E(f"v_mov_b32 v{RDY}, s96")
            E("s_mov_b64 exec, 1")
            E(f"buffer_store_dword v{RDY}, off, s[44:47], s70 offset:128 sc0 sc1")
            E("s_mov_b64 exec, -1")
            g.L(f"{P}NOLEAD")
        if t == o['chk']:
            E("s_lshl_b32 s79, s64, 2")
            E(f"buffer_load_dword v{RDY+2}, off, s[44:47], s79 offset:128 sc0 sc1")
        g.wait_ds(0); inter(Ml(0, t == 0), Rl(s, 1), 1)
        g.wait_ds()
        if t < 24: E("s_barrier")
        if t == 11: stamp(2)
    for m in Ml(1): E(m)
    stamp(3)
    E("s_lshl_b32 s77, s64, 18"); E("s_lshl_b32 s70, s73, 17"); E("s_add_u32 s77, s77, s70")
    E("s_lshl_b32 s70, s65, 13"); E("s_add_u32 s77, s77, s70")
    E("s_lshl_b32 s70, s66, 12"); E("s_add_u32 s77, s77, s70")
    E("s_lshl_b32 s70, s74, 11"); E("s_add_u32 s77, s77, s70")
    def xstores(fl):
        for st in range(4):
            if st: E("s_add_u32 s77, s77, 32768")
            for cp in range(2):
                p = 64 + (st*2+cp)*4
                for h in range(2):
                    a = ACC(2*cp+h, st)
                    E(f"v_cvt_pk_bf16_f32 v{p+2*h}, v{a}, v{a+1}"); E(f"v_cvt_pk_bf16_f32 v{p+2*h+1}, v{a+2}, v{a+3}")
                E(f"buffer_store_dwordx4 v[{p}:{p+3}], v{VX}, s[40:43], s77 offen offset:{cp*1024}{fl}")
    E("s_lshl_b32 s75, s64, 1"); E("s_add_u32 s75, s75, s66"); E("s_lshl_b32 s75, s75, 2"); E("s_add_u32 s75, s75, s72")
    E("s_lshl_b32 s75, s75, 7"); E("s_lshl_b32 s71, s65, 2"); E("s_add_u32 s75, s75, s71"); E(f"s_add_u32 s75, s75, {FLOFF}")
    E("s_waitcnt vmcnt(0)")
    xstores(" sc0 sc1")
    nonce_wait(f"{P}NWC", RDY+2)
    E("s_nop 0"); E(f"v_mov_b32 v{RDY}, s78")
    E("s_waitcnt vmcnt(0)")
    E("s_mov_b64 exec, 1")
    E(f"buffer_store_dword v{RDY}, off, s[40:43], s75 sc0 sc1")
    E("s_mov_b64 exec, -1")
    if not o.get('st4'): stamp(4)
    E("s_lshl_b32 s77, s64, 18"); E("s_lshl_b32 s71, s67, 15"); E("s_add_u32 s77, s77, s71")
    E("s_lshl_b32 s71, s72, 11"); E("s_add_u32 s77, s77, s71")
    E("v_mov_b32 v200, 0")
    E(f"s_mov_b32 s71, {SPIN}")
    E("s_lshl_b32 s70, s64, 1"); E("s_lshr_b32 s75, s72, 1"); E("s_add_u32 s70, s70, s75"); E("s_lshl_b32 s70, s70, 2")
    E("s_add_u32 s70, s70, s66"); E("s_and_b32 s75, s72, 1"); E("s_lshl_b32 s75, s75, 1"); E("s_add_u32 s70, s70, s75")
    E("s_lshl_b32 s70, s70, 7"); E(f"s_add_u32 s70, s70, {FLOFF}")
    E(f"buffer_load_dwordx4 v[204:207], off, s[40:43], s70{o['pfl']}")
    g.srd(56, 18, 8192)
    E("s_mov_b32 s79, 0xffff0000")
    for k in range(8):
        E(f"v_lshlrev_b32 v{2*k}, 16, v{B1R+k}"); E(f"v_and_b32 v{2*k+1}, s79, v{B1R+k}")
        E(f"v_lshlrev_b32 v{16+2*k}, 16, v{W2R+k}"); E(f"v_and_b32 v{16+2*k+1}, s79, v{W2R+k}")
    g.srd(60, 16, 2)
    E("v_mov_b32 v96, 0")
    for qq in range(1, 4): E(f"s_add_u32 s{73+qq}, s77, {qq*8192}")
    E("v_mov_b32 v97, 0xbdd2d3e8")
    E(f"s_branch {P}POLLT")
    g.L(f"{P}POLL")
    E(f"buffer_load_dwordx4 v[204:207], off, s[40:43], s70{o['pfl']}")
    g.L(f"{P}POLLT")
    E("s_sub_u32 s71, s71, 1"); E("s_cmp_eq_u32 s71, 0"); E(f"s_cbranch_scc1 {P}POLLED")
    E("s_waitcnt vmcnt(0)")
    for k in range(4): E(f"v_xor_b32 v{204+k}, s78, v{204+k}")
    E("v_or3_b32 v204, v204, v205, v206"); E("v_or_b32 v204, v204, v207")
    E("v_cmp_ne_u32 vcc, 0, v204"); E(f"s_cbranch_vccnz {P}POLL")
    g.L(f"{P}POLLED")
    if o.get('st4'): stamp(4)
    for qq in range(4):
        for cp in range(2):
            r = 32 + 8*qq + 4*cp
            E(f"buffer_load_dwordx4 v[{r}:{r+3}], v{VX}, s[40:43], s{73+qq if qq else 77} offen offset:{cp*1024}{o['lfl']}")
    E("buffer_load_short_d16_hi v96, v200, s[60:63], 0 offen")
    for qq in range(4):
        E(f"s_waitcnt vmcnt({7 - 2*qq})")
        if qq == 3: stamp(5)
        for k in range(8):
            E(f"v_lshlrev_b32 v{64+2*k}, 16, v{32+8*qq+k}"); E(f"v_and_b32 v{65+2*k}, s79, v{32+8*qq+k}")
        for k in range(16): E(f"v_add_f32 v{k}, v{k}, v{64+k}")
    N = 16
    for k in range(N): E(f"v_mul_f32 v{64+k}, v{k}, v{k}")
    for k in range(N): E(f"v_fmaak_f32 v{64+k}, v{64+k}, v97, 0xc0135761")
    for k in range(N): E(f"v_mul_f32 v{64+k}, v{64+k}, v{k}")
    for k in range(N): E(f"v_exp_f32 v{64+k}, v{64+k}")
    for k in range(N): E(f"v_mul_f32 v{k}, v{k}, v{16+k}")
    for k in range(N): E(f"v_add_f32 v{64+k}, 1.0, v{64+k}")
    for k in range(N): E(f"v_rcp_f32 v{64+k}, v{64+k}")
    E("s_lshl_b32 s70, s72, 8"); E(f"s_add_u32 s70, s70, {RED}")
    E("v_lshlrev_b32 v98, 2, v250"); E("v_add_u32 v99, s70, v98")
    for k in range(4): E(f"v_mul_f32 v{80+k}, v{k}, v{64+k}")
    for k in range(4, N): E(f"v_fmac_f32 v{80+(k&3)}, v{k}, v{64+k}")
    E("v_add_f32 v80, v80, v81"); E("v_add_f32 v82, v82, v83"); E("v_add_f32 v80, v80, v82")
    E("ds_write_b32 v99, v80")
    E("s_waitcnt lgkmcnt(0)")
    E("s_barrier")
    E("s_cmp_lg_u32 s72, 0"); E(f"s_cbranch_scc1 {P}END")
    E(f"v_add_u32 v98, {RED}, v98")
    for w in range(4): E(f"ds_read_b32 v{w}, v98 offset:{w*256}")
    E("ds_read_b32 v4, v98 offset:2048")
    E("s_lshl_b32 s70, s67, 4"); E("s_add_u32 s70, s70, s68"); E("s_lshl_b32 s70, s70, 1")
    E("v_lshlrev_b32 v43, 1, v250")
    E("s_waitcnt vmcnt(0) lgkmcnt(0)")
    E("v_add_f32 v0, v0, v1"); E("v_add_f32 v2, v2, v3"); E("v_add_f32 v0, v0, v4"); E("v_add_f32 v0, v0, v2")
    E("v_mov_b32 v1, v0"); E("s_nop 1"); E("v_permlane32_swap_b32 v0, v1"); E("s_nop 1"); E("v_add_f32 v0, v0, v1")
    E("v_mov_b32 v1, v0"); E("s_nop 1"); E("v_permlane16_swap_b32 v0, v1"); E("s_nop 1"); E("v_add_f32 v0, v0, v1")
    E("v_add_f32 v0, v0, v96")
    E("v_cvt_pk_bf16_f32 v0, v0, v0")
    E("s_mov_b64 exec, 0xffff")
    E("buffer_store_short v0, v43, s[56:59], s70 offen")
    if stamps:
        E("s_mov_b64 exec, -1")
        g.L(f"{P}STAMP")
        E("s_waitcnt vmcnt(0)")
        stamp(6)
        if stamps == 'dbg':
            E("s_waitcnt lgkmcnt(0)")
            E("s_mov_b64 exec, 1"); E("s_lshl_b32 s71, s69, 3"); E("v_mov_b32 v1, s71")
            E("s_not_b32 s71, s80"); E("v_mov_b32 v2, s71"); E("buffer_atomic_umax v2, v1, s[44:47], 0 offen sc1")
            for k in range(1, 7):
                E(f"v_mov_b32 v{2+k}, s{80+2*k}"); E(f"buffer_atomic_umax v{2+k}, v1, s[44:47], 0 offen offset:{4*k} sc1")
            E(f"v_mov_b32 v10, s80"); E(f"buffer_atomic_umax v10, v1, s[44:47], 0 offen offset:28 sc1")
            E("s_endpgm")
        E("s_mul_i32 s70, s2, 112"); E("s_add_u32 s70, s70, 0x8000000")
        E("s_cmp_eq_u32 s69, 0"); E("s_cselect_b32 s71, 56, 0"); E("s_add_u32 s70, s70, s71")
        E("v_mov_b32 v1, s70")
        E("s_waitcnt lgkmcnt(0)")
        if o.get('clk'):
            E("s_cmp_lg_u32 s69, 0"); E(f"s_cbranch_scc1 {P}NOCLK")
            for k in (2, 3, 1):
                E(f"s_sub_u32 s{80+2*k}, s{80+2*k}, s82"); E(f"s_add_u32 s{80+2*k}, s{80+2*k}, s80"); E(f"s_addc_u32 s{81+2*k}, s81, 0")
            g.L(f"{P}NOCLK")
        E("s_mov_b64 exec, 1")
        for k in range(7):
            E(f"v_mov_b32 v2, s{80+2*k}"); E(f"v_mov_b32 v3, s{81+2*k}")
            E(f"global_store_dwordx2 v1, v[2:3], s[22:23] offset:{8*k}"); E("s_nop 1")
    g.L(f"{P}END")
    E("s_endpgm")
    return "\n".join(x for x in g.l if x is not None) + "\n" + kd(name, vgpr=256)

def official(opts=None, path='standalone__deep_cross_pnn__recsys.s', stamps=False):
    asm = HDR + f"; @launch grid=(256,1,1) block=(512,1,1) lds={LDS}\n" + '.amdgcn_target "amdgcn-amd-amdhsa--gfx950"\n' + gen(NAME, stamps, opts)
    open(path, 'w').write(asm)

def bench(base, variants):
    hdr = []; ks = []
    for nm, op in variants:
        hdr.append(f"; @launch kernel={nm} grid=(256,1,1) block=(512,1,1) lds={LDS}")
        ks.append(gen(nm, True, op))
    asm = "\n".join(hdr) + '\n.amdgcn_target "amdgcn-amd-amdhsa--gfx950"\n' + "\n".join(ks)
    build(asm, base, variants[0][0])
    open(base + ".sh", "w").write("export NST=14\n" + "".join(f"timeout 60 ./run {os.path.basename(base)}.co 1 15 256 {nm}:256:512:{LDS}\n" for nm, _ in variants))

if __name__ == "__main__":
    official(path='v5.s')
    bench('g5', [("g5a_kernel", dict(st4=1))])
```

```python
import sys, os
sys.path.insert(0, 'bench')
from asmlib import kd, build
NAME = "standalone__deep_cross_pnn__recsys_kernel"
HDR = open('standalone__deep_cross_pnn__recsys.s.ref').read().split('; Override')[0]

APS = 22528
def AP(s): return s*APS
BS0 = 3*APS
IDXA = BS0 + 3*16384
IDXP = IDXA + 16384
WP = IDXP + 6400
WP6 = WP + 22*1024
LDSEND = WP6 + 6*256
LDS = 163840
assert LDSEND <= LDS
RED = IDXA
FLOFF = 8 << 20
WSREC = 16 << 20
SPIN = 200000

class G:
    def __init__(s): s.l = []; s.q = []
    def E(s, x): s.l.append("    " + x)
    def L(s, x): s.l.append(x + ":")
    def ds(s, x, tag=None): s.E(x); s.q.append(tag)
    def wait_ds(s, tag=None):
        if tag is None: n = 0
        else:
            c = [i for i, t in enumerate(s.q) if t == tag]
            if not c: return
            n = len(s.q) - 1 - max(c)
        s.E(f"s_waitcnt lgkmcnt({min(n,15)})")
        n = min(n, 15)
        s.q = s.q[len(s.q)-n:] if n else []
    def srd(s, d, p, n):
        s.E(f"s_mov_b32 s{d}, s{p}"); s.E(f"s_mov_b32 s{d+1}, s{p+1}"); s.E(f"s_mov_b32 s{d+2}, {n}"); s.E(f"s_mov_b32 s{d+3}, 0x20000")

def gen(name=NAME, stamps=False, opts=None):
    o = dict(prioL=0, prioC=2, il=1, lead=6, spread=1, dord=1, nopnn=0, nocr=0, nocm=0, nofr=0, chk=22, rot=1, rsel=0, sh=1, lfl=' sc1', pfl=' sc1')
    if opts: o.update(opts)
    g = G(); E = g.E
    P = "L" + name.replace("_kernel", "")[-10:] + "_"
    role = dict(L=True)
    def stamp(k):
        if 'diag' in o:
            if o['diag'] >= 10:
                if k == 0: E("s_memrealtime s[80:81]")
                elif k in (1, 2, 3, 5) and not role['L']: E(f"s_memtime s[{80+2*k}:{81+2*k}]")
                return
            if k == o['diag'] and (k == 0 or not role['L']): E(f"s_memrealtime s[{80+2*k}:{81+2*k}]")
            return
        if stamps and o.get('clk') and role['L'] and k in (1, 2, 3): E(f"s_memtime s[{80+2*k}:{81+2*k}]")
        elif stamps: E(f"s_memrealtime s[{80+2*k}:{81+2*k}]")
    g.l.append(f".text\n.globl {name}\n.p2align 8\n.type {name},@function\n{name}:")
    stamp(0)
    E("s_cmp_ge_u32 s2, 256"); E(f"s_cbranch_scc1 {P}END")
    E("s_load_dwordx16 s[4:19], s[0:1], 0"); E("s_load_dwordx4 s[20:23], s[0:1], 64")
    E("v_lshrrev_b32 v1, 6, v0")
    E("s_and_b32 s64, s2, 7"); E("s_lshl_b32 s64, s64, 2")
    E("v_readfirstlane_b32 s69, v1")
    E("s_lshr_b32 s70, s2, 6"); E("s_add_u32 s64, s64, s70")
    E("s_lshr_b32 s67, s2, 3"); E("s_and_b32 s67, s67, 7")
    E("s_and_b32 s65, s67, 3"); E("s_lshr_b32 s66, s67, 2")
    E("s_lshl_b32 s68, s64, 7")
    RB = o['rot']
    def cls(t):
        if t == 0 or not RB: return '0'
        blk = (t-1)//RB
        if blk == 0: return 'A'
        if blk == 24//RB - 1: return 'D'
        return 'B' if blk % 2 == 0 else 'C'
    CV = {'0': (0, 0), 'A': (1, 0), 'D': (-1, 0), 'B': (0, 1), 'C': (0, -1)}
    if RB:
        assert RB in (1, 2)
        E(f"s_lshr_b32 s94, s2, {6 + o['rsel']}"); E("s_xor_b32 s94, s94, s66"); E("s_and_b32 s94, s94, 1")
        if o['sh'] == 0: E("s_mov_b32 s99, s94")
        else:
            if o['sh'] == 1: E("s_and_b32 s70, s65, 1")
            elif o['sh'] == 2: E("s_lshr_b32 s70, s65, 1")
            else: E("s_lshr_b32 s70, s2, 7")
            E("s_and_b32 s70, s70, s94")
            E("s_sub_u32 s94, s94, s70"); E("s_sub_u32 s99, s94, s70")
    E("v_and_b32 v250, 63, v0")
    E("s_cmp_ge_u32 s69, 4"); E(f"s_cbranch_scc1 {P}CSTART")
    B1R, W2R = 224, 232
    def load_b1w2(tmp):
        g.srd(48, 12, 512); g.srd(52, 14, 512)
        E(f"v_lshrrev_b32 v{tmp}, 4, v250"); E(f"v_lshlrev_b32 v{tmp}, 3, v{tmp}")
        E("s_lshl_b32 s71, s72, 7")
        for j in range(4): E(f"buffer_load_dwordx2 v[{B1R+2*j}:{B1R+2*j+1}], v{tmp}, s[48:51], s71 offen offset:{32*j}")
        for j in range(4): E(f"buffer_load_dwordx2 v[{W2R+2*j}:{W2R+2*j+1}], v{tmp}, s[52:55], s71 offen offset:{32*j}")
    VCA0, VCA1, VB0, VB1, VIA, VIP0, VIP1, VP16 = 224, 225, 226, 227, 228, 229, 230, 231
    OFF = 232; VP = 220; SUM = 216; WREG = 208; D = 192; F6 = 238; WA = 246; WA6 = 247
    def F(js, b, h): return ((js*6 + b)*2 + h)*4 if b < 6 else F6 + h*4
    if o['prioL']: E(f"s_setprio {o['prioL']}")
    E("v_lshrrev_b32 v251, 3, v250")
    E("v_and_b32 v252, 7, v250")
    E(f"v_lshlrev_b32 v{VP16}, 4, v252")
    E("v_mul_u32_u24 v253, 400, v251")
    E(f"v_add_u32 v253, v253, v{VP16}")
    E("v_lshlrev_b32 v254, 4, v250")
    E("v_lshrrev_b32 v249, 4, v250")
    E("v_lshlrev_b32 v248, 2, v249")
    E("v_and_b32 v247, 15, v250")
    E("v_xor_b32 v247, v247, v248")
    E("v_lshlrev_b32 v247, 4, v247")
    E(f"v_lshl_add_u32 v{VB0}, v249, 9, v247")
    E(f"v_xor_b32 v{VB1}, 32, v{VB0}")
    E("s_lshl_b32 s73, s69, 12")
    E("s_mul_i32 s74, s69, 1536"); E("s_add_u32 s74, s74, 16384")
    E(f"s_add_u32 s75, s73, {BS0}")
    E("s_mul_i32 s72, s65, 819200"); E("s_lshl_b32 s70, s66, 8"); E("s_add_u32 s72, s72, s70")
    E("s_lshl_b32 s70, s69, 13"); E("s_add_u32 s72, s72, s70")
    if RB:
        E(f"s_mul_i32 s70, s94, {RB*32768}"); E("s_add_u32 s95, s72, s70"); E("s_sub_u32 s96, s72, s70")
        E(f"s_mul_i32 s70, s99, {RB*32768}"); E("s_add_u32 s100, s72, s70"); E("s_sub_u32 s101, s72, s70")
        E(f"s_mul_i32 s97, s94, {RB*4}"); E(f"s_mul_i32 s98, s99, {RB*8}")
        E("s_add_u32 s36, s94, s99"); E(f"s_mul_i32 s36, s36, {RB*4}")
    def SB(t): return {'0': 72, 'A': 95, 'D': 96, 'B': 100, 'C': 101}[cls(t)]
    ist = dict(c='0')
    def idxadj(t):
        tr = ist['c'] + cls(t); ist['c'] = cls(t)
        if tr[0] == tr[1]: return
        sg, sr = {'0A': (1, 97), 'AC': (-1, 36), 'CB': (1, 98), 'BC': (-1, 98), 'BD': (-1, 36)}[tr]
        for v in (VIA, VIP0, VIP1):
            if sg > 0: E(f"v_add_u32 v{v}, s{sr}, v{v}")
            else: E(f"v_subrev_u32 v{v}, s{sr}, v{v}")
    E("s_lshl_b32 s70, s69, 5"); E("s_add_u32 s70, s70, s68"); E("s_mul_i32 s70, s70, 400")
    E("s_mul_i32 s71, s65, 100"); E("s_add_u32 s70, s70, s71")
    E("s_lshl_b32 s77, s67, 4"); E("s_lshl_b32 s78, s69, 2"); E("s_add_u32 s77, s77, s78")
    E("s_add_u32 s78, s77, s68"); E("s_mul_i32 s78, s78, 400")
    E("s_mul_i32 s79, s69, 1600"); E(f"s_add_u32 s79, s79, {IDXP}")
    E("s_waitcnt lgkmcnt(0)")
    if o.get('pst'): stamp(1)
    g.srd(24, 4, 1638400)
    for j in range(4):
        E(f"s_add_u32 m0, s73, {IDXA + j*1024}")
        if j: E(f"s_add_u32 s70, s70, 3200")
        else: E("s_nop 0")
        E("buffer_load_dwordx4 v253, s[24:27], s70 offen lds")
    E("s_mov_b32 m0, s79"); E("s_nop 0")
    E("buffer_load_dwordx4 v254, s[24:27], s78 offen lds")
    E("s_mov_b32 exec_hi, 15")
    E("buffer_load_dwordx4 v254, s[24:27], s78 offen offset:1024 lds")
    E("s_mov_b32 exec_hi, -1")
    g.srd(32, 10, 3276800)
    def issueB(t):
        s = t % 3
        for ii in range(4):
            E(f"s_add_u32 m0, s75, {s*16384 + ii*1024}")
            E(f"s_add_u32 s70, s{SB(t)}, {t*32768 + ii*2048}")
            E(f"buffer_load_dwordx4 v{VB0 if ii < 2 else VB1}, s[32:35], s70 offen lds")
    def issueA(t, off):
        s = t % 3
        for j in range(4):
            E(f"s_add_u32 m0, s73, {AP(s) + j*1024}"); E("s_nop 0")
            E(f"buffer_load_dwordx4 v{off+j}, s[28:31], 0 offen lds")
        E(f"s_add_u32 m0, s74, {AP(s)}"); E("s_nop 0")
        E(f"buffer_load_dwordx4 v{off+4}, s[28:31], 0 offen lds")
        E(f"s_add_u32 m0, s74, {AP(s) + 1024}"); E("s_mov_b32 exec_hi, 0")
        E(f"buffer_load_dwordx4 v{off+5}, s[28:31], 0 offen lds")
        E("s_mov_b32 exec_hi, -1")
    def rdidx(t, off):
        idxadj(t)
        for j in range(4): g.ds(f"ds_read_b32 v{off+j}, v{VIA} offset:{j*1024 + 4*t}", 'idx')
        g.ds(f"ds_read_b32 v{off+4}, v{VIP0} offset:{4*t}", 'idx')
        g.ds(f"ds_read_b32 v{off+5}, v{VIP1} offset:{4*t}", 'idx')
    def cvidx(off):
        for j in range(4): E(f"v_lshl_add_u32 v{off+j}, v{off+j}, 7, v{VCA0 + (j&1)}")
        for j in (4, 5): E(f"v_lshl_add_u32 v{off+j}, v{off+j}, 7, v{VP16}")
    issueB(0); issueB(1)
    if o.get('b2e') == 1: issueB(2)
    NPF, KPF = o.get('bpf', 0), o.get('bpk', 2)
    PFR = {}
    pool = [F(js, b, h) for b in (1, 2, 3, 4, 5) for js in range(4) for h in range(2)][40 - NPF*KPF:]
    for t in range(2, 2 + NPF):
        for ii in range(KPF):
            r = pool[(t-2)*KPF + ii]; PFR[(t, ii)] = r
            bb = (r // 8) % 6
            assert t - 2 < 4*bb + 1, (t, bb)
            if o.get('bskip'): continue
            E(f"s_add_u32 s70, s{SB(t)}, {t*32768 + ii*2048}")
            E(f"buffer_load_dwordx4 v[{r}:{r+3}], v{VB0 if ii < 2 else VB1}, s[32:35], s70 offen")
    NPFL = 0 if o.get('bskip') else NPF*KPF
    g.srd(28, 6, 12800000)
    E("v_lshrrev_b32 v248, 1, v251"); E("v_xor_b32 v248, v248, v252")
    E(f"v_lshlrev_b32 v{VCA0}, 4, v248"); E(f"v_xor_b32 v{VCA1}, 64, v{VCA0}")
    E(f"v_lshlrev_b32 v{VIA}, 7, v251"); E(f"s_add_u32 s70, s73, {IDXA}"); E(f"v_add_u32 v{VIA}, s70, v{VIA}")
    E("s_movk_i32 s71, 400")
    for k, dst in ((0, VIP0), (1, VIP1)):
        if k == 0: E("v_mov_b32 v246, v251")
        else: E("v_and_b32 v246, 3, v251"); E("v_add_u32 v246, 8, v246")
        E("v_mul_u32_u24 v245, 11, v246"); E("v_lshrrev_b32 v245, 5, v245")
        E("v_mul_u32_u24 v244, 3, v245"); E("v_sub_u32 v244, v246, v244")
        E("v_add_u32 v244, s65, v244"); E("v_add_u32 v244, 1, v244"); E("v_and_b32 v244, 3, v244")
        E("v_mul_u32_u24 v244, 100, v244")
        E(f"v_mad_u32_u24 v{dst}, v245, s71, v244"); E(f"v_add_u32 v{dst}, s79, v{dst}")
    E("v_bfe_u32 v246, v250, 2, 2")
    E("v_cmp_eq_u32 vcc, s65, v246")
    E("v_subrev_u32 v245, s65, v246"); E("v_add_u32 v245, 3, v245"); E("v_and_b32 v245, 3, v245")
    E("v_lshlrev_b32 v245, 7, v245"); E("v_lshl_add_u32 v245, v249, 4, v245"); E("v_add_u32 v245, s74, v245")
    for js in range(4):
        E(f"s_add_u32 s70, s77, {js}"); E("s_lshr_b32 s71, s70, 1"); E("s_and_b32 s71, s71, 7"); E("s_lshl_b32 s70, s70, 7")
        E("v_xor_b32 v244, s71, v249"); E("v_lshlrev_b32 v244, 4, v244"); E("v_add_u32 v244, s70, v244")
        E(f"v_add_u32 v243, {js*384}, v245")
        E(f"v_cndmask_b32 v{VP+js}, v243, v244, vcc")
    for js in range(4): E(f"v_mov_b32 v{SUM+js}, 0")
    E(f"v_add_u32 v{WA}, {WP}, v254")
    E(f"v_lshlrev_b32 v{WA6}, 2, v250"); E(f"v_add_u32 v{WA6}, {WP6}, v{WA6}")
    if NPF and o.get("bskip") != 2: E("v_add_u32 v254, s75, v254")
    E(f"s_waitcnt vmcnt({(12 if o.get('b2e') == 1 else 8) + NPFL})")
    if o.get('pst'): stamp(2)
    rdidx(0, 0); rdidx(1, 6); g.wait_ds()
    cvidx(0); issueA(0, 0); cvidx(6); issueA(1, 6)
    if o.get('b2e') == 2: issueB(2)
    rdidx(2, OFF); g.wait_ds(); cvidx(OFF)
    E("s_barrier")
    if o.get('pst'): stamp(3)
    E(f"s_waitcnt vmcnt({10 if o.get('b2e') == 2 else 6})")
    E("s_barrier")
    stamp(4 if o.get('pst') else 1)
    if o.get('trace'): E("s_memtime s[38:39]"); E("s_memrealtime s[40:41]")
    sched = {t: [] for t in range(26)}
    sched[1].append((6, 6))
    dfb = o.get('dfb', 5)
    if not o.get('spread'):
        for b in range(6):
            tl = [(6, b)] + [(I, b) for I in range(b+1)]
            st = [4*b+5+k for k in range(4)] if b < dfb else [25]
            for n, x in enumerate(tl): sched[st[n*len(st)//len(tl)]].append(x)
    else:
        allt = [(x, 4*b+5) for b in range(6) for x in [(6, b)] + [(I, b) for I in range(b+1)]]
        nin = o['spread']; last = o.get('last', 24)
        for n, (x, e) in enumerate(allt):
            if n < nin:
                t = max(e, 5 + (n*(last-4))//nin)
                sched[min(t, 25)].append(x)
            else: sched[25].append(x)
    state = dict(pend=None, wsel=0)
    def wread(I, J):
        w = WREG + 4*state['wsel']; state['wsel'] ^= 1
        if I < 6: g.ds(f"ds_read_b128 v[{w}:{w+3}], v{WA} offset:{(J*(J+1)//2 + I)*1024}", ('w', I, J))
        elif J == 6: g.ds(f"ds_read_b128 v[{w}:{w+3}], v{WA} offset:{21*1024}", ('w', I, J))
        else: g.ds(f"ds_read_b32 v{w}, v{WA6} offset:{J*256}", ('w', I, J))
        return w
    def fm(js, p):
        I, J, w = p
        if I < 6:
            for r in range(4): E(f"v_fmac_f32 v{SUM+js}, v{D+4*js+r}, v{w+r}")
            return 4
        if J == 6: E(f"v_fmac_f32 v{SUM+js}, v{D+js}, v{w+js}")
        else: E(f"v_fmac_f32 v{SUM+js}, v{D+4*js+js}, v{w}")
        return 1
    def mm(js, I, J):
        d = D + 4*js
        E(f"v_mfma_f32_16x16x32_bf16 v[{d}:{d+3}], v[{F(js,I,0)}:{F(js,I,0)+3}], v[{F(js,J,0)}:{F(js,J,0)+3}], 0")
        E(f"v_mfma_f32_16x16x32_bf16 v[{d}:{d+3}], v[{F(js,I,1)}:{F(js,I,1)+3}], v[{F(js,J,1)}:{F(js,J,1)+3}], v[{d}:{d+3}]")
    def tiles(tl):
        for (I, J) in tl:
            w = wread(I, J)
            pend = state['pend']
            if pend is not None: g.wait_ds(('w', pend[0], pend[1]))
            if pend is not None and pend[:2] == (6, 6):
                E("s_nop 7")
                for js in range(4): fm(js, pend)
                pend = None
            for js in range(4):
                if pend is not None: fm(js, pend)
                if (I, J) != (6, 6) or js == 0: mm(js, I, J)
            E("s_nop 1")
            state['pend'] = (I, J, w)
    def flush():
        pend = state['pend']
        g.wait_ds(('w', pend[0], pend[1]))
        E("s_nop 3")
        for js in range(4):
            fm(js, pend)
            if js < 3: E("s_nop 1")
        state['pend'] = None
    OFFS = [[232, 233, 234, 235, 236, 237], [248, 249, 251, 252, 253, 255]]
    def dma_items(t, off):
        s = t % 3; it = []
        def mkB(ii):
            def w():
                r = PFR[(t, ii)]
                if o.get('bskip') == 2: return
                g.ds(f"ds_write_b128 v254, v[{r}:{r+3}] offset:{s*16384 + ii*1024}", 'bw')
            if (t, ii) in PFR: w.vm = 0; return w
            def f():
                E(f"s_add_u32 m0, s75, {s*16384 + ii*1024}")
                E(f"s_add_u32 s70, s{SB(t)}, {t*32768 + ii*2048}")
                E(f"buffer_load_dwordx4 v{VB0 if ii < 2 else VB1}, s[32:35], s70 offen{o.get('bfl','')} lds")
            return f
        def mkA(j):
            def f():
                if j < 4: E(f"s_add_u32 m0, s73, {AP(s) + j*1024}"); E("s_nop 0")
                elif j == 4: E(f"s_add_u32 m0, s74, {AP(s)}"); E("s_nop 0")
                else: E(f"s_add_u32 m0, s74, {AP(s) + 1024}"); E("s_mov_b32 exec_hi, 0")
                E(f"buffer_load_dwordx4 v{off[j]}, s[28:31], 0 offen{o.get('afl','')} lds")
                if j == 5: E("s_mov_b32 exec_hi, -1")
            return f
        Bs = [mkB(i) for i in range(4)]; As = [mkA(j) for j in range(6)]
        if o.get('b2e') and t == 2: Bs = []
        if o.get('pskip') and t >= o['pskip']: As = As[:4]
        Bs = [x for x in Bs if not hasattr(x, 'vm')] + [x for x in Bs if hasattr(x, 'vm')]
        if o.get('wfirst'): return [x for x in Bs if hasattr(x, 'vm')] + As + [x for x in Bs if not hasattr(x, 'vm')]
        if o['dord'] == 0: return Bs + As
        if o['dord'] == 1: return As + Bs
        return [As[0], Bs[0], As[1], Bs[1], As[2], Bs[2], As[3], Bs[3], As[4], As[5]]
    def rdidx2(t, off):
        if o.get('nov', 0) >= 2 and t > 4: off = [D+i for i in range(6)]
        else: idxadj(t)
        for j in range(4): g.ds(f"ds_read_b32 v{off[j]}, v{VIA} offset:{j*1024 + 4*t}", 'idx')
        g.ds(f"ds_read_b32 v{off[4]}, v{VIP0} offset:{4*t}", 'idx')
        g.ds(f"ds_read_b32 v{off[5]}, v{VIP1} offset:{4*t}", 'idx')
    def cvidx2(off):
        for j in range(4): E(f"v_lshl_add_u32 v{off[j]}, v{off[j]}, 7, v{VCA0 + (j&1)}")
        for j in (4, 5): E(f"v_lshl_add_u32 v{off[j]}, v{off[j]}, 7, v{VP16}")
    def tile_items(tl):
        it = []
        for (I, J) in tl:
            loc = {}
            def head(I=I, J=J, loc=loc):
                loc['w'] = wread(I, J)
                pend = state['pend']
                if pend is not None: g.wait_ds(('w', pend[0], pend[1]))
                if pend is not None and pend[:2] == (6, 6):
                    E("s_nop 7")
                    for js in range(4): fm(js, pend)
                    pend = None
                loc['pend'] = pend
            def part(js, I=I, J=J, loc=loc, head=head):
                if js == 0: head()
                if loc['pend'] is not None: fm(js, loc['pend'])
                if (I, J) != (6, 6) or js == 0: mm(js, I, J)
                if js == 3:
                    E("s_nop 1"); state['pend'] = (I, J, loc['w'])
            for js in range(4): it.append(lambda js=js, part=part: part(js))
        return it
    for t in range(25):
        s = t % 3
        dm = dma_items(t+2, OFFS[t & 1]) if t + 2 <= 24 else []
        wk = []
        def frag(half, t=t, s=s):
            if t == 0:
                for js in (2*half, 2*half+1): E(f"v_xor_b32 v{D+js}, 64, v{VP+js}")
                for js in (2*half, 2*half+1):
                    m = 0x11111111 << js
                    E(f"s_mov_b32 exec_lo, {m:#x}"); E(f"s_mov_b32 exec_hi, {m:#x}")
                    g.ds(f"ds_read_b128 v[{F6}:{F6+3}], v{VP+js} offset:{AP(s)}", 'pf')
                    g.ds(f"ds_read_b128 v[{F6+4}:{F6+7}], v{D+js} offset:{AP(s)}", 'pf')
            else:
                b = (t-1) >> 2; u = (t-1) & 3
                m = 0x11111111 << u
                E(f"s_mov_b32 exec_lo, {m:#x}"); E(f"s_mov_b32 exec_hi, {m:#x}")
                for js in (2*half, 2*half+1):
                    f0 = F(js, b, 0); f1 = F(js, b, 1)
                    if o.get('nov'):
                        g.ds(f"ds_read_b128 v[{f0}:{f0+3}], v{VP+js} offset:{AP(s)}", 'pf')
                        g.ds(f"ds_read_b128 v[{f1}:{f1+3}], v{VP+js} offset:{AP(s)+64}", 'pf')
                        continue
                    E(f"v_xor_b32 v{f1}, 64, v{VP+js}")
                    g.ds(f"ds_read_b128 v[{f0}:{f0+3}], v{VP+js} offset:{AP(s)}", 'pf')
                    g.ds(f"ds_read_b128 v[{f1}:{f1+3}], v{f1} offset:{AP(s)}", 'pf')
            E("s_mov_b64 exec, -1")
        if t + 3 <= 24: wk.append(lambda t=t: rdidx2(t+3, OFFS[(t+1) & 1]))
        if not o['nofr']: wk.append(lambda: frag(0)); wk.append(lambda: frag(1))
        if not o['nopnn']: wk += tile_items(sched[t])
        if t + 3 <= 24:
            def cvl(t=t):
                g.wait_ds('idx')
                if o.get('nov', 0) < 2 or t + 3 <= 4: cvidx2(OFFS[(t+1) & 1])
            wk.append(cvl)
        if not o['il']:
            for f in dm + wk: f()
        else:
            lead = o['lead']; nd = len(dm); nw = len(wk)
            seq = dm[:lead]; rest = dm[lead:]
            k = 0
            for i, w in enumerate(wk):
                seq.append(w)
                tgt = ((i+1) * len(rest)) // nw if o['il'] == 1 else min(len(rest), (i+1)*o['il'] - (i+1))
                while k < tgt: seq.append(rest[k]); k += 1
            seq += rest[k:]
            for f in seq: f()
        g.wait_ds()
        if o.get('trace'):
            E(f"v_writelane_b32 v254, s38, {t}"); E(f"v_writelane_b32 v250, s40, {t}")
            if t: E(f"v_writelane_b32 v254, s42, {31+t}"); E(f"v_writelane_b32 v250, s46, {31+t}")
            E("s_memtime s[42:43]")
        if t < 24:
            E(f"s_waitcnt vmcnt({len([x for x in dm if not hasattr(x, 'vm')]) + (4 if t == 0 and o.get('b2e') == 2 else 0)})")
            if o.get('trace'): E("s_memtime s[46:47]")
            E("s_barrier")
            if t == 11 and not o.get('pst'): stamp(2)
            if o.get('trace'): E("s_memtime s[38:39]"); E("s_memrealtime s[40:41]")
    stamp(5 if o.get('pst') else 3)
    if o.get('trace'):
        E("s_memtime s[38:39]"); E("s_memrealtime s[40:41]"); E("s_waitcnt lgkmcnt(0)")
        E(f"v_writelane_b32 v254, s38, 25"); E(f"v_writelane_b32 v250, s40, 25")
        E("v_mbcnt_lo_u32_b32 v232, -1, 0"); E("v_mbcnt_hi_u32_b32 v232, -1, v232")
        E("s_lshl_b32 s70, s2, 9"); E("s_add_u32 s70, s70, 0x8010000"); E("v_lshlrev_b32 v233, 2, v232"); E("v_add_u32 v233, s70, v233")
        E("s_cmp_lg_u32 s69, 0"); E(f"s_cbranch_scc1 {P}NOTR")
        E("global_store_dword v233, v254, s[22:23]"); E("global_store_dword v233, v250, s[22:23] offset:256")
        g.L(f"{P}NOTR")
        E("s_nop 4"); E("v_mov_b32 v250, v232")
    if not o['nopnn']: tiles(sched[25]); flush()
    E("s_nop 1")
    for sh in (1, 2, 4, 8):
        for js in range(4): E(f"v_add_f32_dpp v{SUM+js}, v{SUM+js}, v{SUM+js} row_shr:{sh} row_mask:0xf bank_mask:0xf bound_ctrl:1")
    E("v_lshrrev_b32 v248, 4, v250"); E("v_lshlrev_b32 v248, 6, v248")
    E("s_lshl_b32 s70, s69, 4"); E(f"s_add_u32 s70, s70, {RED + 2048}")
    E("v_add_u32 v248, s70, v248")
    E("s_mov_b32 exec_lo, 0x80008000"); E("s_mov_b32 exec_hi, 0x80008000")
    E(f"ds_write_b128 v248, v[{SUM}:{SUM+3}]")
    E("s_mov_b64 exec, -1")
    E("s_waitcnt lgkmcnt(0)")
    if not o.get('pst'): stamp(4)
    E("s_barrier")
    if stamps:
        if not o.get('pst'): stamp(5)
        g.srd(44, 20, 256)
        E("s_cmp_eq_u32 s69, 0"); E(f"s_cbranch_scc1 {P}STAMP")
    E("s_endpgm")
    def nonce_wait(lbl, vr):
        E(f"v_readfirstlane_b32 s78, v{vr}")
        E("s_cmp_lg_u32 s78, 0"); E(f"s_cbranch_scc1 {lbl}_x")
        E(f"s_mov_b32 s71, {SPIN}"); E("s_lshl_b32 s79, s64, 2")
        g.L(lbl)
        E(f"buffer_load_dword v{vr}, off, s[44:47], s79 offset:128 sc0 sc1")
        E("s_waitcnt vmcnt(0)")
        E(f"v_readfirstlane_b32 s78, v{vr}")
        E("s_sub_u32 s71, s71, 1"); E("s_cmp_eq_u32 s71, 0"); E(f"s_cbranch_scc1 {lbl}_x")
        E("s_cmp_eq_u32 s78, 0"); E(f"s_cbranch_scc1 {lbl}")
        g.L(lbl + "_x")
    g.q = []; role['L'] = False
    g.L(f"{P}CSTART")
    if o['prioC']: E(f"s_setprio {o['prioC']}")
    VA = 128; VBR = 130; VX = 134; CLR = 136; RDY = 150
    def FA(ks, st): return 64 + ks*32 + st*4
    def FB(ks, nt): return 64 + ks*32 + 16 + nt*4
    def ACC(nt, st): return (st*4 + nt)*4
    E("s_sub_u32 s72, s69, 4")
    if o.get('cpf'):
        E("s_getpc_b64 s[76:77]"); g.L(f"{P}PC")
        E(f"s_sub_u32 s76, s76, {P}PC-{name}"); E("s_subb_u32 s77, s77, 0")
        E("s_lshr_b32 s70, s2, 3"); E("s_lshl_b32 s70, s70, 2"); E("s_add_u32 s70, s70, s72"); E("s_lshl_b32 s70, s70, 9")
        E("v_lshlrev_b32 v240, 6, v250"); E("v_add_u32 v240, s70, v240")
        E(f"v_min_u32 v240, {P}END-{name}, v240")
        E("v_mov_b32 v241, s77"); E("v_add_co_u32 v240, vcc, s76, v240"); E("v_addc_co_u32 v241, vcc, 0, v241, vcc")
        E("s_mov_b64 exec, 0xff")
        E("global_load_dword v242, v[240:241], off")
        E("s_mov_b64 exec, -1")
    E("s_and_b32 s73, s72, 1"); E("s_lshr_b32 s74, s72, 1")
    E("v_lshlrev_b32 v254, 4, v250")
    E("s_mul_i32 s70, s72, 5120")
    E("s_memrealtime s[96:97]")
    E("s_waitcnt lgkmcnt(0)")
    if o.get('tlb', 0) & 2:
        g.srd(60, 6, 12800000)
        E("s_lshl_b32 s71, s72, 22"); E("v_lshlrev_b32 v243, 16, v250")
        E("buffer_load_dword v244, v243, s[60:63], s71 offen")
    g.srd(36, 8, 20000)
    for i in range(5):
        E(f"s_add_u32 m0, s70, {AP(2) + i*1024}"); E(f"s_add_u32 s71, s70, {i*1024}")
        E("buffer_load_dwordx4 v254, s[36:39], s71 offen lds")
    g.srd(40, 22, WSREC); g.srd(44, 20, 256)
    if o.get('tlb', 0) & 4:
        g.srd(60, 6, 12800000)
        E("s_lshl_b32 s71, s72, 22"); E("v_lshlrev_b32 v243, 16, v250")
        E("buffer_load_dword v244, v243, s[60:63], s71 offen")
    load_b1w2(248)
    ntpf = 0
    def setexec(m): E(f"s_mov_b32 exec_lo, {m & 0xffffffff:#x}"); E(f"s_mov_b32 exec_hi, {m >> 32:#x}")
    if o.get('tpf'):
        sh_ = {64: 6, 128: 7}[o['tpf']]; per = 64 << sh_
        nt_ = -(-12800000 // (per*1024)); nw_ = -(-3276800 // (per*1024))
        E("s_lshl_b32 s70, s2, 2"); E("s_add_u32 s70, s70, s72")
        E(f"v_lshlrev_b32 v243, {sh_}, v250")
        if o.get('tpw', 1):
            g.srd(60, 10, 3276800)
            E(f"s_mul_i32 s71, s70, {3276800 // 1024}")
            if per > 3200: setexec((1 << (3200 >> sh_)) - 1)
            E("buffer_load_dword v244, v243, s[60:63], s71 offen"); ntpf += 1
            E("s_mov_b64 exec, -1")
        if o.get('tpt', 1):
            g.srd(56, 6, 12800000)
            E(f"s_mul_i32 s71, s70, {12800}")
            n = 12800 >> sh_
            for i in range(-(-n // 64)):
                if n - 64*i < 64: setexec((1 << (n - 64*i)) - 1)
                E(f"buffer_load_dword v244, v243, s[56:59], s71 offen"); ntpf += 1
                E(f"s_add_u32 s71, s71, {per}")
            E("s_mov_b64 exec, -1")
    E("v_and_b32 v140, 15, v250"); E("v_lshrrev_b32 v141, 4, v250"); E("v_bfe_u32 v142, v250, 1, 3")
    E("v_xor_b32 v142, v141, v142"); E("v_lshlrev_b32 v142, 4, v142"); E("v_lshl_add_u32 v142, v140, 7, v142")
    E("s_lshl_b32 s70, s73, 13"); E(f"v_add_u32 v{VA}, s70, v142"); E(f"v_xor_b32 v{VA+1}, 64, v{VA}")
    E("v_bfe_u32 v142, v250, 2, 2")
    E("v_lshl_add_u32 v143, v141, 3, v142"); E("v_lshlrev_b32 v143, 8, v143")
    E("v_bfe_u32 v144, v250, 1, 1"); E("s_lshl_b32 s70, s74, 3"); E("v_or_b32 v144, s70, v144")
    E("v_lshlrev_b32 v142, 2, v142"); E("v_xor_b32 v144, v144, v142")
    E("v_and_b32 v142, 1, v141"); E("v_lshlrev_b32 v142, 1, v142"); E("v_xor_b32 v144, v144, v142")
    E("v_lshl_add_u32 v143, v144, 4, v143")
    E("v_and_b32 v144, 1, v250"); E("v_lshl_add_u32 v143, v144, 3, v143")
    for nt in range(4):
        E(f"v_xor_b32 v142, {nt*32}, v143"); E(f"v_add_u32 v{VBR+nt}, {BS0}, v142")
    E(f"v_lshlrev_b32 v{VX}, 4, v250")
    E("v_lshrrev_b32 v140, 4, v250")
    E("v_bfe_u32 v141, v250, 2, 2"); E("v_mul_u32_u24 v141, 25, v141")
    E("v_and_b32 v142, 3, v250")
    E("v_add_u32 v144, v141, v142")
    E("v_mul_u32_u24 v143, 5000, v140"); E(f"v_add_u32 v143, {AP(2)}, v143")
    E("v_lshl_add_u32 v147, v141, 1, v143")
    E("v_mul_u32_u24 v141, 50, v140"); E(f"v_add_u32 v141, {AP(2)}, v141")
    def var(J): return 1 if not RB else (0 if J == 0 else 2 if J == 5 else 1)
    JL = {0: 152, 1: 153, 2: 154}; BA1 = {0: 155, 1: 145, 2: 156}; BA2 = {0: 157, 1: 146, 2: 158}
    if RB:
        E(f"s_mul_i32 s70, s94, {RB}"); E(f"s_mul_i32 s71, s99, {RB}")
        lo = {1: 0x55555555, 2: 0x33333333}[RB]; fa = {1: 0x11111111, 2: 0x33333333}[RB]; fd = {1: 0x88888888, 2: 0xcccccccc}[RB]
        E("v_add_u32 v159, s71, v144"); E("v_subrev_u32 v160, s71, v144")
        E(f"s_mov_b32 vcc_lo, {lo:#x}"); E(f"s_mov_b32 vcc_hi, {lo:#x}")
        E(f"v_cndmask_b32 v{JL[1]}, v160, v159, vcc")
        E("v_add_u32 v159, s70, v144"); E("v_subrev_u32 v160, s70, v144")
        E(f"s_mov_b32 vcc_lo, {fa:#x}"); E(f"s_mov_b32 vcc_hi, {fa:#x}")
        E(f"v_cndmask_b32 v{JL[0]}, v{JL[1]}, v159, vcc")
        E(f"s_mov_b32 vcc_lo, {fd:#x}"); E(f"s_mov_b32 vcc_hi, {fd:#x}")
        E(f"v_cndmask_b32 v{JL[2]}, v{JL[1]}, v160, vcc")
    else: E(f"v_mov_b32 v{JL[1]}, v144")
    E("s_movk_i32 s75, 200")
    for vr in ((0, 1, 2) if RB else (1,)):
        E(f"v_lshl_add_u32 v{BA1[vr]}, v{JL[vr]}, 1, v143")
        E(f"v_mad_i32_i24 v{BA2[vr]}, v{JL[vr]}, s75, v141")
    E(f"v_add_u32 v148, {WP}, v254")
    E(f"v_lshlrev_b32 v149, 2, v250"); E(f"v_add_u32 v149, {WP6}, v149")
    wb_ = {}
    if RB:
        E(f"s_mul_i32 s75, s94, {200*RB}"); E(f"s_mul_i32 s76, s99, {200*RB}"); E(f"s_mul_i32 s77, s94, {2*RB}"); E(f"s_mul_i32 s78, s99, {2*RB}")
        keys = []
        for J in range(6):
            for I in range(J+1):
                for k in range(4):
                    c = cls(1+4*I+k)
                    for w in ((1, 2) if I < J else (1,)):
                        if (w, var(J), c) not in keys: keys.append((w, var(J), c))
        nx = 64
        for (w, vr, c) in keys:
            ca, cb = CV[c]; sr = (75 if ca else 76) + (2 if w == 2 else 0)
            src = (BA1 if w == 1 else BA2)[vr]
            if ca + cb > 0: E(f"v_add_u32 v{nx}, s{sr}, v{src}")
            else: E(f"v_subrev_u32 v{nx}, s{sr}, v{src}")
            wb_[(w, vr, c)] = nx; nx += 1
        assert nx <= 128
    def B1(tr, J): return BA1[var(J)] if cls(tr) == '0' else wb_[(1, var(J), cls(tr))]
    def B2(tr, J): return BA2[var(J)] if cls(tr) == '0' else wb_[(2, var(J), cls(tr))]
    for r in range(56): E(f"v_mov_b32 v{r}, 0")
    E(f"s_waitcnt vmcnt({(9 if o.get('tlb', 0) & 4 else 8) + ntpf})")
    E("s_barrier")
    if 'wpf' in o:
        T0, n = o['wpf']
        g.srd(60, 10, 3276800)
        E("s_lshr_b32 s70, s2, 3"); E("s_lshl_b32 s70, s70, 2"); E("s_add_u32 s70, s70, s72")
        E("s_lshr_b32 s71, s70, 5"); E("s_mul_i32 s71, s71, 819200"); E("s_and_b32 s70, s70, 31"); E("s_lshl_b32 s70, s70, 10")
        E("s_add_u32 s70, s70, s71"); E(f"s_add_u32 s70, s70, {T0*32768}")
        E("v_lshrrev_b32 v243, 4, v250"); E("v_lshlrev_b32 v243, 15, v243"); E("v_and_b32 v244, 15, v250"); E("v_lshl_add_u32 v243, v244, 6, v243")
        for i in range(n):
            E(f"buffer_load_dword v{164+i}, v243, s[60:63], s70 offen")
            if i < n-1: E("s_add_u32 s70, s70, 131072")
    if o.get('rpf'):
        g.srd(48, 6, 12800000)
        E("v_and_b32 v244, 15, v250"); E("s_lshl_b32 s70, s66, 2"); E("s_add_u32 s70, s70, s72"); E("s_lshl_b32 s70, s70, 11")
        E(f"s_add_u32 s70, s70, {IDXA}"); E("v_lshlrev_b32 v244, 7, v244"); E("v_add_u32 v244, s70, v244")
        E("v_bfe_u32 v245, v250, 4, 1"); E("v_lshlrev_b32 v245, 6, v245")
    big = [(I, J) for J in range(6) for I in range(J+1)] + [(6, 6)]
    for cw in range(4):
        if cw < 3: E(f"s_cmp_lg_u32 s72, {cw}"); E(f"s_cbranch_scc1 {P}WB{cw+1}")
        mine = [(n, t) for n, t in enumerate(big) if n % 4 == cw]
        small = [J for J in range(6) if cw >= 2 and J % 2 == cw % 2]
        r = 0; plan = []
        for n, (I, J) in mine:
            if I == 6:
                E(f"ds_read_u16_d16_hi v{r}, v147"); plan.append((n, I, J, r)); r += 1; continue
            for k in range(4): E(f"ds_read_u16_d16_hi v{r+k}, v{B1(1+4*I+k, J)} offset:{200*(1+4*I+k) + 2*(1+4*J)}")
            if I < J:
                for k in range(4): E(f"ds_read_u16_d16_hi v{r+4+k}, v{B2(1+4*I+k, J)} offset:{200*(1+4*J) + 2*(1+4*I+k)}")
            plan.append((n, I, J, r)); r += 8
        sp = []
        for J in small:
            E(f"ds_read_u16_d16_hi v{r}, v{B1(0, J)} offset:{2*(1+4*J)}"); E(f"ds_read_u16_d16_hi v{r+1}, v{B2(0, J)} offset:{200*(1+4*J)}")
            sp.append((J, r)); r += 2
        assert r <= 56
        E("s_waitcnt lgkmcnt(0)")
        for n, I, J, r in plan:
            if I == 6:
                for k in range(4):
                    m = 0x11111111 << k
                    E(f"s_mov_b32 vcc_lo, {m:#x}"); E(f"s_mov_b32 vcc_hi, {m:#x}")
                    E(f"v_cndmask_b32 v{60+k}, 0, v{r}, vcc")
                E(f"ds_write_b128 v148, v[60:63] offset:{n*1024}")
                continue
            if I < J:
                for k in range(4): E(f"v_add_f32 v{r+k}, v{r+k}, v{r+4+k}")
            E(f"ds_write_b128 v148, v[{r}:{r+3}] offset:{n*1024}")
        for J, r in sp:
            E(f"v_add_f32 v{r}, v{r}, v{r+1}"); E(f"ds_write_b32 v149, v{r} offset:{J*256}")
        if cw < 3: E(f"s_branch {P}WBDONE"); g.L(f"{P}WB{cw+1}")
    g.L(f"{P}WBDONE")
    E("s_waitcnt lgkmcnt(0)")
    E("s_barrier")
    stamp(1)
    def Rl(s, ks):
        la = [f"ds_read_b128 v[{FA(ks,st)}:{FA(ks,st)+3}], v{VA+ks} offset:{AP(s) + st*2048}" for st in range(4)]
        lb = [[f"ds_read_b64_tr_b16 v[{FB(ks,nt)+2*hf}:{FB(ks,nt)+2*hf+1}], v{VBR+nt} offset:{s*16384 + ks*8192 + hf*1024}" for hf in range(2)] for nt in range(4)]
        if o['nocr'] == 1: return []
        return [la[0]] + lb[0] + [la[1]] + lb[1] + [la[2]] + lb[2] + [la[3]] + lb[3]
    MORD = [(0,0),(0,1),(1,0),(1,1),(0,2),(1,2),(2,0),(2,1),(2,2),(0,3),(1,3),(2,3),(3,0),(3,1),(3,2),(3,3)]
    mo = o.get('mord', 0)
    if mo == 1: MORD = [(nt, st) for nt in range(4) for st in range(4)]
    if mo == 2: MORD = [(nt, st) for st in range(4) for nt in range(4)]
    if mo == 3: MORD = [(nt, st if nt % 2 == 0 else 3-st) for nt in range(4) for st in range(4)]
    if mo == 4: MORD = [(nt if st % 2 == 0 else 3-nt, st) for st in range(4) for nt in range(4)]
    if mo == 5: MORD = [((i + (i >> 2)) & 3, i & 3) for i in range(16)]
    def Ml(ks, first=False):
        l = []
        for nt, st in MORD:
            a = ACC(nt, st)
            l.append(f"v_mfma_f32_16x16x32_bf16 v[{a}:{a+3}], v[{FB(ks,nt)}:{FB(ks,nt)+3}], v[{FA(ks,st)}:{FA(ks,st)+3}], " + ("0" if first else f"v[{a}:{a+3}]"))
        if o['nocm']: return ["s_nop 0"]*16
        if o.get('m32'):
            l = []
            for kh, i, j in [(0,0,0),(1,0,0),(0,0,1),(0,1,0),(0,1,1),(1,0,1),(1,1,0),(1,1,1)]:
                a = (2*i + j)*16
                l.append(f"v_mfma_f32_32x32x16_bf16 v[{a}:{a+15}], v[{FB(ks,2*j+kh)}:{FB(ks,2*j+kh)+3}], v[{FA(ks,2*i+kh)}:{FA(ks,2*i+kh)+3}], " + ("0" if first and kh == 0 else f"v[{a}:{a+15}]"))
                l.append("s_nop 0")
        return l
    def inter(ms, rs, tag):
        for i, m in enumerate(ms):
            E(m)
            if i < len(rs): g.ds(rs[i], tag)
    for t in range(25):
        s = t % 3
        if t == 0:
            for x in Rl(s, 0): g.ds(x, 0)
        else: inter(Ml(1), Rl(s, 0), 0)
        if t == 1:
            E("s_or_b32 s70, s72, s67"); E("s_cmp_lg_u32 s70, 0"); E(f"s_cbranch_scc1 {P}NOLEAD")
            E("s_lshl_b32 s70, s64, 2")
            E("s_or_b32 s96, s96, 1"); E(f"v_mov_b32 v{RDY}, s96")
            E("s_mov_b64 exec, 1")
            E(f"buffer_store_dword v{RDY}, off, s[44:47], s70 offset:128 sc0 sc1")
            E("s_mov_b64 exec, -1")
            g.L(f"{P}NOLEAD")
        if t == o.get('tx', 12) and o.get('tlb', 0) & 1:
            E("s_lshl_b32 s70, s64, 18"); E("s_lshl_b32 s71, s73, 17"); E("s_add_u32 s71, s70, s71")
            E("s_lshl_b32 s75, s65, 13"); E("s_add_u32 s71, s71, s75"); E("s_lshl_b32 s75, s66, 12"); E("s_add_u32 s71, s71, s75")
            E("v_lshlrev_b32 v243, 15, v250"); E("v_add_u32 v243, s71, v243")
            E("s_lshl_b32 s71, s67, 15"); E("s_add_u32 s71, s70, s71"); E("s_lshl_b32 s75, s72, 11"); E("s_add_u32 s71, s71, s75")
            E("s_sub_u32 s71, s71, 32768")
            E("v_lshlrev_b32 v245, 13, v250"); E("v_add_u32 v245, s71, v245")
            E("v_cmp_lt_u32 vcc, 3, v250"); E("v_cndmask_b32 v243, v243, v245, vcc")
            E("s_lshl_b32 s71, s64, 10"); E(f"s_add_u32 s71, s71, {FLOFF}"); E("v_mov_b32 v245, s71")
            E("v_cmp_lt_u32 vcc, 7, v250"); E("v_cndmask_b32 v243, v243, v245, vcc")
            E("s_mov_b64 exec, 0x1ff")
            E("buffer_load_dword v244, v243, s[40:43], 0 offen sc1")
            g.srd(56, 18, 8192)
            E("s_mov_b64 exec, 1")
            E("buffer_load_dword v246, off, s[56:59], 0")
            E("s_mov_b64 exec, -1")
        if 'snap' in o:
            t0, per = o['snap']
            if t == t0:
                E("s_lshl_b32 s48, s64, 18"); E("s_lshl_b32 s71, s67, 15"); E("s_add_u32 s48, s48, s71")
                E("s_lshl_b32 s71, s72, 11"); E("s_add_u32 s48, s48, s71")
                for qq in range(1, 4): E(f"s_add_u32 s{48+qq}, s48, {qq*8192}")
            for n in range(8):
                if t0 + n//per == t:
                    qq, cp = n >> 1, n & 1
                    E(f"buffer_load_dwordx4 v[{164+4*n}:{164+4*n+3}], v{VX}, s[40:43], s{48+qq} offen offset:{cp*1024} sc1")
        if t == o['chk']:
            E("s_lshl_b32 s79, s64, 2")
            E(f"buffer_load_dword v{RDY+2}, off, s[44:47], s79 offset:128 sc0 sc1")
        pf = o.get('rpf') and (t + o['rpf'] <= 24)
        pl = ([t + o['rpf']] if t else list(range(2, o['rpf'] + 1))) if pf else []
        for n, tt in enumerate(pl): g.ds(f"ds_read_b32 v{172+n}, v244 offset:{4*tt}", 0)
        g.wait_ds(0)
        for n, tt in enumerate(pl): E(f"v_lshl_add_u32 v{172+n}, v{172+n}, 7, v245")
        if pl and o.get('rpm', 16) < 64: E(f"s_mov_b64 exec, {(1 << o.get('rpm', 16)) - 1:#x}")
        for n, tt in enumerate(pl): E(f"buffer_load_dword v{180}, v{172+n}, s[48:51], 0 offen")
        if pl and o.get('rpm', 16) < 64: E("s_mov_b64 exec, -1")
        inter(Ml(0, t == 0), Rl(s, 1), 1)
        g.wait_ds()
        if t < 24: E("s_barrier")
        if t == 11: stamp(2)
    for m in Ml(1): E(m)
    stamp(3)
    E("s_lshl_b32 s77, s64, 18"); E("s_lshl_b32 s70, s73, 17"); E("s_add_u32 s77, s77, s70")
    E("s_lshl_b32 s70, s65, 13"); E("s_add_u32 s77, s77, s70")
    E("s_lshl_b32 s70, s66, 12"); E("s_add_u32 s77, s77, s70")
    E("s_lshl_b32 s70, s74, 11"); E("s_add_u32 s77, s77, s70")
    def xstores(fl):
        for st in range(4):
            if st: E("s_add_u32 s77, s77, 32768")
            for cp in range(2):
                p = 64 + (st*2+cp)*4
                for h in range(2):
                    a = ACC(2*cp+h, st)
                    E(f"v_cvt_pk_bf16_f32 v{p+2*h}, v{a}, v{a+1}"); E(f"v_cvt_pk_bf16_f32 v{p+2*h+1}, v{a+2}, v{a+3}")
                if o.get('xhalf') and cp == 1: continue
                E(f"buffer_store_dwordx4 v[{p}:{p+3}], v{VX}, s[40:43], s77 offen offset:{cp*1024}{fl}")
    E("s_lshl_b32 s75, s64, 1"); E("s_add_u32 s75, s75, s66"); E("s_lshl_b32 s75, s75, 2"); E("s_add_u32 s75, s75, s72")
    E("s_lshl_b32 s75, s75, 7"); E("s_lshl_b32 s71, s65, 2"); E("s_add_u32 s75, s75, s71"); E(f"s_add_u32 s75, s75, {FLOFF}")
    E("s_waitcnt vmcnt(0)")
    xstores(o.get('xfl', " sc0 sc1"))
    nonce_wait(f"{P}NWC", RDY+2)
    E("s_nop 0"); E(f"v_mov_b32 v{RDY}, s78")
    E("s_waitcnt vmcnt(0)")
    E("s_mov_b64 exec, 1")
    E(f"buffer_store_dword v{RDY}, off, s[40:43], s75{o.get('ffl', ' sc0 sc1')}")
    E("s_mov_b64 exec, -1")
    if not o.get('st4'): stamp(4)
    E("s_lshl_b32 s77, s64, 18"); E("s_lshl_b32 s71, s67, 15"); E("s_add_u32 s77, s77, s71")
    E("s_lshl_b32 s71, s72, 11"); E("s_add_u32 s77, s77, s71")
    E("v_mov_b32 v200, 0")
    E(f"s_mov_b32 s71, {SPIN}")
    E("s_lshl_b32 s70, s64, 1"); E("s_lshr_b32 s75, s72, 1"); E("s_add_u32 s70, s70, s75"); E("s_lshl_b32 s70, s70, 2")
    E("s_add_u32 s70, s70, s66"); E("s_and_b32 s75, s72, 1"); E("s_lshl_b32 s75, s75, 1"); E("s_add_u32 s70, s70, s75")
    E("s_lshl_b32 s70, s70, 7"); E(f"s_add_u32 s70, s70, {FLOFF}")
    E(f"buffer_load_dwordx4 v[204:207], off, s[40:43], s70{o['pfl']}")
    g.srd(56, 18, 8192)
    E("s_mov_b32 s79, 0xffff0000")
    for k in range(8):
        E(f"v_lshlrev_b32 v{2*k}, 16, v{B1R+k}"); E(f"v_and_b32 v{2*k+1}, s79, v{B1R+k}")
        E(f"v_lshlrev_b32 v{16+2*k}, 16, v{W2R+k}"); E(f"v_and_b32 v{16+2*k+1}, s79, v{W2R+k}")
    g.srd(60, 16, 2)
    E("v_mov_b32 v96, 0")
    for qq in range(1, 4): E(f"s_add_u32 s{73+qq}, s77, {qq*8192}")
    E("v_mov_b32 v97, 0xbdd2d3e8")
    if o.get('noflag'): E(f"s_branch {P}POLLED")
    E(f"s_branch {P}POLLT")
    g.L(f"{P}POLL")
    E(f"buffer_load_dwordx4 v[204:207], off, s[40:43], s70{o['pfl']}")
    g.L(f"{P}POLLT")
    E("s_sub_u32 s71, s71, 1"); E("s_cmp_eq_u32 s71, 0"); E(f"s_cbranch_scc1 {P}POLLED")
    E("s_waitcnt vmcnt(0)")
    for k in range(4): E(f"v_xor_b32 v{204+k}, s78, v{204+k}")
    E("v_or3_b32 v204, v204, v205, v206"); E("v_or_b32 v204, v204, v207")
    E("v_cmp_ne_u32 vcc, 0, v204"); E(f"s_cbranch_vccnz {P}POLL")
    g.L(f"{P}POLLED")
    if o.get('st4'): stamp(4)
    for qq in range(4):
        for cp in range(2):
            r = 32 + 8*qq + 4*cp
            E(f"buffer_load_dwordx4 v[{r}:{r+3}], v{VX}, s[40:43], s{73+qq if qq else 77} offen offset:{cp*1024}{o['lfl']}")
    E("buffer_load_short_d16_hi v96, v200, s[60:63], 0 offen")
    for qq in range(4):
        E(f"s_waitcnt vmcnt({7 - 2*qq})")
        if qq == 3: stamp(5)
        for k in range(8):
            E(f"v_lshlrev_b32 v{64+2*k}, 16, v{32+8*qq+k}"); E(f"v_and_b32 v{65+2*k}, s79, v{32+8*qq+k}")
        for k in range(16): E(f"v_add_f32 v{k}, v{k}, v{64+k}")
    N = 16
    for k in range(N): E(f"v_mul_f32 v{64+k}, v{k}, v{k}")
    for k in range(N): E(f"v_fmaak_f32 v{64+k}, v{64+k}, v97, 0xc0135761")
    for k in range(N): E(f"v_mul_f32 v{64+k}, v{64+k}, v{k}")
    for k in range(N): E(f"v_exp_f32 v{64+k}, v{64+k}")
    for k in range(N): E(f"v_mul_f32 v{k}, v{k}, v{16+k}")
    for k in range(N): E(f"v_add_f32 v{64+k}, 1.0, v{64+k}")
    for k in range(N): E(f"v_rcp_f32 v{64+k}, v{64+k}")
    E("s_lshl_b32 s70, s72, 8"); E(f"s_add_u32 s70, s70, {RED}")
    E("v_lshlrev_b32 v98, 2, v250"); E("v_add_u32 v99, s70, v98")
    for k in range(4): E(f"v_mul_f32 v{80+k}, v{k}, v{64+k}")
    for k in range(4, N): E(f"v_fmac_f32 v{80+(k&3)}, v{k}, v{64+k}")
    E("v_add_f32 v80, v80, v81"); E("v_add_f32 v82, v82, v83"); E("v_add_f32 v80, v80, v82")
    E("ds_write_b32 v99, v80")
    E("s_waitcnt lgkmcnt(0)")
    E("s_barrier")
    E("s_cmp_lg_u32 s72, 0"); E(f"s_cbranch_scc1 {P}END")
    E(f"v_add_u32 v98, {RED}, v98")
    for w in range(4): E(f"ds_read_b32 v{w}, v98 offset:{w*256}")
    E("ds_read_b32 v4, v98 offset:2048")
    E("s_lshl_b32 s70, s67, 4"); E("s_add_u32 s70, s70, s68"); E("s_lshl_b32 s70, s70, 1")
    E("v_lshlrev_b32 v43, 1, v250")
    E("s_waitcnt vmcnt(0) lgkmcnt(0)")
    E("v_add_f32 v0, v0, v1"); E("v_add_f32 v2, v2, v3"); E("v_add_f32 v0, v0, v4"); E("v_add_f32 v0, v0, v2")
    E("v_mov_b32 v1, v0"); E("s_nop 1"); E("v_permlane32_swap_b32 v0, v1"); E("s_nop 1"); E("v_add_f32 v0, v0, v1")
    E("v_mov_b32 v1, v0"); E("s_nop 1"); E("v_permlane16_swap_b32 v0, v1"); E("s_nop 1"); E("v_add_f32 v0, v0, v1")
    E("v_add_f32 v0, v0, v96")
    E("v_cvt_pk_bf16_f32 v0, v0, v0")
    E("s_mov_b64 exec, 0xffff")
    E("buffer_store_short v0, v43, s[56:59], s70 offen")
    if 'diag' in o:
        if o['diag'] == 6: E("s_waitcnt vmcnt(0)"); stamp(6)
        E("s_movk_i32 s75, 3000")
        if o['diag'] >= 10:
            a, b = {10: (1, 3), 11: (1, 2), 12: (3, 5)}[o['diag']]
            E("s_waitcnt lgkmcnt(0)")
            E(f"s_sub_u32 s76, s{80+2*b}, s{80+2*a}"); E("s_min_u32 s76, s76, 100000"); E("s_mul_i32 s76, s76, 6554"); E("s_lshr_b32 s76, s76, 16"); E("s_add_u32 s75, s75, s76")
        if 'dwg' in o: E(f"s_cmp_lg_u32 s2, {o['dwg']}"); E(f"s_cbranch_scc1 {P}END")
        g.L(f"{P}DIAG")
        E("s_memrealtime s[70:71]"); E("s_waitcnt lgkmcnt(0)")
        E(f"s_sub_u32 s70, s70, s{80+2*(o['diag'] if o['diag'] < 10 else 0)}"); E("s_cmp_lt_u32 s70, s75"); E(f"s_cbranch_scc1 {P}DIAG")
    if stamps:
        E("s_mov_b64 exec, -1")
        g.L(f"{P}STAMP")
        E("s_waitcnt vmcnt(0)")
        stamp(6)
        if stamps == 'dbg':
            E("s_waitcnt lgkmcnt(0)")
            E("s_mov_b64 exec, 1"); E("s_lshl_b32 s71, s69, 3"); E("v_mov_b32 v1, s71")
            E("s_not_b32 s71, s80"); E("v_mov_b32 v2, s71"); E("buffer_atomic_umax v2, v1, s[44:47], 0 offen sc1")
            for k in range(1, 7):
                E(f"v_mov_b32 v{2+k}, s{80+2*k}"); E(f"buffer_atomic_umax v{2+k}, v1, s[44:47], 0 offen offset:{4*k} sc1")
            E(f"v_mov_b32 v10, s80"); E(f"buffer_atomic_umax v10, v1, s[44:47], 0 offen offset:28 sc1")
            E("s_endpgm")
        E("s_mul_i32 s70, s2, 112"); E("s_add_u32 s70, s70, 0x8000000")
        E("s_cmp_eq_u32 s69, 0"); E("s_cselect_b32 s71, 56, 0"); E("s_add_u32 s70, s70, s71")
        E("v_mov_b32 v1, s70")
        E("s_waitcnt lgkmcnt(0)")
        if o.get('clk'):
            E("s_cmp_lg_u32 s69, 0"); E(f"s_cbranch_scc1 {P}NOCLK")
            for k in (2, 3, 1):
                E(f"s_sub_u32 s{80+2*k}, s{80+2*k}, s82"); E(f"s_add_u32 s{80+2*k}, s{80+2*k}, s80"); E(f"s_addc_u32 s{81+2*k}, s81, 0")
            g.L(f"{P}NOCLK")
        E("s_mov_b64 exec, 1")
        for k in range(7):
            E(f"v_mov_b32 v2, s{80+2*k}"); E(f"v_mov_b32 v3, s{81+2*k}")
            E(f"global_store_dwordx2 v1, v[2:3], s[22:23] offset:{8*k}"); E("s_nop 1")
    g.L(f"{P}END")
    E("s_endpgm")
    return "\n".join(x for x in g.l if x is not None) + "\n" + kd(name, vgpr=256)

def official(opts=None, path='standalone__deep_cross_pnn__recsys.s', stamps=False):
    asm = HDR + f"; @launch grid=(256,1,1) block=(512,1,1) lds={LDS}\n" + '.amdgcn_target "amdgcn-amd-amdhsa--gfx950"\n' + gen(NAME, stamps, opts)
    open(path, 'w').write(asm)

def bench(base, variants):
    hdr = []; ks = []
    for nm, op in variants:
        hdr.append(f"; @launch kernel={nm} grid=(256,1,1) block=(512,1,1) lds={LDS}")
        ks.append(gen(nm, True, op))
    asm = "\n".join(hdr) + '\n.amdgcn_target "amdgcn-amd-amdhsa--gfx950"\n' + "\n".join(ks)
    build(asm, base, variants[0][0])
    open(base + ".sh", "w").write("export NST=14\n" + "".join(f"timeout 60 ./run {os.path.basename(base)}.co 1 15 256 {nm}:256:512:{LDS}\n" for nm, _ in variants))

if __name__ == "__main__":
    official(path='v5.s')
    bench('g5', [("g5a_kernel", dict(st4=1))])
```

```python
import sys, os
sys.path.insert(0, 'bench')
from asmlib import kd, build
NAME = "standalone__deep_cross_pnn__recsys_kernel"
HDR = open('standalone__deep_cross_pnn__recsys.s.ref').read().split('; Override')[0]

def AP(s): return s*16384
BS0 = 65536
IDXA = AP(3)
IDXP = BS0 + 2*16384
WRAW = BS0 + 3*16384
RED = BS0 + 4*16384
WP = WRAW + 20480
WP6 = WP + 22*1024
LDSEND = WP6 + 6*256
LDS = 163840
assert LDSEND <= LDS
FLOFF = 8 << 20
WSREC = 16 << 20
SPIN = 200000

class G:
    def __init__(s): s.l = []; s.q = []; s.vq = []; s.vdone = 0; s.n = 0
    def E(s, x):
        s.l.append("    " + x)
        s.n += (int(x.split()[1]) + 1) if x.startswith("s_nop") else 1
    def L(s, x): s.l.append(x + ":")
    def ds(s, x, tag=None): s.E(x); s.q.append(tag)
    def wait_ds(s, tag=None):
        if tag is None:
            n = 0
            if not s.q: return
        else:
            c = [i for i, t in enumerate(s.q) if t == tag]
            if not c: return
            n = len(s.q) - 1 - max(c)
        s.E(f"s_waitcnt lgkmcnt({min(n,15)})")
        n = min(n, 15)
        s.q = s.q[len(s.q)-n:] if n else []
    def vm(s, x, tag=None): s.E(x); s.vq.append(tag)
    def wait_vm(s, tags):
        c = [i for i, t in enumerate(s.vq) if t in tags]
        if not c or max(c) < s.vdone: return
        n = len(s.vq) - 1 - max(c)
        assert n <= 63
        s.E(f"s_waitcnt vmcnt({n})"); s.vdone = max(c) + 1
    def since(s, mark, need):
        d = s.n - mark
        if d < need: s.E(f"s_nop {need - d - 1}")
    def srd(s, d, p, n):
        s.E(f"s_mov_b32 s{d}, s{p}"); s.E(f"s_mov_b32 s{d+1}, s{p+1}"); s.E(f"s_mov_b32 s{d+2}, {n}"); s.E(f"s_mov_b32 s{d+3}, 0x20000")

PSCH = {
    'A': lambda js, b: -1 if b < 2 or b == 6 else [6, 8, 10, 12][js] if b == 2 else [14, 16, 18, 20][js] if b == 3 else 22 if b == 4 else 23,
    'B': lambda js, b: -1 if b < 1 or b == 6 else 4*b - 2 + js,
    'C': lambda js, b: -1 if b < 2 or b == 6 else 22 if b < 4 else 23,
    'D': lambda js, b: -1 if b < 3 or b == 6 else [12, 14, 16, 18][js] if b == 3 else 22 if b == 4 else 23,
    'F': lambda js, b: -1 if b < 3 or b == 6 else 19 + b,
    'G': lambda js, b: -1 if b < 4 or b == 6 else 18 + b,
    'H': lambda js, b: -1 if b < 3 or b == 6 else 22 if b == 3 else 23 if js < 2 + 2*(b-4) and b == 4 or (b == 4) else 23,
    'E': lambda js, b: -1 if b < 2 or b == 6 else [4, 6, 8, 10][js] if b == 2 else [12, 13, 14, 15][js] if b == 3 else [16, 17, 18, 19][js] if b == 4 else 22,
}

def gen(name=NAME, stamps=False, opts=None):
    o = dict(prioL=0, prioC=2, lead=4, dord=1, nopnn=0, nocr=0, nocm=0, notr=0, chk=22, rot=1, rsel=0, sh=1, lfl=' sc1', pfl=' sc1',
             ns=4, cpf=1, nin=0, psch='A', tlag=3, t0=2, npre=99, ppst=3, lb=23)
    if opts: o.update(opts)
    NS = o['ns']; PD = NS - 1
    g = G(); E = g.E
    P = "L" + name.replace("_kernel", "")[-10:] + "_"
    role = dict(L=True)
    def stamp(k):
        if 'diag' in o:
            if o['diag'] >= 10:
                if k == 0: E("s_memrealtime s[80:81]")
                elif k in (1, 2, 3, 5) and not role['L']: E(f"s_memtime s[{80+2*k}:{81+2*k}]")
                return
            if k == o['diag'] and (k == 0 or not role['L']): E(f"s_memrealtime s[{80+2*k}:{81+2*k}]")
            return
        if stamps and o.get('clk') and role['L'] and k in (1, 2, 3): E(f"s_memtime s[{80+2*k}:{81+2*k}]")
        elif stamps: E(f"s_memrealtime s[{80+2*k}:{81+2*k}]")
    g.l.append(f".text\n.globl {name}\n.p2align 8\n.type {name},@function\n{name}:")
    stamp(0)
    E("s_cmp_ge_u32 s2, 256"); E(f"s_cbranch_scc1 {P}END")
    E("s_load_dwordx16 s[4:19], s[0:1], 0"); E("s_load_dwordx4 s[20:23], s[0:1], 64")
    E("v_lshrrev_b32 v1, 6, v0")
    E("s_and_b32 s64, s2, 7"); E("s_lshl_b32 s64, s64, 2")
    E("v_readfirstlane_b32 s69, v1")
    E("s_lshr_b32 s70, s2, 6"); E("s_add_u32 s64, s64, s70")
    E("s_lshr_b32 s67, s2, 3"); E("s_and_b32 s67, s67, 7")
    E("s_and_b32 s65, s67, 3"); E("s_lshr_b32 s66, s67, 2")
    E("s_lshl_b32 s68, s64, 7")
    RB = o['rot']
    def cls(t):
        if t == 0 or not RB: return '0'
        if t == 1: return 'A'
        if t == 24: return 'D'
        return 'B' if t & 1 else 'C'
    def fo(t): return 24 if t == 0 else t - 1
    E("v_and_b32 v250, 63, v0")
    E("s_cmp_ge_u32 s69, 4"); E(f"s_cbranch_scc1 {P}CSTART")
    B1R, W2R = 224, 232
    def load_b1w2(tmp):
        g.srd(48, 12, 512); g.srd(52, 14, 512)
        E(f"v_lshrrev_b32 v{tmp}, 4, v250"); E(f"v_lshlrev_b32 v{tmp}, 3, v{tmp}")
        E("s_lshl_b32 s71, s72, 7")
        for j in range(4): E(f"buffer_load_dwordx2 v[{B1R+2*j}:{B1R+2*j+1}], v{tmp}, s[48:51], s71 offen offset:{32*j}")
        for j in range(4): E(f"buffer_load_dwordx2 v[{W2R+2*j}:{W2R+2*j+1}], v{tmp}, s[52:55], s71 offen offset:{32*j}")
    D = 192; WREG = 208; SUM = 216; T = 220; F6 = 228; VB0, VB1, WA, WA6 = 236, 237, 238, 239
    def F(js, b, h=0): return ((js*6 + b)*2 + h)*4 if b < 6 else F6 + h*4
    FR = [(js, b) for b in (6, 0, 1, 2, 3, 4, 5) for js in (range(4) if b < 6 else (0,))]
    ps = PSCH[o['psch']]
    PS = {x: ps(*x) for x in FR}
    R8, P8, TA, TB, TC, VIX, L16 = range(T, T+7)
    host = [x for x in FR if PS[x] < 0][-3:]
    hreg = [F(*x) + k for x in host for k in range(2, 8)]
    VCA0, VCA1, VPC, VI0, VIa, VId, VIP0, VIP3, VIP6 = hreg[:9]
    VIB = hreg[9:13]; VIC = hreg[13:17]
    if RB: dem = [(0, 1), (2,)] + [(t, t+2) for t in (3, 4, 7, 8, 11, 12, 15, 16, 19, 20)] + [(23, 24)]
    else: dem = [(0, 1), (2,)] + [(t, t+1) for t in range(3, 25, 2)]
    dem = [(max(d) - PD, d, j) for d in dem for j in range(4)]
    slots = [(PS[x], F(*x) + k) for x in FR if x not in host for k in (2, 4, 6)]
    slots += [(99, r) for r in range(240, 256, 2) if not (o.get('trace') and r in (250, 254))]
    slots += [(o.get('tfirst', 0) - 1 if o['nin'] else 99, r) for r in range(D, D+24, 2)]
    dem.sort(key=lambda x: -x[0]); slots.sort(key=lambda x: -x[0])
    AO = {}; aoreads = []
    for (dth, d, j), (ex, r) in zip(dem, slots):
        assert ex >= max(dth, -1), (dth, d, ex)
        for k, t in enumerate(d): AO[(t, j)] = r + k
        aoreads.append((d, j, r))
    aoreads.sort(key=lambda x: (x[0], x[1]))
    if o['prioL']: E(f"s_setprio {o['prioL']}")
    if RB:
        E(f"s_lshr_b32 s94, s2, {6 + o['rsel']}"); E("s_xor_b32 s94, s94, s66"); E("s_and_b32 s94, s94, 1")
        if o['sh'] == 0: E("s_mov_b32 s99, s94")
        else:
            if o['sh'] == 1: E("s_and_b32 s70, s65, 1")
            elif o['sh'] == 2: E("s_lshr_b32 s70, s65, 1")
            else: E("s_lshr_b32 s70, s2, 7")
            E("s_and_b32 s70, s70, s94")
            E("s_sub_u32 s94, s94, s70"); E("s_sub_u32 s99, s94, s70")
    E(f"v_lshrrev_b32 v{R8}, 3, v250")
    E(f"v_and_b32 v{P8}, 7, v250")
    E(f"v_mul_u32_u24 v{TA}, 37, v250"); E(f"v_lshrrev_b32 v{TA}, 8, v{TA}")
    E(f"v_mul_u32_u24 v{VIX}, 288, v{TA}")
    E(f"v_lshl_add_u32 v{VIX}, v250, 4, v{VIX}")
    E(f"v_lshlrev_b32 v{L16}, 4, v250")
    E(f"v_lshrrev_b32 v{TA}, 4, v250")
    E(f"v_lshlrev_b32 v{TB}, 2, v{TA}")
    E(f"v_and_b32 v{TC}, 15, v250")
    E(f"v_xor_b32 v{TC}, v{TC}, v{TB}")
    E(f"v_lshlrev_b32 v{TC}, 4, v{TC}")
    E(f"v_lshl_add_u32 v{VB0}, v{TA}, 9, v{TC}")
    E(f"v_xor_b32 v{VB1}, 32, v{VB0}")
    E("s_lshl_b32 s73, s69, 12")
    E(f"s_add_u32 s75, s73, {BS0}")
    E("s_mul_i32 s72, s65, 819200"); E("s_lshl_b32 s70, s66, 8"); E("s_add_u32 s72, s72, s70")
    E("s_lshl_b32 s70, s69, 13"); E("s_add_u32 s72, s72, s70")
    if RB:
        E(f"s_lshl_b32 s70, s94, 15"); E("s_add_u32 s95, s72, s70"); E("s_sub_u32 s96, s72, s70")
        E(f"s_lshl_b32 s70, s99, 15"); E("s_add_u32 s100, s72, s70"); E("s_sub_u32 s101, s72, s70")
        E(f"s_lshl_b32 s97, s94, 2"); E(f"s_lshl_b32 s98, s99, 2")
    def SB(t): return {'0': 72, 'A': 95, 'D': 96, 'B': 100, 'C': 101}[cls(t)]
    E("s_lshl_b32 s70, s69, 5"); E("s_add_u32 s70, s70, s68"); E("s_mul_i32 s70, s70, 400")
    E("s_mul_i32 s71, s65, 100"); E("s_add_u32 s70, s70, s71")
    E("s_lshl_b32 s77, s67, 4"); E("s_lshl_b32 s78, s69, 2"); E("s_add_u32 s77, s77, s78")
    E("s_add_u32 s78, s77, s68"); E("s_mul_i32 s78, s78, 400")
    E(f"s_add_u32 s79, s73, {IDXP}")
    E("s_waitcnt lgkmcnt(0)")
    if o.get('pst') == 1: stamp(1)
    g.srd(24, 4, 1638400)
    for j in range(4):
        E(f"s_add_u32 m0, s73, {IDXA + j*1024}")
        if j: E(f"s_add_u32 s70, s70, 3200")
        else: E("s_nop 0")
        g.vm(f"buffer_load_dwordx4 v{VIX}, s[24:27], s70 offen lds", 'ia')
    E("s_mov_b32 m0, s79"); E("s_nop 0")
    g.vm(f"buffer_load_dwordx4 v{L16}, s[24:27], s78 offen lds", 'ip')
    E("s_mov_b32 exec_hi, 15")
    g.vm(f"buffer_load_dwordx4 v{L16}, s[24:27], s78 offen offset:1024 lds", 'ip')
    E("s_mov_b32 exec_hi, -1")
    g.srd(32, 10, 3276800)
    def mkB(t, ii):
        def f():
            E(f"s_add_u32 m0, s75, {(t % NS)*16384 + ii*1024}")
            E(f"s_add_u32 s70, s{SB(t)}, {fo(t)*32768 + ii*2048}")
            g.vm(f"buffer_load_dwordx4 v{VB0 if ii < 2 else VB1}, s[32:35], s70 offen{o.get('bfl','')} lds", ('d', t))
        return f
    def mkA(t, j):
        def f():
            E(f"s_add_u32 m0, s73, {AP(t % NS) + j*1024}"); E("s_nop 0")
            g.vm(f"buffer_load_dwordx4 v{AO[(t, j)]}, s[28:31], 0 offen{o.get('afl','')} lds", ('d', t))
        return f
    def mkP(x):
        def f():
            r = F(*x)
            g.vm(f"buffer_load_dwordx4 v[{r+4}:{r+7}], v{r+1}, s[28:31], 0 offen{o.get('pfl2','')}", ('p', x))
            g.vm(f"buffer_load_dwordx4 v[{r}:{r+3}], v{r}, s[28:31], 0 offen{o.get('pfl2','')}", ('p', x))
        return f
    for t in (0, 1):
        for ii in range(4): mkB(t, ii)()
    g.srd(28, 6, 12800000)
    E(f"v_lshrrev_b32 v{TA}, 1, v{R8}"); E(f"v_xor_b32 v{TA}, v{TA}, v{P8}")
    E(f"v_lshlrev_b32 v{VCA0}, 4, v{TA}"); E(f"v_xor_b32 v{VCA1}, 64, v{VCA0}")
    E(f"v_mul_u32_u24 v{VI0}, 112, v{R8}"); E(f"s_add_u32 s70, s73, {IDXA}"); E(f"v_add_u32 v{VI0}, s70, v{VI0}")
    if RB:
        E(f"v_add_u32 v{VIa}, s97, v{VI0}"); E(f"v_subrev_u32 v{VId}, s97, v{VI0}")
        E(f"v_add_u32 v{VIB[0]}, s98, v{VI0}"); E(f"v_subrev_u32 v{VIC[0]}, s98, v{VI0}")
        for j in range(1, 4): E(f"v_add_u32 v{VIB[j]}, {1024*j}, v{VIB[0]}"); E(f"v_add_u32 v{VIC[j]}, {1024*j}, v{VIC[0]}")
    else:
        for j in range(4): E(f"v_add_u32 v{VIB[j]}, {1024*j}, v{VI0}")
    def vbase(t, j): return {'0': VI0, 'A': VIa, 'D': VId, 'B': VIB[j], 'C': VIC[j]}[cls(t)] if RB or j == 0 else VIB[j]
    E(f"v_bfe_u32 v{TA}, v250, 4, 1"); E(f"v_and_b32 v{TB}, 3, v250"); E(f"v_lshl_add_u32 v{TA}, v{TA}, 2, v{TB}"); E(f"v_lshlrev_b32 v{VPC}, 4, v{TA}")
    E(f"v_bfe_u32 v{TC}, v250, 2, 2"); E(f"v_mul_u32_u24 v{TA}, 96, v{TC}"); E(f"v_add_u32 v{TA}, s79, v{TA}")
    E(f"v_lshrrev_b32 v{TB}, 5, v250")
    E(f"v_lshl_add_u32 v{VIP0}, v{TB}, 3, v{TA}"); E(f"v_add_u32 v{VIP3}, 1200, v{VIP0}")
    E(f"v_mul_u32_u24 v{TB}, 800, v{TB}"); E(f"v_lshl_add_u32 v{TB}, v{TC}, 2, v{TB}"); E(f"v_add_u32 v{VIP6}, s79, v{TB}")
    for js in range(4): E(f"v_mov_b32 v{SUM+js}, 0")
    E(f"v_add_u32 v{WA}, {WP}, v{L16}")
    E(f"v_lshlrev_b32 v{WA6}, 2, v250"); E(f"v_add_u32 v{WA6}, {WP6}, v{WA6}")
    for k, m in enumerate((0x55555555, 0xaaaaaaaa, 0x33333333, 0xcccccccc)): E(f"s_mov_b32 s{48+2*k}, {m:#x}"); E(f"s_mov_b32 s{49+2*k}, {m:#x}")
    def rd_ao(d, j, r):
        if len(d) == 2 and cls(d[0]) == cls(d[1]): g.ds(f"ds_read2_b32 v[{r}:{r+1}], v{vbase(d[0], j)} offset0:{fo(d[0])} offset1:{fo(d[1])}", ('a', d, j))
        else:
            for k, t in enumerate(d): g.ds(f"ds_read_b32 v{r+k}, v{vbase(t, 0)} offset:{j*1024 + 4*fo(t)}", ('a', d, j))
    def cv_ao(d, j, r):
        g.wait_ds(('a', d, j))
        for k in range(len(d)): E(f"v_lshl_add_u32 v{r+k}, v{r+k}, 7, v{VCA0 + (j&1)}")
    def rd_p(x):
        js, b = x
        if b == 6: g.ds(f"ds_read2_b32 v[{F6}:{F6+1}], v{VIP6} offset0:96 offset1:196", ('pi', x))
        else:
            k = (js % 3)*100 + 4*b
            g.ds(f"ds_read2_b32 v[{F(*x)}:{F(*x)+1}], v{VIP3 if js == 3 else VIP0} offset0:{k} offset1:{k+1}", ('pi', x))
    def cv_p(x):
        g.wait_ds(('pi', x))
        for k in range(2): E(f"v_lshl_add_u32 v{F(*x)+k}, v{F(*x)+k}, 7, v{VPC}")
    g.wait_vm(['ia'])
    if o.get('pst') == 1: stamp(2)
    first = [a for a in aoreads if min(a[0]) < 3]; later = [a for a in aoreads if min(a[0]) >= 3]
    for a in first: rd_ao(*a)
    FRs = sorted(FR, key=lambda x: PS[x])
    pro = [x for x in FRs if PS[x] < 0]
    for j in range(4):
        cv_ao(*first[j]); mkA(0, j)()
    for j in range(4): mkA(1, j)()
    E("s_barrier")
    if o.get('pst'): stamp(3 if o['pst'] == 1 else 1)
    g.wait_vm(['ip'])
    for a in first[4:]: cv_ao(*a)
    if PD >= 3:
        for j in range(4): mkA(2, j)()
    if o.get('pst') == 2: stamp(2)
    for i, x in enumerate(FRs):
        rd_p(x)
        if i >= 8: cv_p(FRs[i-8])
    k = 0; pre = pro[:o['npre']]
    for i, a in enumerate(later):
        rd_ao(*a)
        if i < 8: cv_p(FRs[len(FRs)-8+i])
        if i >= 8: cv_ao(*later[i-8])
        if i == 8 and PD >= 3:
            for ii in range(4): mkB(2, ii)()
            if o.get('pst') == 2: stamp(3)
        if i > 8 and i % o.get('pint', 3) == 0 and k < len(pre) and pre[k] not in host: mkP(pre[k])(); k += 1
    for a in later[-8:]: cv_ao(*a)
    for x in pre[k:]: mkP(x)()
    pend0 = pro[o['npre']:]
    if o.get('pst') == 2: stamp(4)
    g.wait_vm([('d', 0)])
    if o.get('pst') == 2: stamp(5)
    E("s_barrier")
    if o.get('pst') != 2: stamp(4 if o.get('pst') else 1)
    TR0, TR1 = 254, 250
    if o.get('trace'): E("s_memtime s[38:39]"); E("s_memrealtime s[40:41]")
    def tr_items(x):
        r = F(*x)
        def a():
            g.wait_vm([('p', x)])
            E("s_mov_b64 vcc, s[48:49]")
            for w in range(4): E(f"v_cndmask_b32_dpp v{T+w}, v{r+4+w}, v{r+w}, vcc quad_perm:[1,0,3,2] row_mask:0xf bank_mask:0xf")
            E("s_mov_b64 vcc, s[50:51]")
            for w in range(4): E(f"v_cndmask_b32_dpp v{T+4+w}, v{r+w}, v{r+4+w}, vcc quad_perm:[1,0,3,2] row_mask:0xf bank_mask:0xf")
        def b():
            for c0 in range(2):
                for w in range(2): E(f"v_permlane32_swap_b32 v{T+4*c0+w}, v{T+4*c0+w+2}")
            E("s_mov_b64 vcc, s[52:53]")
            for c0 in range(2):
                for w in range(2): E(f"v_cndmask_b32_dpp v{r+4*c0+w}, v{T+4*c0+2+w}, v{T+4*c0+w}, vcc quad_perm:[2,3,0,1] row_mask:0xf bank_mask:0xf")
        def c():
            E("s_mov_b64 vcc, s[54:55]")
            for c0 in range(2):
                for w in range(2): E(f"v_cndmask_b32_dpp v{r+4*c0+2+w}, v{T+4*c0+w}, v{T+4*c0+2+w}, vcc quad_perm:[2,3,0,1] row_mask:0xf bank_mask:0xf")
            st['trm'] = g.n
        return [a, b, c]
    for i, x in enumerate(pend0): PS[x] = i // o['ppst']
    FRs = sorted(FR, key=lambda x: PS[x])
    TS = {}; cnt = {t: 0 for t in range(26)}
    for x in FRs:
        t = max(o['t0'], PS[x] + o['tlag'])
        while t < 25 and cnt[t] >= o.get('trps', 1 if t < 22 else 4): t += 1
        t = min(t, 25); TS[x] = t; cnt[t] += 1
    rdy = {b: max(TS[x] for x in FR if x[1] == b) + 1 for b in range(7)}
    allt = [(6, 6)] + [x for b in range(6) for x in [(6, b)] + [(I, b) for I in range(b+1)]]
    sched = {t: [] for t in range(26)}
    tprev = o.get('tfirst', 0); last = o.get('last', 24)
    for n, (I, J) in enumerate(allt):
        if n < o['nin']:
            t = max(rdy[I], rdy[J], tprev)
            while t < 25 and len(sched[t]) >= o.get('tps', 1): t += 1
            if t > last: t = 25
            tprev = t + o.get('tgap', 0)
        else: t = 25
        sched[min(t, 25)].append((I, J))
    st = dict(wsel=0, trm=-99, pend={}, mark={})
    def wread(I, J):
        w = WREG + 4*st['wsel']; st['wsel'] ^= 1
        if I < 6: g.ds(f"ds_read_b128 v[{w}:{w+3}], v{WA} offset:{(J*(J+1)//2 + I)*1024}", ('w', I, J))
        elif J == 6: g.ds(f"ds_read_b128 v[{w}:{w+3}], v{WA} offset:{21*1024}", ('w', I, J))
        else: g.ds(f"ds_read_b32 v{w}, v{WA6} offset:{J*256}", ('w', I, J))
        return w
    def fmops(js):
        p = st['pend'].pop(js, None)
        if p is None: return []
        I, J, w = p
        g.wait_ds(('w', I, J)); g.since(st['mark'][js], 8)
        if I < 6: return [f"v_fmac_f32 v{SUM+js}, v{D+4*js+r}, v{w+r}" for r in range(4)]
        if J == 6: return [f"v_fmac_f32 v{SUM+k}, v{D+k}, v{w+k}" for k in range(4)]
        return [f"v_fmac_f32 v{SUM+js}, v{D+4*js+js}, v{w}"]
    def tile_items(tl):
        it = []
        for (I, J) in tl:
            loc = {}
            def part(js, I=I, J=J, loc=loc):
                if js == 0: loc['w'] = wread(I, J)
                for x in fmops(js): E(x)
                nx = fmops((js+1) & 3) if (js < 3 or (I, J) != (6, 6)) else []
                if (I, J) == (6, 6) and js > 0:
                    for x in nx: E(x)
                    return
                g.since(st['trm'], 2)
                d = D + 4*js
                E(f"v_mfma_f32_16x16x32_bf16 v[{d}:{d+3}], v[{F(js,I,0)}:{F(js,I,0)+3}], v[{F(js,J,0)}:{F(js,J,0)+3}], 0")
                for x in nx[:2]: E(x)
                E(f"v_mfma_f32_16x16x32_bf16 v[{d}:{d+3}], v[{F(js,I,1)}:{F(js,I,1)+3}], v[{F(js,J,1)}:{F(js,J,1)+3}], v[{d}:{d+3}]")
                st['mark'][js] = g.n; st['pend'][js] = (I, J, loc['w'])
                for x in nx[2:]: E(x)
            for js in range(4): it.append(lambda js=js, part=part: part(js))
        return it
    def flush():
        for js in range(4):
            for x in fmops(js): E(x)
    for t in range(25):
        dm = []
        if t + PD <= 24:
            As = [mkA(t+PD, j) for j in range(4)]; Bs = [mkB(t+PD, i) for i in range(4)]
            dm = As + Bs if o['dord'] == 1 else Bs + As if o['dord'] == 0 else [x for p in zip(As, Bs) for x in p]
        dm += [mkP(x) for x in FRs if PS[x] == t]
        wk = []
        if not o['notr']:
            for x in FRs:
                if TS[x] == t: wk += tr_items(x)
        if not o['nopnn']: wk += tile_items(sched[t])
        lead = o['lead']; nw = len(wk)
        seq = dm[:lead]; rest = dm[lead:]
        k = 0
        for i, w in enumerate(wk):
            seq.append(w)
            tgt = ((i+1) * len(rest)) // nw
            while k < tgt: seq.append(rest[k]); k += 1
        seq += rest[k:]
        for f in seq: f()
        if o.get('trace'):
            E("s_waitcnt lgkmcnt(0)"); g.q = []
            E(f"v_writelane_b32 v{TR0}, s38, {t}"); E(f"v_writelane_b32 v{TR1}, s40, {t}")
            if t: E(f"v_writelane_b32 v{TR0}, s42, {31+t}"); E(f"v_writelane_b32 v{TR1}, s46, {31+t}")
            E("s_memtime s[42:43]")
        if t <= o['lb']:
            g.wait_vm([('d', t+1)] if t < o['lb'] else [('d', x) for x in range(t+1, 25)])
            if o.get('trace'): E("s_memtime s[46:47]")
            E("s_barrier")
            if t == 11 and not o.get('pst'): stamp(2)
            if o.get('trace'): E("s_memtime s[38:39]"); E("s_memrealtime s[40:41]")
    if o.get('pst') != 2: stamp(5 if o.get('pst') else 3)
    if o.get('trace'):
        E("s_memtime s[38:39]"); E("s_memrealtime s[40:41]"); E("s_waitcnt lgkmcnt(0)"); g.q = []
        E(f"v_writelane_b32 v{TR0}, s38, 25"); E(f"v_writelane_b32 v{TR1}, s40, 25")
        E("v_mbcnt_lo_u32_b32 v240, -1, 0"); E("v_mbcnt_hi_u32_b32 v240, -1, v240")
        E("s_lshl_b32 s70, s2, 9"); E("s_add_u32 s70, s70, 0x8010000"); E("v_lshlrev_b32 v241, 2, v240"); E("v_add_u32 v241, s70, v241")
        E("s_cmp_lg_u32 s69, 0"); E(f"s_cbranch_scc1 {P}NOTR")
        E(f"global_store_dword v241, v{TR0}, s[22:23]"); E(f"global_store_dword v241, v{TR1}, s[22:23] offset:256")
        g.L(f"{P}NOTR")
        E("s_waitcnt vmcnt(0)"); g.vdone = len(g.vq)
    done = {x for x in FR if TS[x] < 25}
    for (I, J) in sched[25]:
        for b in (I, J):
            for x in FRs:
                if x[1] == b and x not in done and not o['notr']:
                    for f in tr_items(x): f()
                    done.add(x)
        if not o['nopnn']:
            for f in tile_items([(I, J)]): f()
    flush()
    E("v_mbcnt_lo_u32_b32 v240, -1, 0"); E("v_mbcnt_hi_u32_b32 v240, -1, v240")
    for sh in (1, 2, 4, 8):
        for js in range(4): E(f"v_add_f32_dpp v{SUM+js}, v{SUM+js}, v{SUM+js} row_shr:{sh} row_mask:0xf bank_mask:0xf bound_ctrl:1")
    E("v_lshrrev_b32 v248, 4, v240"); E("v_lshlrev_b32 v248, 6, v248")
    E("s_lshl_b32 s70, s69, 4"); E(f"s_add_u32 s70, s70, {RED + 2048}")
    E("v_add_u32 v248, s70, v248")
    E("s_mov_b32 exec_lo, 0x80008000"); E("s_mov_b32 exec_hi, 0x80008000")
    E(f"ds_write_b128 v248, v[{SUM}:{SUM+3}]")
    E("s_mov_b64 exec, -1")
    E("s_waitcnt lgkmcnt(0)")
    if not o.get('pst'): stamp(4)
    E("s_barrier")
    if stamps:
        if not o.get('pst'): stamp(5)
        g.srd(44, 20, 256)
        E("s_cmp_eq_u32 s69, 0"); E(f"s_cbranch_scc1 {P}STAMP")
    E("s_endpgm")
    def nonce_wait(lbl, vr):
        E(f"v_readfirstlane_b32 s78, v{vr}")
        E("s_cmp_lg_u32 s78, 0"); E(f"s_cbranch_scc1 {lbl}_x")
        E(f"s_mov_b32 s71, {SPIN}"); E("s_lshl_b32 s79, s64, 2")
        g.L(lbl)
        E(f"buffer_load_dword v{vr}, off, s[44:47], s79 offset:128 sc0 sc1")
        E("s_waitcnt vmcnt(0)")
        E(f"v_readfirstlane_b32 s78, v{vr}")
        E("s_sub_u32 s71, s71, 1"); E("s_cmp_eq_u32 s71, 0"); E(f"s_cbranch_scc1 {lbl}_x")
        E("s_cmp_eq_u32 s78, 0"); E(f"s_cbranch_scc1 {lbl}")
        g.L(lbl + "_x")
    g.q = []; role['L'] = False
    g.L(f"{P}CSTART")
    if o['prioC']: E(f"s_setprio {o['prioC']}")
    VA = 128; VBR = 130; VX = 134; RDY = 150
    def FA(ks, st): return 64 + ks*32 + st*4
    def FB(ks, nt): return 64 + ks*32 + 16 + nt*4
    def ACC(nt, st): return (st*4 + nt)*4
    E("s_sub_u32 s72, s69, 4")
    if o.get('cpf'):
        E("s_getpc_b64 s[76:77]"); g.L(f"{P}PC")
        E(f"s_sub_u32 s76, s76, {P}PC-{name}"); E("s_subb_u32 s77, s77, 0")
        E("s_lshr_b32 s70, s2, 3"); E("s_lshl_b32 s70, s70, 2"); E("s_add_u32 s70, s70, s72"); E("s_lshl_b32 s70, s70, 9")
        E("v_lshlrev_b32 v240, 6, v250"); E("v_add_u32 v240, s70, v240")
        E(f"v_min_u32 v240, {P}END-{name}, v240")
        E("v_mov_b32 v241, s77"); E("v_add_co_u32 v240, vcc, s76, v240"); E("s_nop 1"); E("v_addc_co_u32 v241, vcc, 0, v241, vcc")
        E("s_mov_b64 exec, 0xff")
        E("global_load_dword v242, v[240:241], off")
        E("s_mov_b64 exec, -1")
    E("s_and_b32 s73, s72, 1"); E("s_lshr_b32 s74, s72, 1")
    E("v_lshlrev_b32 v254, 4, v250")
    E("s_mul_i32 s70, s72, 5120")
    E("s_memrealtime s[96:97]")
    E("s_waitcnt lgkmcnt(0)")
    g.srd(36, 8, 20000)
    for i in range(5):
        E(f"s_add_u32 m0, s70, {WRAW + i*1024}"); E(f"s_add_u32 s71, s70, {i*1024}")
        E("buffer_load_dwordx4 v254, s[36:39], s71 offen lds")
    g.srd(40, 22, WSREC); g.srd(44, 20, 256)
    load_b1w2(248)
    E("v_and_b32 v140, 15, v250"); E("v_lshrrev_b32 v141, 4, v250"); E("v_bfe_u32 v142, v250, 1, 3")
    E("v_xor_b32 v142, v141, v142"); E("v_lshlrev_b32 v142, 4, v142"); E("v_lshl_add_u32 v142, v140, 7, v142")
    E("s_lshl_b32 s70, s73, 13"); E(f"v_add_u32 v{VA}, s70, v142"); E(f"v_xor_b32 v{VA+1}, 64, v{VA}")
    E("v_bfe_u32 v142, v250, 2, 2")
    E("v_lshl_add_u32 v143, v141, 3, v142"); E("v_lshlrev_b32 v143, 8, v143")
    E("v_bfe_u32 v144, v250, 1, 1"); E("s_lshl_b32 s70, s74, 3"); E("v_or_b32 v144, s70, v144")
    E("v_lshlrev_b32 v142, 2, v142"); E("v_xor_b32 v144, v144, v142")
    E("v_and_b32 v142, 1, v141"); E("v_lshlrev_b32 v142, 1, v142"); E("v_xor_b32 v144, v144, v142")
    E("v_lshl_add_u32 v143, v144, 4, v143")
    E("v_and_b32 v144, 1, v250"); E("v_lshl_add_u32 v143, v144, 3, v143")
    for nt in range(4):
        E(f"v_xor_b32 v142, {nt*32}, v143"); E(f"v_add_u32 v{VBR+nt}, {BS0}, v142")
    E(f"v_lshlrev_b32 v{VX}, 4, v250")
    E(f"s_mov_b32 s76, {WRAW}")
    E("v_lshrrev_b32 v140, 4, v250")
    E("v_bfe_u32 v141, v250, 2, 2")
    E("v_and_b32 v142, 3, v250")
    E("v_mul_u32_u24 v143, 24, v140"); E("v_add_u32 v143, v143, v141"); E("v_mul_u32_u24 v143, 200, v143")
    E("v_mul_u32_u24 v144, 48, v142"); E(f"v_add3_u32 v145, v143, v144, s75".replace("s75", "s76"))
    E("v_mul_u32_u24 v143, 24, v141"); E("v_add_u32 v143, v143, v142")
    E("v_mul_u32_u24 v144, 200, v143"); E("v_add_u32 v144, s76, v144")
    E("v_lshl_add_u32 v151, v140, 1, v144")
    E("v_mul_u32_u24 v146, 48, v140"); E("v_add_u32 v146, v146, v144")
    E("v_mul_u32_u24 v144, 200, v140"); E("v_add_u32 v144, s76, v144")
    E("v_lshl_add_u32 v147, v143, 1, v144")
    E("v_lshl_add_u32 v153, v141, 1, v144")
    E(f"v_add_u32 v148, {WP}, v254")
    E(f"v_lshlrev_b32 v149, 2, v250"); E(f"v_add_u32 v149, {WP6}, v149")
    for r in range(48, 56): E(f"v_mov_b32 v{r}, 0")
    E("s_mov_b32 s75, 0xffff0000")
    E(f"s_waitcnt vmcnt(8)")
    E("s_barrier")
    big = [(I, J) for J in range(6) for I in range(J+1)] + [(6, 6)]
    own = {0: [0, 1, 3, 4, 6, 7], 1: [2, 8, 10, 11, 12, 21], 2: [5, 9, 13, 15, 16], 3: [14, 17, 18, 19, 20]}
    assert sorted(sum(own.values(), [])) == list(range(22))
    for cw in range(4):
        if cw < 3: E(f"s_cmp_lg_u32 s72, {cw}"); E(f"s_cbranch_scc1 {P}WB{cw+1}")
        mine = [(n, big[n]) for n in own[cw]]
        small = [J for J in range(6) if cw >= 2 and J % 2 == cw % 2]
        g.q = []
        for i, (n, (I, J)) in enumerate(mine):
            r = 4*i
            if I == 6: g.ds(f"ds_read_u16_d16_hi v48, v153 offset:{19200 + 192}", n); continue
            g.ds(f"ds_read_b64_tr_b16 v[{r}:{r+1}], v145 offset:{800*I + 8*J}", n)
            if I < J: g.ds(f"ds_read_b64 v[{r+2}:{r+3}], v146 offset:{800*J + 8*I}", n)
        for i, J in enumerate(small):
            g.ds(f"ds_read_u16_d16_hi v{48+2*i}, v147 offset:{19200 + 8*J}", ('s', J)); g.ds(f"ds_read_u16_d16_hi v{49+2*i}, v151 offset:{800*J + 192}", ('s', J))
        for i, (n, (I, J)) in enumerate(mine):
            r = 4*i; d = 24 + 8*(i % 3)
            g.wait_ds(n)
            if I == 6:
                for k in range(4):
                    m = 0x11111111 << k
                    E(f"s_mov_b32 vcc_lo, {m:#x}"); E(f"s_mov_b32 vcc_hi, {m:#x}")
                    E(f"v_cndmask_b32 v{d+k}, 0, v48, vcc")
            else:
                for k in range(4 if I < J else 2):
                    E(f"v_lshlrev_b32 v{d+2*k}, 16, v{r+k}"); E(f"v_and_b32 v{d+2*k+1}, s75, v{r+k}")
                if I < J:
                    for k in range(4): E(f"v_add_f32 v{d+k}, v{d+k}, v{d+4+k}")
            g.ds(f"ds_write_b128 v148, v[{d}:{d+3}] offset:{n*1024}", 'w')
        for i, J in enumerate(small):
            g.wait_ds(('s', J))
            E(f"v_add_f32 v{48+2*i}, v{48+2*i}, v{49+2*i}"); g.ds(f"ds_write_b32 v149, v{48+2*i} offset:{J*256}", 'w')
        if cw < 3: E(f"s_branch {P}WBDONE"); g.L(f"{P}WB{cw+1}")
    g.q = []
    g.L(f"{P}WBDONE")
    E("s_waitcnt lgkmcnt(0)")
    if o.get('pst') == 2: stamp(2)
    E("s_barrier")
    stamp(1)
    def Rl(s, ks):
        la = [f"ds_read_b128 v[{FA(ks,st)}:{FA(ks,st)+3}], v{VA+ks} offset:{AP(s) + st*2048}" for st in range(4)]
        lb = [[f"ds_read_b64_tr_b16 v[{FB(ks,nt)+2*hf}:{FB(ks,nt)+2*hf+1}], v{VBR+nt} offset:{s*16384 + ks*8192 + hf*1024}" for hf in range(2)] for nt in range(4)]
        if o['nocr'] == 1: return []
        return [la[0]] + lb[0] + [la[1]] + lb[1] + [la[2]] + lb[2] + [la[3]] + lb[3]
    MORD = [(0,0),(0,1),(1,0),(1,1),(0,2),(1,2),(2,0),(2,1),(2,2),(0,3),(1,3),(2,3),(3,0),(3,1),(3,2),(3,3)]
    mo = o.get('mord', 0)
    if mo == 3: MORD = [(nt, st if nt % 2 == 0 else 3-st) for nt in range(4) for st in range(4)]
    def Ml(ks, first=False):
        l = []
        for nt, st in MORD:
            a = ACC(nt, st)
            l.append(f"v_mfma_f32_16x16x32_bf16 v[{a}:{a+3}], v[{FB(ks,nt)}:{FB(ks,nt)+3}], v[{FA(ks,st)}:{FA(ks,st)+3}], " + ("0" if first else f"v[{a}:{a+3}]"))
        if o['nocm']: return ["s_nop 0"]*16
        return l
    def inter(ms, rs, tag):
        for i, m in enumerate(ms):
            E(m)
            if i < len(rs): g.ds(rs[i], tag)
    for t in range(25):
        s = t % NS
        if t == 0:
            for x in Rl(s, 0): g.ds(x, 0)
        else: inter(Ml(1), Rl(s, 0), 0)
        if t == 1:
            E("s_or_b32 s70, s72, s67"); E("s_cmp_lg_u32 s70, 0"); E(f"s_cbranch_scc1 {P}NOLEAD")
            E("s_lshl_b32 s70, s64, 2")
            E("s_or_b32 s96, s96, 1"); E(f"v_mov_b32 v{RDY}, s96")
            E("s_mov_b64 exec, 1")
            E(f"buffer_store_dword v{RDY}, off, s[44:47], s70 offset:128 sc0 sc1")
            E("s_mov_b64 exec, -1")
            g.L(f"{P}NOLEAD")
        if t == o['chk']:
            E("s_lshl_b32 s79, s64, 2")
            E(f"buffer_load_dword v{RDY+2}, off, s[44:47], s79 offset:128 sc0 sc1")
        g.wait_ds(0)
        inter(Ml(0, t == 0), Rl(s, 1), 1)
        g.wait_ds()
        if t <= o['lb']: E("s_barrier")
        if t == 11 and o.get('pst') != 2: stamp(2)
    for m in Ml(1): E(m)
    stamp(3)
    E("s_lshl_b32 s77, s64, 18"); E("s_lshl_b32 s70, s73, 17"); E("s_add_u32 s77, s77, s70")
    E("s_lshl_b32 s70, s65, 13"); E("s_add_u32 s77, s77, s70")
    E("s_lshl_b32 s70, s66, 12"); E("s_add_u32 s77, s77, s70")
    E("s_lshl_b32 s70, s74, 11"); E("s_add_u32 s77, s77, s70")
    def xstores(fl):
        for st in range(4):
            if st: E("s_add_u32 s77, s77, 32768")
            for cp in range(2):
                p = 64 + (st*2+cp)*4
                for h in range(2):
                    a = ACC(2*cp+h, st)
                    E(f"v_cvt_pk_bf16_f32 v{p+2*h}, v{a}, v{a+1}"); E(f"v_cvt_pk_bf16_f32 v{p+2*h+1}, v{a+2}, v{a+3}")
                E(f"buffer_store_dwordx4 v[{p}:{p+3}], v{VX}, s[40:43], s77 offen offset:{cp*1024}{fl}")
    E("s_lshl_b32 s75, s64, 1"); E("s_add_u32 s75, s75, s66"); E("s_lshl_b32 s75, s75, 2"); E("s_add_u32 s75, s75, s72")
    E("s_lshl_b32 s75, s75, 7"); E("s_lshl_b32 s71, s65, 2"); E("s_add_u32 s75, s75, s71"); E(f"s_add_u32 s75, s75, {FLOFF}")
    E("s_waitcnt vmcnt(0)")
    xstores(o.get('xfl', " sc0 sc1"))
    nonce_wait(f"{P}NWC", RDY+2)
    E("s_nop 0"); E(f"v_mov_b32 v{RDY}, s78")
    E("s_waitcnt vmcnt(0)")
    E("s_mov_b64 exec, 1")
    E(f"buffer_store_dword v{RDY}, off, s[40:43], s75 sc0 sc1")
    E("s_mov_b64 exec, -1")
    if not o.get('st4'): stamp(4)
    E("s_lshl_b32 s77, s64, 18"); E("s_lshl_b32 s71, s67, 15"); E("s_add_u32 s77, s77, s71")
    E("s_lshl_b32 s71, s72, 11"); E("s_add_u32 s77, s77, s71")
    E("v_mov_b32 v200, 0")
    E(f"s_mov_b32 s71, {SPIN}")
    E("s_lshl_b32 s70, s64, 1"); E("s_lshr_b32 s75, s72, 1"); E("s_add_u32 s70, s70, s75"); E("s_lshl_b32 s70, s70, 2")
    E("s_add_u32 s70, s70, s66"); E("s_and_b32 s75, s72, 1"); E("s_lshl_b32 s75, s75, 1"); E("s_add_u32 s70, s70, s75")
    E("s_lshl_b32 s70, s70, 7"); E(f"s_add_u32 s70, s70, {FLOFF}")
    E(f"buffer_load_dwordx4 v[204:207], off, s[40:43], s70{o['pfl']}")
    g.srd(56, 18, 8192)
    E("s_mov_b32 s79, 0xffff0000")
    for k in range(8):
        E(f"v_lshlrev_b32 v{2*k}, 16, v{B1R+k}"); E(f"v_and_b32 v{2*k+1}, s79, v{B1R+k}")
        E(f"v_lshlrev_b32 v{16+2*k}, 16, v{W2R+k}"); E(f"v_and_b32 v{16+2*k+1}, s79, v{W2R+k}")
    g.srd(60, 16, 2)
    E("v_mov_b32 v96, 0")
    for qq in range(1, 4): E(f"s_add_u32 s{73+qq}, s77, {qq*8192}")
    E("v_mov_b32 v97, 0xbdd2d3e8")
    if o.get('noflag'): E(f"s_branch {P}POLLED")
    E(f"s_branch {P}POLLT")
    g.L(f"{P}POLL")
    E(f"buffer_load_dwordx4 v[204:207], off, s[40:43], s70{o['pfl']}")
    g.L(f"{P}POLLT")
    E("s_sub_u32 s71, s71, 1"); E("s_cmp_eq_u32 s71, 0"); E(f"s_cbranch_scc1 {P}POLLED")
    E("s_waitcnt vmcnt(0)")
    for k in range(4): E(f"v_xor_b32 v{204+k}, s78, v{204+k}")
    E("v_or3_b32 v204, v204, v205, v206"); E("v_or_b32 v204, v204, v207")
    E("v_cmp_ne_u32 vcc, 0, v204"); E(f"s_cbranch_vccnz {P}POLL")
    g.L(f"{P}POLLED")
    if o.get('st4'): stamp(4)
    for qq in range(4):
        for cp in range(2):
            r = 32 + 8*qq + 4*cp
            E(f"buffer_load_dwordx4 v[{r}:{r+3}], v{VX}, s[40:43], s{73+qq if qq else 77} offen offset:{cp*1024}{o['lfl']}")
    E("buffer_load_short_d16_hi v96, v200, s[60:63], 0 offen")
    for qq in range(4):
        E(f"s_waitcnt vmcnt({7 - 2*qq})")
        if qq == 3: stamp(5)
        for k in range(8):
            E(f"v_lshlrev_b32 v{64+2*k}, 16, v{32+8*qq+k}"); E(f"v_and_b32 v{65+2*k}, s79, v{32+8*qq+k}")
        for k in range(16): E(f"v_add_f32 v{k}, v{k}, v{64+k}")
    N = 16
    for k in range(N): E(f"v_mul_f32 v{64+k}, v{k}, v{k}")
    for k in range(N): E(f"v_fmaak_f32 v{64+k}, v{64+k}, v97, 0xc0135761")
    for k in range(N): E(f"v_mul_f32 v{64+k}, v{64+k}, v{k}")
    for k in range(N): E(f"v_exp_f32 v{64+k}, v{64+k}")
    for k in range(N): E(f"v_mul_f32 v{k}, v{k}, v{16+k}")
    for k in range(N): E(f"v_add_f32 v{64+k}, 1.0, v{64+k}")
    for k in range(N): E(f"v_rcp_f32 v{64+k}, v{64+k}")
    E("s_lshl_b32 s70, s72, 8"); E(f"s_add_u32 s70, s70, {RED}")
    E("v_lshlrev_b32 v98, 2, v250"); E("v_add_u32 v99, s70, v98")
    for k in range(4): E(f"v_mul_f32 v{80+k}, v{k}, v{64+k}")
    for k in range(4, N): E(f"v_fmac_f32 v{80+(k&3)}, v{k}, v{64+k}")
    E("v_add_f32 v80, v80, v81"); E("v_add_f32 v82, v82, v83"); E("v_add_f32 v80, v80, v82")
    E("ds_write_b32 v99, v80")
    E("s_waitcnt lgkmcnt(0)")
    E("s_barrier")
    E("s_cmp_lg_u32 s72, 0"); E(f"s_cbranch_scc1 {P}END")
    E(f"v_add_u32 v98, {RED}, v98")
    for w in range(4): E(f"ds_read_b32 v{w}, v98 offset:{w*256}")
    E("ds_read_b32 v4, v98 offset:2048")
    E("s_lshl_b32 s70, s67, 4"); E("s_add_u32 s70, s70, s68"); E("s_lshl_b32 s70, s70, 1")
    E("v_lshlrev_b32 v43, 1, v250")
    E("s_waitcnt vmcnt(0) lgkmcnt(0)")
    E("v_add_f32 v0, v0, v1"); E("v_add_f32 v2, v2, v3"); E("v_add_f32 v0, v0, v4"); E("v_add_f32 v0, v0, v2")
    E("v_mov_b32 v1, v0"); E("s_nop 1"); E("v_permlane32_swap_b32 v0, v1"); E("s_nop 1"); E("v_add_f32 v0, v0, v1")
    E("v_mov_b32 v1, v0"); E("s_nop 1"); E("v_permlane16_swap_b32 v0, v1"); E("s_nop 1"); E("v_add_f32 v0, v0, v1")
    E("v_add_f32 v0, v0, v96")
    E("v_cvt_pk_bf16_f32 v0, v0, v0")
    E("s_mov_b64 exec, 0xffff")
    E("buffer_store_short v0, v43, s[56:59], s70 offen")
    if 'diag' in o:
        if o['diag'] == 6: E("s_waitcnt vmcnt(0)"); stamp(6)
        E("s_movk_i32 s75, 3000")
        if o['diag'] >= 10:
            a, b = {10: (1, 3), 11: (1, 2), 12: (3, 5)}[o['diag']]
            E("s_waitcnt lgkmcnt(0)")
            E(f"s_sub_u32 s76, s{80+2*b}, s{80+2*a}"); E("s_min_u32 s76, s76, 100000"); E("s_mul_i32 s76, s76, 6554"); E("s_lshr_b32 s76, s76, 16"); E("s_add_u32 s75, s75, s76")
        if 'dwg' in o: E(f"s_cmp_lg_u32 s2, {o['dwg']}"); E(f"s_cbranch_scc1 {P}END")
        g.L(f"{P}DIAG")
        E("s_memrealtime s[70:71]"); E("s_waitcnt lgkmcnt(0)")
        E(f"s_sub_u32 s70, s70, s{80+2*(o['diag'] if o['diag'] < 10 else 0)}"); E("s_cmp_lt_u32 s70, s75"); E(f"s_cbranch_scc1 {P}DIAG")
    if stamps:
        E("s_mov_b64 exec, -1")
        g.L(f"{P}STAMP")
        E("s_waitcnt vmcnt(0)")
        stamp(6)
        E("s_mul_i32 s70, s2, 112"); E("s_add_u32 s70, s70, 0x8000000")
        E("s_cmp_eq_u32 s69, 0"); E("s_cselect_b32 s71, 56, 0"); E("s_add_u32 s70, s70, s71")
        E("v_mov_b32 v1, s70")
        E("s_waitcnt lgkmcnt(0)")
        if o.get('clk'):
            E("s_cmp_lg_u32 s69, 0"); E(f"s_cbranch_scc1 {P}NOCLK")
            for k in (2, 3, 1):
                E(f"s_sub_u32 s{80+2*k}, s{80+2*k}, s82"); E(f"s_add_u32 s{80+2*k}, s{80+2*k}, s80"); E(f"s_addc_u32 s{81+2*k}, s81, 0")
            g.L(f"{P}NOCLK")
        E("s_mov_b64 exec, 1")
        for k in range(7):
            E(f"v_mov_b32 v2, s{80+2*k}"); E(f"v_mov_b32 v3, s{81+2*k}")
            E(f"global_store_dwordx2 v1, v[2:3], s[22:23] offset:{8*k}"); E("s_nop 1")
    g.L(f"{P}END")
    E("s_endpgm")
    return "\n".join(x for x in g.l if x is not None) + "\n" + kd(name, vgpr=256)

def official(opts=None, path='standalone__deep_cross_pnn__recsys.s', stamps=False):
    asm = HDR + f"; @launch grid=(256,1,1) block=(512,1,1) lds={LDS}\n" + '.amdgcn_target "amdgcn-amd-amdhsa--gfx950"\n' + gen(NAME, stamps, opts)
    open(path, 'w').write(asm)

def bench(base, variants):
    hdr = []; ks = []
    for nm, op in variants:
        hdr.append(f"; @launch kernel={nm} grid=(256,1,1) block=(512,1,1) lds={LDS}")
        ks.append(gen(nm, True, op))
    asm = "\n".join(hdr) + '\n.amdgcn_target "amdgcn-amd-amdhsa--gfx950"\n' + "\n".join(ks)
    build(asm, base, variants[0][0])
```

```python
import gen6, gen5, sys
N = dict(psch='F', lb=22)
gen6.bench('g6', [("g6a_kernel", dict(N, npre=0, pst=2)), ("g6b_kernel", dict(N, npre=4, ppst=2, nin=10, tfirst=12)), ("g6c_kernel", dict(N, npre=0, ppst=2, nin=10, tfirst=12)), ("g6d_kernel", dict(N, npre=4, ppst=1, nin=10, tfirst=14))])
```

```python
import sys, os
sys.path.insert(0, 'bench')
from asmlib import kd, build
import tailtag
NAME = "standalone__deep_cross_pnn__recsys_kernel"
HDR = open('standalone__deep_cross_pnn__recsys.s.ref').read().split('; Override')[0]

def AP(s): return s*16384
BS0 = 65536
IDXA = AP(3)
IDXP = BS0 + 2*16384
WRAW = BS0 + 3*16384
RED = BS0 + 4*16384
WP = WRAW + 20480
WP6 = WP + 22*1024
LDSEND = WP6 + 6*256
LDS = 163840
assert LDSEND <= LDS
FLOFF = 8 << 20
WSREC = 16 << 20
SPIN = 200000

class G:
    def __init__(s): s.l = []; s.q = []; s.vq = []; s.vdone = 0; s.n = 0
    def E(s, x):
        s.l.append("    " + x)
        s.n += (int(x.split()[1]) + 1) if x.startswith("s_nop") else 1
    def L(s, x): s.l.append(x + ":")
    def ds(s, x, tag=None): s.E(x); s.q.append(tag)
    def wait_ds(s, tag=None):
        if tag is None:
            n = 0
            if not s.q: return
        else:
            c = [i for i, t in enumerate(s.q) if t == tag]
            if not c: return
            n = len(s.q) - 1 - max(c)
        s.E(f"s_waitcnt lgkmcnt({min(n,15)})")
        n = min(n, 15)
        s.q = s.q[len(s.q)-n:] if n else []
    def vm(s, x, tag=None): s.E(x); s.vq.append(tag)
    def wait_vm(s, tags):
        c = [i for i, t in enumerate(s.vq) if t in tags]
        if not c or max(c) < s.vdone: return
        n = len(s.vq) - 1 - max(c)
        assert n <= 63
        s.E(f"s_waitcnt vmcnt({n})"); s.vdone = max(c) + 1
    def since(s, mark, need):
        d = s.n - mark
        if d < need: s.E(f"s_nop {need - d - 1}")
    def srd(s, d, p, n):
        s.E(f"s_mov_b32 s{d}, s{p}"); s.E(f"s_mov_b32 s{d+1}, s{p+1}"); s.E(f"s_mov_b32 s{d+2}, {n}"); s.E(f"s_mov_b32 s{d+3}, 0x20000")

PSCH = {
    'A': lambda js, b: -1 if b < 2 or b == 6 else [6, 8, 10, 12][js] if b == 2 else [14, 16, 18, 20][js] if b == 3 else 22 if b == 4 else 23,
    'B': lambda js, b: -1 if b < 1 or b == 6 else 4*b - 2 + js,
    'C': lambda js, b: -1 if b < 2 or b == 6 else 22 if b < 4 else 23,
    'D': lambda js, b: -1 if b < 3 or b == 6 else [12, 14, 16, 18][js] if b == 3 else 22 if b == 4 else 23,
    'F': lambda js, b: -1 if b < 3 or b == 6 else 19 + b,
    'G': lambda js, b: -1 if b < 4 or b == 6 else 18 + b,
    'H': lambda js, b: -1 if b < 3 or b == 6 else 22 if b == 3 else 23 if js < 2 + 2*(b-4) and b == 4 or (b == 4) else 23,
    'E': lambda js, b: -1 if b < 2 or b == 6 else [4, 6, 8, 10][js] if b == 2 else [12, 13, 14, 15][js] if b == 3 else [16, 17, 18, 19][js] if b == 4 else 22,
}

def gen(name=NAME, stamps=False, opts=None):
    o = dict(prioL=0, prioC=2, lead=4, dord=1, nopnn=0, nocr=0, nocm=0, notr=0, chk=22, rot=1, rsel=0, sh=1, lfl=' sc1', pfl=' sc1',
             ns=4, cpf=1, nin=0, psch='A', tlag=3, t0=2, npre=99, ppst=3, lb=23)
    if opts: o.update(opts)
    NS = o['ns']; PD = NS - 1
    g = G(); E = g.E
    P = "L" + name.replace("_kernel", "")[-10:] + "_"
    role = dict(L=True)
    def stamp(k):
        if 'diag' in o:
            if o['diag'] >= 20:
                if k == 0 or not role['L']: E(f"s_memrealtime s[{80+2*k}:{81+2*k}]")
                return
            if o['diag'] >= 10:
                if k == 0: E("s_memrealtime s[80:81]")
                elif k in (1, 2, 3, 5) and not role['L']: E(f"s_memtime s[{80+2*k}:{81+2*k}]")
                return
            if k == o['diag'] and (k == 0 or not role['L']): E(f"s_memrealtime s[{80+2*k}:{81+2*k}]")
            return
        if stamps and o.get('clk') and role['L'] and k in (1, 2, 3): E(f"s_memtime s[{80+2*k}:{81+2*k}]")
        elif stamps: E(f"s_memrealtime s[{80+2*k}:{81+2*k}]")
    g.l.append(f".text\n.globl {name}\n.p2align 8\n.type {name},@function\n{name}:")
    stamp(0)
    E("s_cmp_ge_u32 s2, 256"); E(f"s_cbranch_scc1 {P}END")
    E("s_load_dwordx16 s[4:19], s[0:1], 0"); E("s_load_dwordx4 s[20:23], s[0:1], 64")
    E("v_lshrrev_b32 v1, 6, v0")
    E("s_and_b32 s64, s2, 7"); E("s_lshl_b32 s64, s64, 2")
    E("v_readfirstlane_b32 s69, v1")
    E("s_lshr_b32 s70, s2, 6"); E("s_add_u32 s64, s64, s70")
    E("s_lshr_b32 s67, s2, 3"); E("s_and_b32 s67, s67, 7")
    E("s_and_b32 s65, s67, 3"); E("s_lshr_b32 s66, s67, 2")
    E("s_lshl_b32 s68, s64, 7")
    RB = o['rot']
    def cls(t):
        if t == 0 or not RB: return '0'
        if t == 1: return 'A'
        if t == 24: return 'D'
        return 'B' if t & 1 else 'C'
    def fo(t): return 24 if t == 0 else t - 1
    E("v_and_b32 v250, 63, v0")
    E("s_cmp_ge_u32 s69, 4"); E(f"s_cbranch_scc1 {P}CSTART")
    B1R, W2R = 224, 232
    def load_b1w2(tmp):
        g.srd(48, 12, 512); g.srd(52, 14, 512)
        E(f"v_lshrrev_b32 v{tmp}, 4, v250"); E(f"v_lshlrev_b32 v{tmp}, 3, v{tmp}")
        E("s_lshl_b32 s71, s72, 7")
        for j in range(4): E(f"buffer_load_dwordx2 v[{B1R+2*j}:{B1R+2*j+1}], v{tmp}, s[48:51], s71 offen offset:{32*j}")
        for j in range(4): E(f"buffer_load_dwordx2 v[{W2R+2*j}:{W2R+2*j+1}], v{tmp}, s[52:55], s71 offen offset:{32*j}")
    D = 192; WREG = 208; SUM = 216; T = 220; F6 = 228; VB0, VB1, WA, WA6 = 236, 237, 238, 239
    def F(js, b, h=0): return ((js*6 + b)*2 + h)*4 if b < 6 else F6 + h*4
    FR = [(js, b) for b in (6, 0, 1, 2, 3, 4, 5) for js in (range(4) if b < 6 else (0,))]
    ps = PSCH[o['psch']]
    PS = {x: ps(*x) for x in FR}
    R8, P8, TA, TB, TC, VIX, L16 = range(T, T+7)
    host = [x for x in FR if PS[x] < 0][-3:]
    hreg = [F(*x) + k for x in host for k in range(2, 8)]
    VCA0, VCA1, VPC, VI0, VIa, VId, VIP0, VIP3, VIP6 = hreg[:9]
    VIB = hreg[9:13]; VIC = hreg[13:17]
    if RB: dem = [(0, 1), (2,)] + [(t, t+2) for t in (3, 4, 7, 8, 11, 12, 15, 16, 19, 20)] + [(23, 24)]
    else: dem = [(0, 1), (2,)] + [(t, t+1) for t in range(3, 25, 2)]
    dem = [(max(d) - PD, d, j) for d in dem for j in range(4)]
    slots = [(PS[x], F(*x) + k) for x in FR if x not in host for k in (2, 4, 6)]
    slots += [(99, r) for r in range(240, 256, 2) if not (o.get('trace') and r in (250, 254))]
    slots += [(o.get('tfirst', 0) - 1 if o['nin'] else 99, r) for r in range(D, D+24, 2)]
    dem.sort(key=lambda x: -x[0]); slots.sort(key=lambda x: -x[0])
    AO = {}; aoreads = []
    for (dth, d, j), (ex, r) in zip(dem, slots):
        assert ex >= max(dth, -1), (dth, d, ex)
        for k, t in enumerate(d): AO[(t, j)] = r + k
        aoreads.append((d, j, r))
    aoreads.sort(key=lambda x: (x[0], x[1]))
    if o['prioL']: E(f"s_setprio {o['prioL']}")
    if RB:
        E(f"s_lshr_b32 s94, s2, {6 + o['rsel']}"); E("s_xor_b32 s94, s94, s66"); E("s_and_b32 s94, s94, 1")
        if o['sh'] == 0: E("s_mov_b32 s99, s94")
        else:
            if o['sh'] == 1: E("s_and_b32 s70, s65, 1")
            elif o['sh'] == 2: E("s_lshr_b32 s70, s65, 1")
            else: E("s_lshr_b32 s70, s2, 7")
            E("s_and_b32 s70, s70, s94")
            E("s_sub_u32 s94, s94, s70"); E("s_sub_u32 s99, s94, s70")
    E(f"v_lshrrev_b32 v{R8}, 3, v250")
    E(f"v_and_b32 v{P8}, 7, v250")
    E(f"v_mul_u32_u24 v{TA}, 37, v250"); E(f"v_lshrrev_b32 v{TA}, 8, v{TA}")
    E(f"v_mul_u32_u24 v{VIX}, 288, v{TA}")
    E(f"v_lshl_add_u32 v{VIX}, v250, 4, v{VIX}")
    E(f"v_lshlrev_b32 v{L16}, 4, v250")
    E(f"v_lshrrev_b32 v{TA}, 4, v250")
    E(f"v_lshlrev_b32 v{TB}, 2, v{TA}")
    E(f"v_and_b32 v{TC}, 15, v250")
    E(f"v_xor_b32 v{TC}, v{TC}, v{TB}")
    E(f"v_lshlrev_b32 v{TC}, 4, v{TC}")
    E(f"v_lshl_add_u32 v{VB0}, v{TA}, 9, v{TC}")
    E(f"v_xor_b32 v{VB1}, 32, v{VB0}")
    E("s_lshl_b32 s73, s69, 12")
    E(f"s_add_u32 s75, s73, {BS0}")
    E("s_mul_i32 s72, s65, 819200"); E("s_lshl_b32 s70, s66, 8"); E("s_add_u32 s72, s72, s70")
    E("s_lshl_b32 s70, s69, 13"); E("s_add_u32 s72, s72, s70")
    if RB:
        E(f"s_lshl_b32 s70, s94, 15"); E("s_add_u32 s95, s72, s70"); E("s_sub_u32 s96, s72, s70")
        E(f"s_lshl_b32 s70, s99, 15"); E("s_add_u32 s100, s72, s70"); E("s_sub_u32 s101, s72, s70")
        E(f"s_lshl_b32 s97, s94, 2"); E(f"s_lshl_b32 s98, s99, 2")
    def SB(t): return {'0': 72, 'A': 95, 'D': 96, 'B': 100, 'C': 101}[cls(t)]
    E("s_lshl_b32 s70, s69, 5"); E("s_add_u32 s70, s70, s68"); E("s_mul_i32 s70, s70, 400")
    E("s_mul_i32 s71, s65, 100"); E("s_add_u32 s70, s70, s71")
    E("s_lshl_b32 s77, s67, 4"); E("s_lshl_b32 s78, s69, 2"); E("s_add_u32 s77, s77, s78")
    E("s_add_u32 s78, s77, s68"); E("s_mul_i32 s78, s78, 400")
    E(f"s_add_u32 s79, s73, {IDXP}")
    E("s_waitcnt lgkmcnt(0)")
    if o.get('pst') == 1: stamp(1)
    g.srd(24, 4, 1638400)
    for j in range(4):
        E(f"s_add_u32 m0, s73, {IDXA + j*1024}")
        if j: E(f"s_add_u32 s70, s70, 3200")
        else: E("s_nop 0")
        g.vm(f"buffer_load_dwordx4 v{VIX}, s[24:27], s70 offen lds", 'ia')
    E("s_mov_b32 m0, s79"); E("s_nop 0")
    g.vm(f"buffer_load_dwordx4 v{L16}, s[24:27], s78 offen lds", 'ip')
    E("s_mov_b32 exec_hi, 15")
    g.vm(f"buffer_load_dwordx4 v{L16}, s[24:27], s78 offen offset:1024 lds", 'ip')
    E("s_mov_b32 exec_hi, -1")
    g.srd(32, 10, 3276800)
    def mkB(t, ii):
        def f():
            E(f"s_add_u32 m0, s75, {(t % NS)*16384 + ii*1024}")
            E(f"s_add_u32 s70, s{SB(t)}, {fo(t)*32768 + ii*2048}")
            g.vm(f"buffer_load_dwordx4 v{VB0 if ii < 2 else VB1}, s[32:35], s70 offen{o.get('bfl','')} lds", ('d', t))
        return f
    def mkA(t, j):
        def f():
            E(f"s_add_u32 m0, s73, {AP(t % NS) + j*1024}"); E("s_nop 0")
            g.vm(f"buffer_load_dwordx4 v{AO[(t, j)]}, s[28:31], 0 offen{o.get('afl','')} lds", ('d', t))
        return f
    def mkP(x):
        def f():
            r = F(*x)
            if o.get('nolate') and PS[x] >= 20: return
            g.vm(f"buffer_load_dwordx4 v[{r+4}:{r+7}], v{r+1}, s[28:31], 0 offen{o.get('pfl2','')}", ('p', x))
            g.vm(f"buffer_load_dwordx4 v[{r}:{r+3}], v{r}, s[28:31], 0 offen{o.get('pfl2','')}", ('p', x))
        return f
    for t in (0, 1):
        for ii in range(4): mkB(t, ii)()
    g.srd(28, 6, 12800000)
    E(f"v_lshrrev_b32 v{TA}, 1, v{R8}"); E(f"v_xor_b32 v{TA}, v{TA}, v{P8}")
    E(f"v_lshlrev_b32 v{VCA0}, 4, v{TA}"); E(f"v_xor_b32 v{VCA1}, 64, v{VCA0}")
    E(f"v_mul_u32_u24 v{VI0}, 112, v{R8}"); E(f"s_add_u32 s70, s73, {IDXA}"); E(f"v_add_u32 v{VI0}, s70, v{VI0}")
    if RB:
        E(f"v_add_u32 v{VIa}, s97, v{VI0}"); E(f"v_subrev_u32 v{VId}, s97, v{VI0}")
        E(f"v_add_u32 v{VIB[0]}, s98, v{VI0}"); E(f"v_subrev_u32 v{VIC[0]}, s98, v{VI0}")
        for j in range(1, 4): E(f"v_add_u32 v{VIB[j]}, {1024*j}, v{VIB[0]}"); E(f"v_add_u32 v{VIC[j]}, {1024*j}, v{VIC[0]}")
    else:
        for j in range(4): E(f"v_add_u32 v{VIB[j]}, {1024*j}, v{VI0}")
    def vbase(t, j): return {'0': VI0, 'A': VIa, 'D': VId, 'B': VIB[j], 'C': VIC[j]}[cls(t)] if RB or j == 0 else VIB[j]
    E(f"v_bfe_u32 v{TA}, v250, 4, 1"); E(f"v_and_b32 v{TB}, 3, v250"); E(f"v_lshl_add_u32 v{TA}, v{TA}, 2, v{TB}"); E(f"v_lshlrev_b32 v{VPC}, 4, v{TA}")
    E(f"v_bfe_u32 v{TC}, v250, 2, 2"); E(f"v_mul_u32_u24 v{TA}, 96, v{TC}"); E(f"v_add_u32 v{TA}, s79, v{TA}")
    E(f"v_lshrrev_b32 v{TB}, 5, v250")
    E(f"v_lshl_add_u32 v{VIP0}, v{TB}, 3, v{TA}"); E(f"v_add_u32 v{VIP3}, 1200, v{VIP0}")
    E(f"v_mul_u32_u24 v{TB}, 800, v{TB}"); E(f"v_lshl_add_u32 v{TB}, v{TC}, 2, v{TB}"); E(f"v_add_u32 v{VIP6}, s79, v{TB}")
    for js in range(4): E(f"v_mov_b32 v{SUM+js}, 0")
    E(f"v_add_u32 v{WA}, {WP}, v{L16}")
    E(f"v_lshlrev_b32 v{WA6}, 2, v250"); E(f"v_add_u32 v{WA6}, {WP6}, v{WA6}")
    for k, m in enumerate((0x55555555, 0xaaaaaaaa, 0x33333333, 0xcccccccc)): E(f"s_mov_b32 s{48+2*k}, {m:#x}"); E(f"s_mov_b32 s{49+2*k}, {m:#x}")
    def rd_ao(d, j, r):
        if len(d) == 2 and cls(d[0]) == cls(d[1]): g.ds(f"ds_read2_b32 v[{r}:{r+1}], v{vbase(d[0], j)} offset0:{fo(d[0])} offset1:{fo(d[1])}", ('a', d, j))
        else:
            for k, t in enumerate(d): g.ds(f"ds_read_b32 v{r+k}, v{vbase(t, 0)} offset:{j*1024 + 4*fo(t)}", ('a', d, j))
    def cv_ao(d, j, r):
        g.wait_ds(('a', d, j))
        for k in range(len(d)): E(f"v_lshl_add_u32 v{r+k}, v{r+k}, 7, v{VCA0 + (j&1)}")
    def rd_p(x):
        js, b = x
        if b == 6: g.ds(f"ds_read2_b32 v[{F6}:{F6+1}], v{VIP6} offset0:96 offset1:196", ('pi', x))
        else:
            k = (js % 3)*100 + 4*b
            g.ds(f"ds_read2_b32 v[{F(*x)}:{F(*x)+1}], v{VIP3 if js == 3 else VIP0} offset0:{k} offset1:{k+1}", ('pi', x))
    def cv_p(x):
        g.wait_ds(('pi', x))
        for k in range(2): E(f"v_lshl_add_u32 v{F(*x)+k}, v{F(*x)+k}, 7, v{VPC}")
    g.wait_vm(['ia'])
    if o.get('pst') == 1: stamp(2)
    first = [a for a in aoreads if min(a[0]) < 3]; later = [a for a in aoreads if min(a[0]) >= 3]
    for a in first: rd_ao(*a)
    FRs = sorted(FR, key=lambda x: PS[x])
    pro = [x for x in FRs if PS[x] < 0]
    for j in range(4):
        cv_ao(*first[j]); mkA(0, j)()
    for j in range(4): mkA(1, j)()
    E("s_barrier")
    if o.get('pst'): stamp(3 if o['pst'] == 1 else 1)
    g.wait_vm(['ip'])
    for a in first[4:]: cv_ao(*a)
    if PD >= 3:
        for j in range(4): mkA(2, j)()
    if o.get('pst') == 2: stamp(2)
    for i, x in enumerate(FRs):
        rd_p(x)
        if i >= 8: cv_p(FRs[i-8])
    k = 0; pre = pro[:o['npre']]
    for i, a in enumerate(later):
        rd_ao(*a)
        if i < 8: cv_p(FRs[len(FRs)-8+i])
        if i >= 8: cv_ao(*later[i-8])
        if i == 8 and PD >= 3:
            for ii in range(4): mkB(2, ii)()
            if o.get('pst') == 2: stamp(3)
        if i > 8 and i % o.get('pint', 3) == 0 and k < len(pre) and pre[k] not in host: mkP(pre[k])(); k += 1
    for a in later[-8:]: cv_ao(*a)
    for x in pre[k:]: mkP(x)()
    pend0 = pro[o['npre']:]
    if o.get('pst') == 2: stamp(4)
    g.wait_vm([('d', 0)])
    if o.get('pst') == 2: stamp(5)
    E("s_barrier")
    if o.get('pst') != 2: stamp(4 if o.get('pst') else 1)
    TR0, TR1 = 254, 250
    if o.get('trace'): E("s_memtime s[38:39]"); E("s_memrealtime s[40:41]")
    def tr_items(x):
        r = F(*x)
        def a():
            g.wait_vm([('p', x)])
            E("s_mov_b64 vcc, s[48:49]")
            for w in range(4): E(f"v_cndmask_b32_dpp v{T+w}, v{r+4+w}, v{r+w}, vcc quad_perm:[1,0,3,2] row_mask:0xf bank_mask:0xf")
            E("s_mov_b64 vcc, s[50:51]")
            for w in range(4): E(f"v_cndmask_b32_dpp v{T+4+w}, v{r+w}, v{r+4+w}, vcc quad_perm:[1,0,3,2] row_mask:0xf bank_mask:0xf")
        def b():
            for c0 in range(2):
                for w in range(2): E(f"v_permlane32_swap_b32 v{T+4*c0+w}, v{T+4*c0+w+2}")
            E("s_mov_b64 vcc, s[52:53]")
            for c0 in range(2):
                for w in range(2): E(f"v_cndmask_b32_dpp v{r+4*c0+w}, v{T+4*c0+2+w}, v{T+4*c0+w}, vcc quad_perm:[2,3,0,1] row_mask:0xf bank_mask:0xf")
        def c():
            E("s_mov_b64 vcc, s[54:55]")
            for c0 in range(2):
                for w in range(2): E(f"v_cndmask_b32_dpp v{r+4*c0+2+w}, v{T+4*c0+w}, v{T+4*c0+2+w}, vcc quad_perm:[2,3,0,1] row_mask:0xf bank_mask:0xf")
            st['trm'] = g.n
        return [a, b, c]
    for i, x in enumerate(pend0): PS[x] = i // o['ppst']
    FRs = sorted(FR, key=lambda x: PS[x])
    TS = {}; cnt = {t: 0 for t in range(26)}
    for x in FRs:
        t = max(o['t0'], PS[x] + o['tlag'])
        while t < 25 and cnt[t] >= o.get('trps', 1 if t < 22 else 4): t += 1
        t = min(t, 25); TS[x] = t; cnt[t] += 1
    rdy = {b: max(TS[x] for x in FR if x[1] == b) + 1 for b in range(7)}
    allt = [(6, 6)] + [x for b in range(6) for x in [(6, b)] + [(I, b) for I in range(b+1)]]
    sched = {t: [] for t in range(26)}
    tprev = o.get('tfirst', 0); last = o.get('last', 24)
    for n, (I, J) in enumerate(allt):
        if n < o['nin']:
            t = max(rdy[I], rdy[J], tprev)
            while t < 25 and len(sched[t]) >= o.get('tps', 1): t += 1
            if t > last: t = 25
            tprev = t + o.get('tgap', 0)
        else: t = 25
        sched[min(t, 25)].append((I, J))
    st = dict(wsel=0, trm=-99, pend={}, mark={})
    def wread(I, J):
        w = WREG + 4*st['wsel']; st['wsel'] ^= 1
        if I < 6: g.ds(f"ds_read_b128 v[{w}:{w+3}], v{WA} offset:{(J*(J+1)//2 + I)*1024}", ('w', I, J))
        elif J == 6: g.ds(f"ds_read_b128 v[{w}:{w+3}], v{WA} offset:{21*1024}", ('w', I, J))
        else: g.ds(f"ds_read_b32 v{w}, v{WA6} offset:{J*256}", ('w', I, J))
        return w
    def fmops(js):
        p = st['pend'].pop(js, None)
        if p is None: return []
        I, J, w = p
        g.wait_ds(('w', I, J)); g.since(st['mark'][js], 8)
        if I < 6: return [f"v_fmac_f32 v{SUM+js}, v{D+4*js+r}, v{w+r}" for r in range(4)]
        if J == 6: return [f"v_fmac_f32 v{SUM+k}, v{D+k}, v{w+k}" for k in range(4)]
        return [f"v_fmac_f32 v{SUM+js}, v{D+4*js+js}, v{w}"]
    def tile_items(tl):
        it = []
        for (I, J) in tl:
            loc = {}
            def part(js, I=I, J=J, loc=loc):
                if js == 0: loc['w'] = wread(I, J)
                for x in fmops(js): E(x)
                nx = fmops((js+1) & 3) if (js < 3 or (I, J) != (6, 6)) else []
                if (I, J) == (6, 6) and js > 0:
                    for x in nx: E(x)
                    return
                g.since(st['trm'], 2)
                d = D + 4*js
                E(f"v_mfma_f32_16x16x32_bf16 v[{d}:{d+3}], v[{F(js,I,0)}:{F(js,I,0)+3}], v[{F(js,J,0)}:{F(js,J,0)+3}], 0")
                for x in nx[:2]: E(x)
                E(f"v_mfma_f32_16x16x32_bf16 v[{d}:{d+3}], v[{F(js,I,1)}:{F(js,I,1)+3}], v[{F(js,J,1)}:{F(js,J,1)+3}], v[{d}:{d+3}]")
                st['mark'][js] = g.n; st['pend'][js] = (I, J, loc['w'])
                for x in nx[2:]: E(x)
            for js in range(4): it.append(lambda js=js, part=part: part(js))
        return it
    def flush():
        for js in range(4):
            for x in fmops(js): E(x)
    for t in range(25):
        dm = []
        if t + PD <= 24:
            As = [mkA(t+PD, j) for j in range(4)]; Bs = [mkB(t+PD, i) for i in range(4)]
            dm = As + Bs if o['dord'] == 1 else Bs + As if o['dord'] == 0 else [x for p in zip(As, Bs) for x in p]
        dm += [mkP(x) for x in FRs if PS[x] == t]
        wk = []
        if not o['notr']:
            for x in FRs:
                if TS[x] == t: wk += tr_items(x)
        if not o['nopnn']: wk += tile_items(sched[t])
        lead = o['lead']; nw = len(wk)
        seq = dm[:lead]; rest = dm[lead:]
        k = 0
        for i, w in enumerate(wk):
            seq.append(w)
            tgt = ((i+1) * len(rest)) // nw
            while k < tgt: seq.append(rest[k]); k += 1
        seq += rest[k:]
        for f in seq: f()
        if o.get('trace'):
            E("s_waitcnt lgkmcnt(0)"); g.q = []
            E(f"v_writelane_b32 v{TR0}, s38, {t}"); E(f"v_writelane_b32 v{TR1}, s40, {t}")
            if t: E(f"v_writelane_b32 v{TR0}, s42, {31+t}"); E(f"v_writelane_b32 v{TR1}, s46, {31+t}")
            E("s_memtime s[42:43]")
        if t <= o['lb']:
            g.wait_vm([('d', t+1)] if t < o['lb'] else [('d', x) for x in range(t+1, 25)])
            if o.get('trace'): E("s_memtime s[46:47]")
            E("s_barrier")
            if t == 11 and not o.get('pst'): stamp(2)
            if o.get('trace'): E("s_memtime s[38:39]"); E("s_memrealtime s[40:41]")
    if o.get('pst') != 2: stamp(5 if o.get('pst') else 3)
    if o.get('trace'):
        E("s_memtime s[38:39]"); E("s_memrealtime s[40:41]"); E("s_waitcnt lgkmcnt(0)"); g.q = []
        E(f"v_writelane_b32 v{TR0}, s38, 25"); E(f"v_writelane_b32 v{TR1}, s40, 25")
        E("v_mbcnt_lo_u32_b32 v240, -1, 0"); E("v_mbcnt_hi_u32_b32 v240, -1, v240")
        E("s_lshl_b32 s70, s2, 9"); E("s_add_u32 s70, s70, 0x8010000"); E("v_lshlrev_b32 v241, 2, v240"); E("v_add_u32 v241, s70, v241")
        E("s_cmp_lg_u32 s69, 0"); E(f"s_cbranch_scc1 {P}NOTR")
        E(f"global_store_dword v241, v{TR0}, s[22:23]"); E(f"global_store_dword v241, v{TR1}, s[22:23] offset:256")
        g.L(f"{P}NOTR")
        E("s_waitcnt vmcnt(0)"); g.vdone = len(g.vq)
    done = {x for x in FR if TS[x] < 25}
    for (I, J) in sched[25]:
        for b in (I, J):
            for x in FRs:
                if x[1] == b and x not in done and not o['notr']:
                    for f in tr_items(x): f()
                    done.add(x)
        if not o['nopnn']:
            for f in tile_items([(I, J)]): f()
    flush()
    E("v_mbcnt_lo_u32_b32 v240, -1, 0"); E("v_mbcnt_hi_u32_b32 v240, -1, v240")
    for sh in (1, 2, 4, 8):
        for js in range(4): E(f"v_add_f32_dpp v{SUM+js}, v{SUM+js}, v{SUM+js} row_shr:{sh} row_mask:0xf bank_mask:0xf bound_ctrl:1")
    E("v_lshrrev_b32 v248, 4, v240"); E("v_lshlrev_b32 v248, 6, v248")
    E("s_lshl_b32 s70, s69, 4"); E(f"s_add_u32 s70, s70, {RED + 2048}")
    E("v_add_u32 v248, s70, v248")
    E("s_mov_b32 exec_lo, 0x80008000"); E("s_mov_b32 exec_hi, 0x80008000")
    E(f"ds_write_b128 v248, v[{SUM}:{SUM+3}]")
    E("s_mov_b64 exec, -1")
    E("s_waitcnt lgkmcnt(0)")
    if not o.get('pst'): stamp(4)
    E("s_barrier")
    if stamps:
        if not o.get('pst'): stamp(5)
        g.srd(44, 20, 256)
        E("s_cmp_eq_u32 s69, 0"); E(f"s_cbranch_scc1 {P}STAMP")
    E("s_endpgm")
    def nonce_wait(lbl, vr):
        E(f"v_readfirstlane_b32 s78, v{vr}")
        E("s_cmp_lg_u32 s78, 0"); E(f"s_cbranch_scc1 {lbl}_x")
        E(f"s_mov_b32 s71, {SPIN}"); E("s_lshl_b32 s79, s64, 2")
        g.L(lbl)
        E(f"buffer_load_dword v{vr}, off, s[44:47], s79 offset:128 sc0 sc1")
        E("s_waitcnt vmcnt(0)")
        E(f"v_readfirstlane_b32 s78, v{vr}")
        E("s_sub_u32 s71, s71, 1"); E("s_cmp_eq_u32 s71, 0"); E(f"s_cbranch_scc1 {lbl}_x")
        E("s_cmp_eq_u32 s78, 0"); E(f"s_cbranch_scc1 {lbl}")
        g.L(lbl + "_x")
    g.q = []; role['L'] = False
    g.L(f"{P}CSTART")
    if o['prioC']: E(f"s_setprio {o['prioC']}")
    VA = 128; VBR = 130; VX = 134; RDY = 150
    def FA(ks, st): return 64 + ks*32 + st*4
    def FB(ks, nt): return 64 + ks*32 + 16 + nt*4
    def ACC(nt, st): return (st*4 + nt)*4
    E("s_sub_u32 s72, s69, 4")
    if o.get('cpf'):
        E("s_getpc_b64 s[76:77]"); g.L(f"{P}PC")
        E(f"s_sub_u32 s76, s76, {P}PC-{name}"); E("s_subb_u32 s77, s77, 0")
        E("s_lshr_b32 s70, s2, 3"); E("s_lshl_b32 s70, s70, 2"); E("s_add_u32 s70, s70, s72"); E("s_lshl_b32 s70, s70, 9")
        E("v_lshlrev_b32 v240, 6, v250"); E("v_add_u32 v240, s70, v240")
        E(f"v_min_u32 v240, {P}END-{name}, v240")
        E("v_mov_b32 v241, s77"); E("v_add_co_u32 v240, vcc, s76, v240"); E("s_nop 1"); E("v_addc_co_u32 v241, vcc, 0, v241, vcc")
        E("s_mov_b64 exec, 0xff")
        E("global_load_dword v242, v[240:241], off")
        E("s_mov_b64 exec, -1")
    E("s_and_b32 s73, s72, 1"); E("s_lshr_b32 s74, s72, 1")
    E("v_lshlrev_b32 v254, 4, v250")
    E("s_mul_i32 s70, s72, 5120")
    E("s_memrealtime s[96:97]")
    E("s_waitcnt lgkmcnt(0)")
    g.srd(36, 8, 20000)
    for i in range(5):
        E(f"s_add_u32 m0, s70, {WRAW + i*1024}"); E(f"s_add_u32 s71, s70, {i*1024}")
        E("buffer_load_dwordx4 v254, s[36:39], s71 offen lds")
    g.srd(40, 22, WSREC); g.srd(44, 20, 256)
    if o.get('wso'): E(f"s_add_u32 s40, s40, {o['wso'] << 20}"); E("s_addc_u32 s41, s41, 0")
    load_b1w2(248)
    E("v_and_b32 v140, 15, v250"); E("v_lshrrev_b32 v141, 4, v250"); E("v_bfe_u32 v142, v250, 1, 3")
    E("v_xor_b32 v142, v141, v142"); E("v_lshlrev_b32 v142, 4, v142"); E("v_lshl_add_u32 v142, v140, 7, v142")
    E("s_lshl_b32 s70, s73, 13"); E(f"v_add_u32 v{VA}, s70, v142"); E(f"v_xor_b32 v{VA+1}, 64, v{VA}")
    E("v_bfe_u32 v142, v250, 2, 2")
    E("v_lshl_add_u32 v143, v141, 3, v142"); E("v_lshlrev_b32 v143, 8, v143")
    E("v_bfe_u32 v144, v250, 1, 1"); E("s_lshl_b32 s70, s74, 3"); E("v_or_b32 v144, s70, v144")
    E("v_lshlrev_b32 v142, 2, v142"); E("v_xor_b32 v144, v144, v142")
    E("v_and_b32 v142, 1, v141"); E("v_lshlrev_b32 v142, 1, v142"); E("v_xor_b32 v144, v144, v142")
    E("v_lshl_add_u32 v143, v144, 4, v143")
    E("v_and_b32 v144, 1, v250"); E("v_lshl_add_u32 v143, v144, 3, v143")
    for nt in range(4):
        E(f"v_xor_b32 v142, {nt*32}, v143"); E(f"v_add_u32 v{VBR+nt}, {BS0}, v142")
    E(f"v_lshlrev_b32 v{VX}, 4, v250")
    E(f"s_mov_b32 s76, {WRAW}")
    E("v_lshrrev_b32 v140, 4, v250")
    E("v_bfe_u32 v141, v250, 2, 2")
    E("v_and_b32 v142, 3, v250")
    E("v_mul_u32_u24 v143, 24, v140"); E("v_add_u32 v143, v143, v141"); E("v_mul_u32_u24 v143, 200, v143")
    E("v_mul_u32_u24 v144, 48, v142"); E(f"v_add3_u32 v145, v143, v144, s75".replace("s75", "s76"))
    E("v_mul_u32_u24 v143, 24, v141"); E("v_add_u32 v143, v143, v142")
    E("v_mul_u32_u24 v144, 200, v143"); E("v_add_u32 v144, s76, v144")
    E("v_lshl_add_u32 v151, v140, 1, v144")
    E("v_mul_u32_u24 v146, 48, v140"); E("v_add_u32 v146, v146, v144")
    E("v_mul_u32_u24 v144, 200, v140"); E("v_add_u32 v144, s76, v144")
    E("v_lshl_add_u32 v147, v143, 1, v144")
    E("v_lshl_add_u32 v153, v141, 1, v144")
    E(f"v_add_u32 v148, {WP}, v254")
    E(f"v_lshlrev_b32 v149, 2, v250"); E(f"v_add_u32 v149, {WP6}, v149")
    for r in range(48, 56): E(f"v_mov_b32 v{r}, 0")
    E("s_mov_b32 s75, 0xffff0000")
    E(f"s_waitcnt vmcnt(8)")
    E("s_barrier")
    big = [(I, J) for J in range(6) for I in range(J+1)] + [(6, 6)]
    own = {0: [0, 1, 3, 4, 6, 7], 1: [2, 8, 10, 11, 12, 21], 2: [5, 9, 13, 15, 16], 3: [14, 17, 18, 19, 20]}
    assert sorted(sum(own.values(), [])) == list(range(22))
    for cw in range(4):
        if cw < 3: E(f"s_cmp_lg_u32 s72, {cw}"); E(f"s_cbranch_scc1 {P}WB{cw+1}")
        mine = [(n, big[n]) for n in own[cw]]
        small = [J for J in range(6) if cw >= 2 and J % 2 == cw % 2]
        g.q = []
        for i, (n, (I, J)) in enumerate(mine):
            r = 4*i
            if I == 6: g.ds(f"ds_read_u16_d16_hi v48, v153 offset:{19200 + 192}", n); continue
            g.ds(f"ds_read_b64_tr_b16 v[{r}:{r+1}], v145 offset:{800*I + 8*J}", n)
            if I < J: g.ds(f"ds_read_b64 v[{r+2}:{r+3}], v146 offset:{800*J + 8*I}", n)
        for i, J in enumerate(small):
            g.ds(f"ds_read_u16_d16_hi v{48+2*i}, v147 offset:{19200 + 8*J}", ('s', J)); g.ds(f"ds_read_u16_d16_hi v{49+2*i}, v151 offset:{800*J + 192}", ('s', J))
        for i, (n, (I, J)) in enumerate(mine):
            r = 4*i; d = 24 + 8*(i % 3)
            g.wait_ds(n)
            if I == 6:
                for k in range(4):
                    m = 0x11111111 << k
                    E(f"s_mov_b32 vcc_lo, {m:#x}"); E(f"s_mov_b32 vcc_hi, {m:#x}")
                    E(f"v_cndmask_b32 v{d+k}, 0, v48, vcc")
            else:
                for k in range(4 if I < J else 2):
                    E(f"v_lshlrev_b32 v{d+2*k}, 16, v{r+k}"); E(f"v_and_b32 v{d+2*k+1}, s75, v{r+k}")
                if I < J:
                    for k in range(4): E(f"v_add_f32 v{d+k}, v{d+k}, v{d+4+k}")
            g.ds(f"ds_write_b128 v148, v[{d}:{d+3}] offset:{n*1024}", 'w')
        for i, J in enumerate(small):
            g.wait_ds(('s', J))
            E(f"v_add_f32 v{48+2*i}, v{48+2*i}, v{49+2*i}"); g.ds(f"ds_write_b32 v149, v{48+2*i} offset:{J*256}", 'w')
        if cw < 3: E(f"s_branch {P}WBDONE"); g.L(f"{P}WB{cw+1}")
    g.q = []
    g.L(f"{P}WBDONE")
    E("s_waitcnt lgkmcnt(0)")
    if o.get('pst') == 2: stamp(2)
    E("s_barrier")
    stamp(1)
    def Rl(s, ks):
        la = [f"ds_read_b128 v[{FA(ks,st)}:{FA(ks,st)+3}], v{VA+ks} offset:{AP(s) + st*2048}" for st in range(4)]
        lb = [[f"ds_read_b64_tr_b16 v[{FB(ks,nt)+2*hf}:{FB(ks,nt)+2*hf+1}], v{VBR+nt} offset:{s*16384 + ks*8192 + hf*1024}" for hf in range(2)] for nt in range(4)]
        if o['nocr'] == 1: return []
        return [la[0]] + lb[0] + [la[1]] + lb[1] + [la[2]] + lb[2] + [la[3]] + lb[3]
    MORD = [(0,0),(0,1),(1,0),(1,1),(0,2),(1,2),(2,0),(2,1),(2,2),(0,3),(1,3),(2,3),(3,0),(3,1),(3,2),(3,3)]
    mo = o.get('mord', 0)
    if mo == 3: MORD = [(nt, st if nt % 2 == 0 else 3-st) for nt in range(4) for st in range(4)]
    def Ml(ks, first=False):
        l = []
        for nt, st in MORD:
            a = ACC(nt, st)
            l.append(f"v_mfma_f32_16x16x32_bf16 v[{a}:{a+3}], v[{FB(ks,nt)}:{FB(ks,nt)+3}], v[{FA(ks,st)}:{FA(ks,st)+3}], " + ("0" if first else f"v[{a}:{a+3}]"))
        if o['nocm']: return ["s_nop 0"]*16
        return l
    def inter(ms, rs, tag):
        for i, m in enumerate(ms):
            E(m)
            if i < len(rs): g.ds(rs[i], tag)
    for t in range(23 if o.get('stm') else 25):
        s = t % NS
        if t == 0:
            for x in Rl(s, 0): g.ds(x, 0)
        else: inter(Ml(1), Rl(s, 0), 0)
        if t == 1:
            E("s_or_b32 s70, s72, s67"); E("s_cmp_lg_u32 s70, 0"); E(f"s_cbranch_scc1 {P}NOLEAD")
            E("s_lshl_b32 s70, s64, 2")
            E("s_or_b32 s96, s96, 1"); E(f"v_mov_b32 v{RDY}, s96")
            E("s_mov_b64 exec, 1")
            E(f"buffer_store_dword v{RDY}, off, s[44:47], s70 offset:128 sc0 sc1")
            E("s_mov_b64 exec, -1")
            g.L(f"{P}NOLEAD")
        if t == 24 and o.get('tag'): tailtag.tag_prep(g, o, P, nonce_wait, RDY)
        if t == o['chk']:
            E("s_lshl_b32 s79, s64, 2")
            E(f"buffer_load_dword v{RDY+2}, off, s[44:47], s79 offset:128 sc0 sc1")
        g.wait_ds(0)
        inter(Ml(0, t == 0), Rl(s, 1), 1)
        g.wait_ds()
        if t <= o['lb']: E("s_barrier")
        if t == 11 and o.get('pst') != 2: stamp(2)
    if o.get('tag'):
        tailtag.tail(g, o, P, ACC, FA, FB, VX, B1R, W2R, stamp)
    else:
        if o.get('stm'):
            assert o['lb'] == 22 and NS == 4
            HV = [(23, 0), (23, 1), (24, 0), (24, 1)]
            BX = [80, 160, 176, 192]; AX = [64, 208]
            def rdB(h):
                t, ks = HV[h]
                return [f"ds_read_b64_tr_b16 v[{BX[h]+4*nt+2*hf}:{BX[h]+4*nt+2*hf+1}], v{VBR+nt} offset:{(t % NS)*16384 + ks*8192 + hf*1024}" for nt in range(4) for hf in range(2)]
            def rdA(st, h):
                t, ks = HV[h]; r = AX[st & 1] + 4*h
                return f"ds_read_b128 v[{r}:{r+3}], v{VA+ks} offset:{AP(t % NS) + st*2048}"
            rs = []
            for h in range(4): rs += [(rdA(0, h), ('A', 0, h))] + [(x, ('B', h)) for x in rdB(h)]
            ms = Ml(1); k = 0
            for i, m in enumerate(ms):
                E(m)
                while k < len(rs) and k < ((i+1)*o.get('stn', 27))//16: g.ds(*rs[k]); k += 1
            E("s_lshl_b32 s77, s64, 18"); E("s_lshl_b32 s70, s73, 17"); E("s_add_u32 s77, s77, s70")
            E("s_lshl_b32 s70, s65, 13"); E("s_add_u32 s77, s77, s70")
            E("s_lshl_b32 s70, s66, 12"); E("s_add_u32 s77, s77, s70")
            E("s_lshl_b32 s70, s74, 11"); E("s_add_u32 s77, s77, s70")
            E("s_lshl_b32 s75, s64, 1"); E("s_add_u32 s75, s75, s66"); E("s_lshl_b32 s75, s75, 2"); E("s_add_u32 s75, s75, s72")
            E(f"s_lshl_b32 s75, s75, {9 if o.get('pfs') else 7}"); E("s_lshl_b32 s71, s65, 2"); E("s_add_u32 s75, s75, s71"); E(f"s_add_u32 s75, s75, {FLOFF}")
            fl = o.get('xfl', " sc0 sc1")
            mk = {}
            def outs(st):
                l = []
                if st: l.append(("s_add_u32 s77, s77, 32768", None))
                for cp in range(2):
                    p = 96 + (st*2+cp)*4
                    for h in range(2):
                        a = ACC(2*cp+h, st)
                        l += [(f"v_cvt_pk_bf16_f32 v{p+2*h}, v{a}, v{a+1}", a), (f"v_cvt_pk_bf16_f32 v{p+2*h+1}, v{a+2}, v{a+3}", a)]
                    l.append((f"buffer_store_dwordx4 v[{p}:{p+3}], v{VX}, s[40:43], s77 offen offset:{cp*1024}{fl}", None))
                return l
            def put(x):
                if x[1] is not None: g.since(mk[x[1]], 8)
                E(x[0])
            for st in range(4):
                ex = outs(st-1) if st else []
                n = 0
                for h in range(4):
                    g.wait_ds(('A', st, h))
                    if st == 0: g.wait_ds(('B', h))
                    for nt in range(4):
                        a = ACC(nt, st)
                        E(f"v_mfma_f32_16x16x32_bf16 v[{a}:{a+3}], v[{BX[h]+4*nt}:{BX[h]+4*nt+3}], v[{AX[st&1]+4*h}:{AX[st&1]+4*h+3}], v[{a}:{a+3}]")
                        mk[a] = g.n
                        n += 1
                        if st == 0:
                            for _ in range(2):
                                if k < len(rs): g.ds(*rs[k]); k += 1
                            if 9 <= n <= 12: g.ds(rdA(1, n-9), ('A', 1, n-9))
                            if n == 13:
                                E("s_waitcnt vmcnt(0)")
                                nonce_wait(f"{P}NWC", RDY+2)
                        elif st < 3 and n <= 4: g.ds(rdA(st+1, n-1), ('A', st+1, n-1))
                        if n >= o.get('ost', 3):
                            for _ in range(2):
                                if ex: put(ex.pop(0))
                for x in ex: put(x)
            stamp(3)
            E(f"v_mov_b32 v{RDY}, s78")
            for x in outs(3): put(x)
            E("s_mov_b64 exec, 1")
            if o.get('pfs'):
                for st in range(4):
                    E(f"s_waitcnt vmcnt({6 - st})")
                    E(f"buffer_store_dword v{RDY}, off, s[40:43], s75 offset:{128*st} sc0 sc1")
            else:
                E("s_waitcnt vmcnt(0)")
                E(f"buffer_store_dword v{RDY}, off, s[40:43], s75 sc0 sc1")
            E("s_mov_b64 exec, -1")
        else:
            for m in Ml(1): E(m)
            stamp(3)
            E("s_lshl_b32 s77, s64, 18"); E("s_lshl_b32 s70, s73, 17"); E("s_add_u32 s77, s77, s70")
            E("s_lshl_b32 s70, s65, 13"); E("s_add_u32 s77, s77, s70")
            E("s_lshl_b32 s70, s66, 12"); E("s_add_u32 s77, s77, s70")
            E("s_lshl_b32 s70, s74, 11"); E("s_add_u32 s77, s77, s70")
            def xstores(fl):
                for st in range(4):
                    if st: E("s_add_u32 s77, s77, 32768")
                    for cp in range(2):
                        p = 64 + (st*2+cp)*4
                        for h in range(2):
                            a = ACC(2*cp+h, st)
                            E(f"v_cvt_pk_bf16_f32 v{p+2*h}, v{a}, v{a+1}"); E(f"v_cvt_pk_bf16_f32 v{p+2*h+1}, v{a+2}, v{a+3}")
                        E(f"buffer_store_dwordx4 v[{p}:{p+3}], v{VX}, s[40:43], s77 offen offset:{cp*1024}{fl}")
            E("s_lshl_b32 s75, s64, 1"); E("s_add_u32 s75, s75, s66"); E("s_lshl_b32 s75, s75, 2"); E("s_add_u32 s75, s75, s72")
            E("s_lshl_b32 s75, s75, 7"); E("s_lshl_b32 s71, s65, 2"); E("s_add_u32 s75, s75, s71"); E(f"s_add_u32 s75, s75, {FLOFF}")
            E("s_waitcnt vmcnt(0)")
            xstores(o.get('xfl', " sc0 sc1"))
            nonce_wait(f"{P}NWC", RDY+2)
            E("s_nop 0"); E(f"v_mov_b32 v{RDY}, s78")
            E("s_waitcnt vmcnt(0)")
            E("s_mov_b64 exec, 1")
            E(f"buffer_store_dword v{RDY}, off, s[40:43], s75 sc0 sc1")
            E("s_mov_b64 exec, -1")
        if not o.get('st4'): stamp(4)
        E("s_lshl_b32 s77, s64, 18"); E("s_lshl_b32 s71, s67, 15"); E("s_add_u32 s77, s77, s71")
        E("s_lshl_b32 s71, s72, 11"); E("s_add_u32 s77, s77, s71")
        E("v_mov_b32 v200, 0")
        E(f"s_mov_b32 s71, {SPIN}")
        E("s_lshl_b32 s70, s64, 1"); E("s_lshr_b32 s75, s72, 1"); E("s_add_u32 s70, s70, s75"); E("s_lshl_b32 s70, s70, 2")
        E("s_add_u32 s70, s70, s66"); E("s_and_b32 s75, s72, 1"); E("s_lshl_b32 s75, s75, 1"); E("s_add_u32 s70, s70, s75")
        if o.get('pfs'): E("s_lshl_b32 s70, s70, 2"); E("s_add_u32 s70, s70, s65")
        E("s_lshl_b32 s70, s70, 7"); E(f"s_add_u32 s70, s70, {FLOFF}")
        E(f"buffer_load_dwordx4 v[204:207], off, s[40:43], s70{o['pfl']}")
        g.srd(56, 18, 8192)
        E("s_mov_b32 s79, 0xffff0000")
        for k in range(8):
            E(f"v_lshlrev_b32 v{2*k}, 16, v{B1R+k}"); E(f"v_and_b32 v{2*k+1}, s79, v{B1R+k}")
            E(f"v_lshlrev_b32 v{16+2*k}, 16, v{W2R+k}"); E(f"v_and_b32 v{16+2*k+1}, s79, v{W2R+k}")
        g.srd(60, 16, 2)
        E("v_mov_b32 v96, 0")
        for qq in range(1, 4): E(f"s_add_u32 s{73+qq}, s77, {qq*8192}")
        E("v_mov_b32 v97, 0xbdd2d3e8")
        if o.get('noflag'): E(f"s_branch {P}POLLED")
        E(f"s_branch {P}POLLT")
        g.L(f"{P}POLL")
        E(f"buffer_load_dwordx4 v[204:207], off, s[40:43], s70{o['pfl']}")
        g.L(f"{P}POLLT")
        E("s_sub_u32 s71, s71, 1"); E("s_cmp_eq_u32 s71, 0"); E(f"s_cbranch_scc1 {P}POLLED")
        E("s_waitcnt vmcnt(0)")
        for k in range(4): E(f"v_xor_b32 v{204+k}, s78, v{204+k}")
        E("v_or3_b32 v204, v204, v205, v206"); E("v_or_b32 v204, v204, v207")
        E("v_cmp_ne_u32 vcc, 0, v204"); E(f"s_cbranch_vccnz {P}POLL")
        g.L(f"{P}POLLED")
        if o.get('st4'): stamp(4)
        for qq in range(4):
            for cp in range(2):
                r = 32 + 8*qq + 4*cp
                E(f"buffer_load_dwordx4 v[{r}:{r+3}], v{VX}, s[40:43], s{73+qq if qq else 77} offen offset:{cp*1024}{o['lfl']}")
        E("buffer_load_short_d16_hi v96, v200, s[60:63], 0 offen")
        for qq in range(4):
            E(f"s_waitcnt vmcnt({7 - 2*qq})")
            if qq == 3: stamp(5)
            for k in range(8):
                E(f"v_lshlrev_b32 v{64+2*k}, 16, v{32+8*qq+k}"); E(f"v_and_b32 v{65+2*k}, s79, v{32+8*qq+k}")
            for k in range(16): E(f"v_add_f32 v{k}, v{k}, v{64+k}")
    N = 16
    for k in range(N): E(f"v_mul_f32 v{64+k}, v{k}, v{k}")
    for k in range(N): E(f"v_fmaak_f32 v{64+k}, v{64+k}, v97, 0xc0135761")
    for k in range(N): E(f"v_mul_f32 v{64+k}, v{64+k}, v{k}")
    for k in range(N): E(f"v_exp_f32 v{64+k}, v{64+k}")
    for k in range(N): E(f"v_mul_f32 v{k}, v{k}, v{16+k}")
    for k in range(N): E(f"v_add_f32 v{64+k}, 1.0, v{64+k}")
    for k in range(N): E(f"v_rcp_f32 v{64+k}, v{64+k}")
    E("s_lshl_b32 s70, s72, 8"); E(f"s_add_u32 s70, s70, {RED}")
    E("v_lshlrev_b32 v98, 2, v250"); E("v_add_u32 v99, s70, v98")
    for k in range(4): E(f"v_mul_f32 v{80+k}, v{k}, v{64+k}")
    for k in range(4, N): E(f"v_fmac_f32 v{80+(k&3)}, v{k}, v{64+k}")
    E("v_add_f32 v80, v80, v81"); E("v_add_f32 v82, v82, v83"); E("v_add_f32 v80, v80, v82")
    E("ds_write_b32 v99, v80")
    E("s_waitcnt lgkmcnt(0)")
    E("s_barrier")
    E("s_cmp_lg_u32 s72, 0"); E(f"s_cbranch_scc1 {P}END")
    E(f"v_add_u32 v98, {RED}, v98")
    for w in range(4): E(f"ds_read_b32 v{w}, v98 offset:{w*256}")
    E("ds_read_b32 v4, v98 offset:2048")
    E("s_lshl_b32 s70, s67, 4"); E("s_add_u32 s70, s70, s68"); E("s_lshl_b32 s70, s70, 1")
    E("v_lshlrev_b32 v43, 1, v250")
    E("s_waitcnt vmcnt(0) lgkmcnt(0)")
    E("v_add_f32 v0, v0, v1"); E("v_add_f32 v2, v2, v3"); E("v_add_f32 v0, v0, v4"); E("v_add_f32 v0, v0, v2")
    E("v_mov_b32 v1, v0"); E("s_nop 1"); E("v_permlane32_swap_b32 v0, v1"); E("s_nop 1"); E("v_add_f32 v0, v0, v1")
    E("v_mov_b32 v1, v0"); E("s_nop 1"); E("v_permlane16_swap_b32 v0, v1"); E("s_nop 1"); E("v_add_f32 v0, v0, v1")
    E(f"v_add_f32 v0, v0, v{222 if o.get('tag') else 96}")
    E("v_cvt_pk_bf16_f32 v0, v0, v0")
    E("s_mov_b64 exec, 0xffff")
    E("buffer_store_short v0, v43, s[56:59], s70 offen")
    if 'diag' in o:
        if o['diag'] == 6: E("s_waitcnt vmcnt(0)"); stamp(6)
        E("s_movk_i32 s75, 3000")
        if o['diag'] >= 20:
            a, b = {20: (3, 4), 21: (4, 5), 22: (3, 5), 23: (1, 3)}[o['diag']]
            E("s_waitcnt lgkmcnt(0)")
            E(f"s_sub_u32 s76, s{80+2*b}, s{80+2*a}"); E("s_min_u32 s76, s76, 2000"); E("s_mul_i32 s76, s76, 10"); E("s_add_u32 s75, s75, s76")
        elif o['diag'] >= 10:
            a, b = {10: (1, 3), 11: (1, 2), 12: (3, 5)}[o['diag']]
            E("s_waitcnt lgkmcnt(0)")
            E(f"s_sub_u32 s76, s{80+2*b}, s{80+2*a}"); E("s_min_u32 s76, s76, 100000"); E("s_mul_i32 s76, s76, 6554"); E("s_lshr_b32 s76, s76, 16"); E("s_add_u32 s75, s75, s76")
        if 'dwg' in o: E(f"s_cmp_lg_u32 s2, {o['dwg']}"); E(f"s_cbranch_scc1 {P}END")
        if 'dmask' in o: E(f"s_and_b32 s70, s2, {o['dmask'][0]}"); E(f"s_cmp_lg_u32 s70, {o['dmask'][1]}"); E(f"s_cbranch_scc1 {P}END")
        g.L(f"{P}DIAG")
        E("s_memrealtime s[70:71]"); E("s_waitcnt lgkmcnt(0)")
        E(f"s_sub_u32 s70, s70, s{80+2*(o['diag'] if o['diag'] < 10 else 0)}"); E("s_cmp_lt_u32 s70, s75"); E(f"s_cbranch_scc1 {P}DIAG")
    if stamps:
        E("s_mov_b64 exec, -1")
        g.L(f"{P}STAMP")
        E("s_waitcnt vmcnt(0)")
        stamp(6)
        E("s_mul_i32 s70, s2, 112"); E("s_add_u32 s70, s70, 0x8000000")
        E("s_cmp_eq_u32 s69, 0"); E("s_cselect_b32 s71, 56, 0"); E("s_add_u32 s70, s70, s71")
        E("v_mov_b32 v1, s70")
        E("s_waitcnt lgkmcnt(0)")
        if o.get('clk'):
            E("s_cmp_lg_u32 s69, 0"); E(f"s_cbranch_scc1 {P}NOCLK")
            for k in (2, 3, 1):
                E(f"s_sub_u32 s{80+2*k}, s{80+2*k}, s82"); E(f"s_add_u32 s{80+2*k}, s{80+2*k}, s80"); E(f"s_addc_u32 s{81+2*k}, s81, 0")
            g.L(f"{P}NOCLK")
        E("s_mov_b64 exec, 1")
        for k in range(7):
            E(f"v_mov_b32 v2, s{80+2*k}"); E(f"v_mov_b32 v3, s{81+2*k}")
            E(f"global_store_dwordx2 v1, v[2:3], s[22:23] offset:{8*k}"); E("s_nop 1")
    g.L(f"{P}END")
    E("s_endpgm")
    return "\n".join(x for x in g.l if x is not None) + "\n" + kd(name, vgpr=256)

def official(opts=None, path='standalone__deep_cross_pnn__recsys.s', stamps=False):
    asm = HDR + f"; @launch grid=(256,1,1) block=(512,1,1) lds={LDS}\n" + '.amdgcn_target "amdgcn-amd-amdhsa--gfx950"\n' + gen(NAME, stamps, opts)
    open(path, 'w').write(asm)

def bench(base, variants):
    hdr = []; ks = []
    for nm, op in variants:
        hdr.append(f"; @launch kernel={nm} grid=(256,1,1) block=(512,1,1) lds={LDS}")
        ks.append(gen(nm, True, op))
    asm = "\n".join(hdr) + '\n.amdgcn_target "amdgcn-amd-amdhsa--gfx950"\n' + "\n".join(ks)
    build(asm, base, variants[0][0])
```

```python
SPIN = 200000
def tag_prep(g, o, P, nonce_wait, RDY):
    g.E("s_waitcnt vmcnt(0)")
    nonce_wait(f"{P}NWC", RDY+2)
    g.srd(60, 16, 2)
    g.E("v_mov_b32 v222, 0")
    g.E("buffer_load_short_d16_hi v222, off, s[60:63], 0")

def tail(g, o, P, ACC, FA, FB, VX, B1R, W2R, stamp):
    E = g.E
    SB = 160
    fl = o.get('xfl', " sc0 sc1")
    E("s_lshl_b32 s77, s64, 19"); E("s_lshl_b32 s70, s73, 18"); E("s_add_u32 s77, s77, s70")
    E("s_lshl_b32 s70, s65, 14"); E("s_add_u32 s77, s77, s70")
    E("s_lshl_b32 s70, s66, 13"); E("s_add_u32 s77, s77, s70")
    E("s_lshl_b32 s70, s74, 12"); E("s_add_u32 s77, s77, s70")
    E("s_lshl_b32 s60, s64, 19"); E("s_lshl_b32 s70, s67, 16"); E("s_add_u32 s60, s60, s70")
    E("s_lshl_b32 s70, s72, 12"); E("s_add_u32 s60, s60, s70")
    for q in range(1, 4): E(f"s_add_u32 s{60+q}, s60, {q << 14}")
    def slot(st, d): return SB + 12*st + d + d//3
    def mf(nt, st):
        a = ACC(nt, st)
        return f"v_mfma_f32_16x16x32_bf16 v[{a}:{a+3}], v[{FB(1,nt)}:{FB(1,nt)+3}], v[{FA(1,st)}:{FA(1,st)+3}], v[{a}:{a+3}]"
    def cv(st, nt):
        a = ACC(nt, st)
        return [f"v_cvt_pk_bf16_f32 v{slot(st, 2*nt)}, v{a}, v{a+1}", f"v_cvt_pk_bf16_f32 v{slot(st, 2*nt+1)}, v{a+2}, v{a+3}"]
    def stv(st, k):
        r = SB + 12*st + 4*k
        return f"buffer_store_dwordx4 v[{r}:{r+3}], v{VX}, s[40:43], s77 offen offset:{k*1024}{fl}"
    tags = [f"v_mov_b32 v{SB + 12*st + k}, s78" for st in range(4) for k in (3, 7, 10, 11)]
    for st in range(5):
        for nt in range(4):
            if st < 4: E(mf(nt, st))
            if st == 0:
                for x in tags[4*nt:4*nt+4]: E(x)
            else:
                for x in cv(st-1, nt): E(x)
                if nt: E(stv(st-1, nt-1))
                elif st > 1: E("s_add_u32 s77, s77, 65536")
        if st == 3: stamp(3)
    LB = 32
    def loads(q):
        for k in range(3):
            r = LB + 12*q + 4*k
            E(f"buffer_load_dwordx4 v[{r}:{r+3}], v{VX}, s[40:43], s{60+q} offen offset:{k*1024}{o['lfl']}")
    for q in range(4): loads(q)
    stamp(4)
    E(f"s_mov_b32 s71, {SPIN}")
    E("s_mov_b32 s79, 0xffff0000")
    for k in range(8):
        E(f"v_lshlrev_b32 v{2*k}, 16, v{B1R+k}"); E(f"v_and_b32 v{2*k+1}, s79, v{B1R+k}")
        E(f"v_lshlrev_b32 v{16+2*k}, 16, v{W2R+k}"); E(f"v_and_b32 v{16+2*k+1}, s79, v{W2R+k}")
    g.srd(56, 18, 8192)
    E("v_mov_b32 v97, 0xbdd2d3e8")
    def chk(q):
        r = LB + 12*q
        E(f"v_cmp_ne_u32 vcc, s78, v{r+3}"); E(f"v_cmp_ne_u32 s[76:77], s78, v{r+7}"); E(f"v_cmp_ne_u32 s[74:75], s78, v{r+11}")
        E("s_or_b64 vcc, vcc, s[76:77]"); E("s_or_b64 vcc, vcc, s[74:75]")
    for q in range(4):
        E(f"s_waitcnt vmcnt({9 - 3*q})")
        chk(q); E(f"s_cbranch_scc0 {P}OK{q}")
        E("s_waitcnt vmcnt(0)")
        g.L(f"{P}RT{q}")
        loads(q)
        for q2 in range(q+1, 4):
            chk(q2); E(f"s_cbranch_scc0 {P}RT{q}_{q2}")
            loads(q2)
            g.L(f"{P}RT{q}_{q2}")
        E("s_sub_u32 s71, s71, 1"); E("s_cmp_le_i32 s71, 0")
        E("s_waitcnt vmcnt(0)")
        E(f"s_cbranch_scc1 {P}OK{q}")
        chk(q); E(f"s_cbranch_scc1 {P}RT{q}")
        g.L(f"{P}OK{q}")
        if q == 3: stamp(5)
        for d in range(8):
            r = LB + 12*q + d + d//3
            E(f"v_lshlrev_b32 v{80+2*d}, 16, v{r}"); E(f"v_and_b32 v{81+2*d}, s79, v{r}")
        for k in range(16): E(f"v_add_f32 v{k}, v{k}, v{80+k}")
```

```python
import gen6, sys
N = dict(psch='F', lb=22, npre=4, ppst=1, nin=10, tfirst=14)
gen6.official(dict(N, diag=20), f'd0.s')
for i, w in enumerate((5, 77, 130, 203, 250)):
    gen6.official(dict(N, diag=20, dwg=w), f'd{i+1}.s')
```

```python
import sys, os
sys.path.insert(0, 'bench')
from asmlib import kd, build
import tailtag
NAME = "standalone__deep_cross_pnn__recsys_kernel"
HDR = open('standalone__deep_cross_pnn__recsys.s.ref').read().split('; Override')[0]

APS = 22528
def AP(s): return s*APS
BS0 = 3*APS
IDXA = BS0 + 3*16384
IDXP = IDXA + 16384
WP = IDXP + 6400
WP6 = WP + 22*1024
LDSEND = WP6 + 6*256
LDS = 163840
assert LDSEND <= LDS
RED = IDXA
FLOFF = 8 << 20
WSREC = 16 << 20
SPIN = 200000

class G:
    def __init__(s): s.l = []; s.q = []
    def E(s, x): s.l.append("    " + x)
    def L(s, x): s.l.append(x + ":")
    def ds(s, x, tag=None): s.E(x); s.q.append(tag)
    def wait_ds(s, tag=None):
        if tag is None: n = 0
        else:
            c = [i for i, t in enumerate(s.q) if t == tag]
            if not c: return
            n = len(s.q) - 1 - max(c)
        s.E(f"s_waitcnt lgkmcnt({min(n,15)})")
        n = min(n, 15)
        s.q = s.q[len(s.q)-n:] if n else []
    def srd(s, d, p, n):
        s.E(f"s_mov_b32 s{d}, s{p}"); s.E(f"s_mov_b32 s{d+1}, s{p+1}"); s.E(f"s_mov_b32 s{d+2}, {n}"); s.E(f"s_mov_b32 s{d+3}, 0x20000")

def gen(name=NAME, stamps=False, opts=None):
    o = dict(prioL=0, prioC=2, il=1, lead=6, spread=1, dord=1, nopnn=0, nocr=0, nocm=0, nofr=0, chk=22, rot=1, rsel=0, sh=1, lfl=' sc1', pfl=' sc1')
    if opts: o.update(opts)
    g = G(); E = g.E
    P = "L" + name.replace("_kernel", "")[-10:] + "_"
    role = dict(L=True)
    def stamp(k):
        if 'diag' in o:
            if o['diag'] >= 10:
                if k == 0: E("s_memrealtime s[80:81]")
                elif k in (1, 2, 3, 5) and not role['L']: E(f"s_memtime s[{80+2*k}:{81+2*k}]")
                return
            if k == o['diag'] and (k == 0 or not role['L']): E(f"s_memrealtime s[{80+2*k}:{81+2*k}]")
            return
        if stamps and o.get('clk') and role['L'] and k in (1, 2, 3): E(f"s_memtime s[{80+2*k}:{81+2*k}]")
        elif stamps: E(f"s_memrealtime s[{80+2*k}:{81+2*k}]")
    g.l.append(f".text\n.globl {name}\n.p2align 8\n.type {name},@function\n{name}:")
    stamp(0)
    E("s_cmp_ge_u32 s2, 256"); E(f"s_cbranch_scc1 {P}END")
    E("s_load_dwordx16 s[4:19], s[0:1], 0"); E("s_load_dwordx4 s[20:23], s[0:1], 64")
    E("v_lshrrev_b32 v1, 6, v0")
    E("s_and_b32 s64, s2, 7"); E("s_lshl_b32 s64, s64, 2")
    E("v_readfirstlane_b32 s69, v1")
    E("s_lshr_b32 s70, s2, 6"); E("s_add_u32 s64, s64, s70")
    E("s_lshr_b32 s67, s2, 3"); E("s_and_b32 s67, s67, 7")
    E("s_and_b32 s65, s67, 3"); E("s_lshr_b32 s66, s67, 2")
    E("s_lshl_b32 s68, s64, 7")
    RB = o['rot']
    def cls(t):
        if t == 0 or not RB: return '0'
        blk = (t-1)//RB
        if blk == 0: return 'A'
        if blk == 24//RB - 1: return 'D'
        return 'B' if blk % 2 == 0 else 'C'
    CV = {'0': (0, 0), 'A': (1, 0), 'D': (-1, 0), 'B': (0, 1), 'C': (0, -1)}
    if RB:
        assert RB in (1, 2)
        E(f"s_lshr_b32 s94, s2, {6 + o['rsel']}"); E("s_xor_b32 s94, s94, s66"); E("s_and_b32 s94, s94, 1")
        if o['sh'] == 0: E("s_mov_b32 s99, s94")
        else:
            if o['sh'] == 1: E("s_and_b32 s70, s65, 1")
            elif o['sh'] == 2: E("s_lshr_b32 s70, s65, 1")
            else: E("s_lshr_b32 s70, s2, 7")
            E("s_and_b32 s70, s70, s94")
            E("s_sub_u32 s94, s94, s70"); E("s_sub_u32 s99, s94, s70")
    E("v_and_b32 v250, 63, v0")
    E("s_cmp_ge_u32 s69, 4"); E(f"s_cbranch_scc1 {P}CSTART")
    B1R, W2R = 224, 232
    def load_b1w2(tmp):
        g.srd(48, 12, 512); g.srd(52, 14, 512)
        E(f"v_lshrrev_b32 v{tmp}, 4, v250"); E(f"v_lshlrev_b32 v{tmp}, 3, v{tmp}")
        E("s_lshl_b32 s71, s72, 7")
        for j in range(4): E(f"buffer_load_dwordx2 v[{B1R+2*j}:{B1R+2*j+1}], v{tmp}, s[48:51], s71 offen offset:{32*j}")
        for j in range(4): E(f"buffer_load_dwordx2 v[{W2R+2*j}:{W2R+2*j+1}], v{tmp}, s[52:55], s71 offen offset:{32*j}")
    VCA0, VCA1, VB0, VB1, VIA, VIP0, VIP1, VP16 = 224, 225, 226, 227, 228, 229, 230, 231
    OFF = 232; VP = 220; SUM = 216; WREG = 208; D = 192; F6 = 238; WA = 246; WA6 = 247
    def F(js, b, h): return ((js*6 + b)*2 + h)*4 if b < 6 else F6 + h*4
    if o['prioL']: E(f"s_setprio {o['prioL']}")
    E("v_lshrrev_b32 v251, 3, v250")
    E("v_and_b32 v252, 7, v250")
    E(f"v_lshlrev_b32 v{VP16}, 4, v252")
    E("v_mul_u32_u24 v253, 400, v251")
    E(f"v_add_u32 v253, v253, v{VP16}")
    E("v_lshlrev_b32 v254, 4, v250")
    E("v_lshrrev_b32 v249, 4, v250")
    E("v_lshlrev_b32 v248, 2, v249")
    E("v_and_b32 v247, 15, v250")
    E("v_xor_b32 v247, v247, v248")
    E("v_lshlrev_b32 v247, 4, v247")
    E(f"v_lshl_add_u32 v{VB0}, v249, 9, v247")
    E(f"v_xor_b32 v{VB1}, 32, v{VB0}")
    E("s_lshl_b32 s73, s69, 12")
    E("s_mul_i32 s74, s69, 1536"); E("s_add_u32 s74, s74, 16384")
    E(f"s_add_u32 s75, s73, {BS0}")
    E("s_mul_i32 s72, s65, 819200"); E("s_lshl_b32 s70, s66, 8"); E("s_add_u32 s72, s72, s70")
    E("s_lshl_b32 s70, s69, 13"); E("s_add_u32 s72, s72, s70")
    if RB:
        E(f"s_mul_i32 s70, s94, {RB*32768}"); E("s_add_u32 s95, s72, s70"); E("s_sub_u32 s96, s72, s70")
        E(f"s_mul_i32 s70, s99, {RB*32768}"); E("s_add_u32 s100, s72, s70"); E("s_sub_u32 s101, s72, s70")
        E(f"s_mul_i32 s97, s94, {RB*4}"); E(f"s_mul_i32 s98, s99, {RB*8}")
        E("s_add_u32 s36, s94, s99"); E(f"s_mul_i32 s36, s36, {RB*4}")
    def SB(t): return {'0': 72, 'A': 95, 'D': 96, 'B': 100, 'C': 101}[cls(t)]
    ist = dict(c='0')
    def idxadj(t):
        tr = ist['c'] + cls(t); ist['c'] = cls(t)
        if tr[0] == tr[1]: return
        sg, sr = {'0A': (1, 97), 'AC': (-1, 36), 'CB': (1, 98), 'BC': (-1, 98), 'BD': (-1, 36)}[tr]
        for v in (VIA, VIP0, VIP1):
            if sg > 0: E(f"v_add_u32 v{v}, s{sr}, v{v}")
            else: E(f"v_subrev_u32 v{v}, s{sr}, v{v}")
    E("s_lshl_b32 s70, s69, 5"); E("s_add_u32 s70, s70, s68"); E("s_mul_i32 s70, s70, 400")
    E("s_mul_i32 s71, s65, 100"); E("s_add_u32 s70, s70, s71")
    E("s_lshl_b32 s77, s67, 4"); E("s_lshl_b32 s78, s69, 2"); E("s_add_u32 s77, s77, s78")
    E("s_add_u32 s78, s77, s68"); E("s_mul_i32 s78, s78, 400")
    E("s_mul_i32 s79, s69, 1600"); E(f"s_add_u32 s79, s79, {IDXP}")
    E("s_waitcnt lgkmcnt(0)")
    if o.get('pst'): stamp(1)
    g.srd(24, 4, 1638400)
    for j in range(4):
        E(f"s_add_u32 m0, s73, {IDXA + j*1024}")
        if j: E(f"s_add_u32 s70, s70, 3200")
        else: E("s_nop 0")
        E("buffer_load_dwordx4 v253, s[24:27], s70 offen lds")
    E("s_mov_b32 m0, s79"); E("s_nop 0")
    E("buffer_load_dwordx4 v254, s[24:27], s78 offen lds")
    E("s_mov_b32 exec_hi, 15")
    E("buffer_load_dwordx4 v254, s[24:27], s78 offen offset:1024 lds")
    E("s_mov_b32 exec_hi, -1")
    g.srd(32, 10, 3276800)
    def issueB(t):
        s = t % 3
        for ii in range(4):
            E(f"s_add_u32 m0, s75, {s*16384 + ii*1024}")
            E(f"s_add_u32 s70, s{SB(t)}, {t*32768 + ii*2048}")
            E(f"buffer_load_dwordx4 v{VB0 if ii < 2 else VB1}, s[32:35], s70 offen lds")
    def issueA(t, off):
        s = t % 3
        for j in range(4):
            E(f"s_add_u32 m0, s73, {AP(s) + j*1024}"); E("s_nop 0")
            E(f"buffer_load_dwordx4 v{off+j}, s[28:31], 0 offen lds")
        E(f"s_add_u32 m0, s74, {AP(s)}"); E("s_nop 0")
        E(f"buffer_load_dwordx4 v{off+4}, s[28:31], 0 offen lds")
        E(f"s_add_u32 m0, s74, {AP(s) + 1024}"); E("s_mov_b32 exec_hi, 0")
        E(f"buffer_load_dwordx4 v{off+5}, s[28:31], 0 offen lds")
        E("s_mov_b32 exec_hi, -1")
    def rdidx(t, off):
        idxadj(t)
        for j in range(4): g.ds(f"ds_read_b32 v{off+j}, v{VIA} offset:{j*1024 + 4*t}", 'idx')
        g.ds(f"ds_read_b32 v{off+4}, v{VIP0} offset:{4*t}", 'idx')
        g.ds(f"ds_read_b32 v{off+5}, v{VIP1} offset:{4*t}", 'idx')
    def cvidx(off):
        for j in range(4): E(f"v_lshl_add_u32 v{off+j}, v{off+j}, 7, v{VCA0 + (j&1)}")
        for j in (4, 5): E(f"v_lshl_add_u32 v{off+j}, v{off+j}, 7, v{VP16}")
    issueB(0); issueB(1)
    if o.get('b2e') == 1: issueB(2)
    NPF, KPF = o.get('bpf', 0), o.get('bpk', 2)
    PFR = {}
    pool = [F(js, b, h) for b in (1, 2, 3, 4, 5) for js in range(4) for h in range(2)][40 - NPF*KPF:]
    for t in range(2, 2 + NPF):
        for ii in range(KPF):
            r = pool[(t-2)*KPF + ii]; PFR[(t, ii)] = r
            bb = (r // 8) % 6
            assert t - 2 < 4*bb + 1, (t, bb)
            if o.get('bskip'): continue
            E(f"s_add_u32 s70, s{SB(t)}, {t*32768 + ii*2048}")
            E(f"buffer_load_dwordx4 v[{r}:{r+3}], v{VB0 if ii < 2 else VB1}, s[32:35], s70 offen")
    NPFL = 0 if o.get('bskip') else NPF*KPF
    g.srd(28, 6, 12800000)
    E("v_lshrrev_b32 v248, 1, v251"); E("v_xor_b32 v248, v248, v252")
    E(f"v_lshlrev_b32 v{VCA0}, 4, v248"); E(f"v_xor_b32 v{VCA1}, 64, v{VCA0}")
    E(f"v_lshlrev_b32 v{VIA}, 7, v251"); E(f"s_add_u32 s70, s73, {IDXA}"); E(f"v_add_u32 v{VIA}, s70, v{VIA}")
    E("s_movk_i32 s71, 400")
    for k, dst in ((0, VIP0), (1, VIP1)):
        if k == 0: E("v_mov_b32 v246, v251")
        else: E("v_and_b32 v246, 3, v251"); E("v_add_u32 v246, 8, v246")
        E("v_mul_u32_u24 v245, 11, v246"); E("v_lshrrev_b32 v245, 5, v245")
        E("v_mul_u32_u24 v244, 3, v245"); E("v_sub_u32 v244, v246, v244")
        E("v_add_u32 v244, s65, v244"); E("v_add_u32 v244, 1, v244"); E("v_and_b32 v244, 3, v244")
        E("v_mul_u32_u24 v244, 100, v244")
        E(f"v_mad_u32_u24 v{dst}, v245, s71, v244"); E(f"v_add_u32 v{dst}, s79, v{dst}")
    E("v_bfe_u32 v246, v250, 2, 2")
    E("v_cmp_eq_u32 vcc, s65, v246")
    E("v_subrev_u32 v245, s65, v246"); E("v_add_u32 v245, 3, v245"); E("v_and_b32 v245, 3, v245")
    E("v_lshlrev_b32 v245, 7, v245"); E("v_lshl_add_u32 v245, v249, 4, v245"); E("v_add_u32 v245, s74, v245")
    for js in range(4):
        E(f"s_add_u32 s70, s77, {js}"); E("s_lshr_b32 s71, s70, 1"); E("s_and_b32 s71, s71, 7"); E("s_lshl_b32 s70, s70, 7")
        E("v_xor_b32 v244, s71, v249"); E("v_lshlrev_b32 v244, 4, v244"); E("v_add_u32 v244, s70, v244")
        E(f"v_add_u32 v243, {js*384}, v245")
        E(f"v_cndmask_b32 v{VP+js}, v243, v244, vcc")
    for js in range(4): E(f"v_mov_b32 v{SUM+js}, 0")
    E(f"v_add_u32 v{WA}, {WP}, v254")
    E(f"v_lshlrev_b32 v{WA6}, 2, v250"); E(f"v_add_u32 v{WA6}, {WP6}, v{WA6}")
    if NPF and o.get("bskip") != 2: E("v_add_u32 v254, s75, v254")
    E(f"s_waitcnt vmcnt({(12 if o.get('b2e') == 1 else 8) + NPFL})")
    if o.get('pst'): stamp(2)
    rdidx(0, 0); rdidx(1, 6); g.wait_ds()
    cvidx(0); issueA(0, 0); cvidx(6); issueA(1, 6)
    if o.get('b2e') == 2: issueB(2)
    rdidx(2, OFF); g.wait_ds(); cvidx(OFF)
    E("s_barrier")
    if o.get('pst'): stamp(3)
    E(f"s_waitcnt vmcnt({10 if o.get('b2e') == 2 else 6})")
    E("s_barrier")
    stamp(4 if o.get('pst') else 1)
    if o.get('trace'): E("s_memtime s[38:39]"); E("s_memrealtime s[40:41]")
    sched = {t: [] for t in range(26)}
    sched[1].append((6, 6))
    dfb = o.get('dfb', 5)
    if not o.get('spread'):
        for b in range(6):
            tl = [(6, b)] + [(I, b) for I in range(b+1)]
            st = [4*b+5+k for k in range(4)] if b < dfb else [25]
            for n, x in enumerate(tl): sched[st[n*len(st)//len(tl)]].append(x)
    else:
        allt = [(x, 4*b+5) for b in range(6) for x in [(6, b)] + [(I, b) for I in range(b+1)]]
        nin = o['spread']; last = o.get('last', 24)
        for n, (x, e) in enumerate(allt):
            if n < nin:
                t = max(e, 5 + (n*(last-4))//nin)
                sched[min(t, 25)].append(x)
            else: sched[25].append(x)
    state = dict(pend=None, wsel=0)
    def wread(I, J):
        w = WREG + 4*state['wsel']; state['wsel'] ^= 1
        if I < 6: g.ds(f"ds_read_b128 v[{w}:{w+3}], v{WA} offset:{(J*(J+1)//2 + I)*1024}", ('w', I, J))
        elif J == 6: g.ds(f"ds_read_b128 v[{w}:{w+3}], v{WA} offset:{21*1024}", ('w', I, J))
        else: g.ds(f"ds_read_b32 v{w}, v{WA6} offset:{J*256}", ('w', I, J))
        return w
    def fm(js, p):
        I, J, w = p
        if I < 6:
            for r in range(4): E(f"v_fmac_f32 v{SUM+js}, v{D+4*js+r}, v{w+r}")
            return 4
        if J == 6: E(f"v_fmac_f32 v{SUM+js}, v{D+js}, v{w+js}")
        else: E(f"v_fmac_f32 v{SUM+js}, v{D+4*js+js}, v{w}")
        return 1
    def mm(js, I, J):
        d = D + 4*js
        E(f"v_mfma_f32_16x16x32_bf16 v[{d}:{d+3}], v[{F(js,I,0)}:{F(js,I,0)+3}], v[{F(js,J,0)}:{F(js,J,0)+3}], 0")
        E(f"v_mfma_f32_16x16x32_bf16 v[{d}:{d+3}], v[{F(js,I,1)}:{F(js,I,1)+3}], v[{F(js,J,1)}:{F(js,J,1)+3}], v[{d}:{d+3}]")
    def tiles(tl):
        for (I, J) in tl:
            w = wread(I, J)
            pend = state['pend']
            if pend is not None: g.wait_ds(('w', pend[0], pend[1]))
            if pend is not None and pend[:2] == (6, 6):
                E("s_nop 7")
                for js in range(4): fm(js, pend)
                pend = None
            for js in range(4):
                if pend is not None: fm(js, pend)
                if (I, J) != (6, 6) or js == 0: mm(js, I, J)
            E("s_nop 1")
            state['pend'] = (I, J, w)
    def flush():
        pend = state['pend']
        g.wait_ds(('w', pend[0], pend[1]))
        E("s_nop 3")
        for js in range(4):
            fm(js, pend)
            if js < 3: E("s_nop 1")
        state['pend'] = None
    OFFS = [[232, 233, 234, 235, 236, 237], [248, 249, 251, 252, 253, 255]]
    def dma_items(t, off):
        s = t % 3; it = []
        def mkB(ii):
            def w():
                r = PFR[(t, ii)]
                if o.get('bskip') == 2: return
                g.ds(f"ds_write_b128 v254, v[{r}:{r+3}] offset:{s*16384 + ii*1024}", 'bw')
            if (t, ii) in PFR: w.vm = 0; return w
            def f():
                E(f"s_add_u32 m0, s75, {s*16384 + ii*1024}")
                E(f"s_add_u32 s70, s{SB(t)}, {t*32768 + ii*2048}")
                E(f"buffer_load_dwordx4 v{VB0 if ii < 2 else VB1}, s[32:35], s70 offen{o.get('bfl','')} lds")
            return f
        def mkA(j):
            def f():
                if j < 4: E(f"s_add_u32 m0, s73, {AP(s) + j*1024}"); E("s_nop 0")
                elif j == 4: E(f"s_add_u32 m0, s74, {AP(s)}"); E("s_nop 0")
                else: E(f"s_add_u32 m0, s74, {AP(s) + 1024}"); E("s_mov_b32 exec_hi, 0")
                E(f"buffer_load_dwordx4 v{off[j]}, s[28:31], 0 offen{o.get('afl','')} lds")
                if j == 5: E("s_mov_b32 exec_hi, -1")
            return f
        Bs = [mkB(i) for i in range(4)]; As = [mkA(j) for j in range(6)]
        if o.get('b2e') and t == 2: Bs = []
        if o.get('pskip') and t >= o['pskip']: As = As[:4]
        Bs = [x for x in Bs if not hasattr(x, 'vm')] + [x for x in Bs if hasattr(x, 'vm')]
        if o.get('wfirst'): return [x for x in Bs if hasattr(x, 'vm')] + As + [x for x in Bs if not hasattr(x, 'vm')]
        if o['dord'] == 0: return Bs + As
        if o['dord'] == 1: return As + Bs
        return [As[0], Bs[0], As[1], Bs[1], As[2], Bs[2], As[3], Bs[3], As[4], As[5]]
    def rdidx2(t, off):
        if o.get('nov', 0) >= 2 and t > 4: off = [D+i for i in range(6)]
        else: idxadj(t)
        for j in range(4): g.ds(f"ds_read_b32 v{off[j]}, v{VIA} offset:{j*1024 + 4*t}", 'idx')
        g.ds(f"ds_read_b32 v{off[4]}, v{VIP0} offset:{4*t}", 'idx')
        g.ds(f"ds_read_b32 v{off[5]}, v{VIP1} offset:{4*t}", 'idx')
    def cvidx2(off):
        for j in range(4): E(f"v_lshl_add_u32 v{off[j]}, v{off[j]}, 7, v{VCA0 + (j&1)}")
        for j in (4, 5): E(f"v_lshl_add_u32 v{off[j]}, v{off[j]}, 7, v{VP16}")
    def tile_items(tl):
        it = []
        for (I, J) in tl:
            loc = {}
            def head(I=I, J=J, loc=loc):
                loc['w'] = wread(I, J)
                pend = state['pend']
                if pend is not None: g.wait_ds(('w', pend[0], pend[1]))
                if pend is not None and pend[:2] == (6, 6):
                    E("s_nop 7")
                    for js in range(4): fm(js, pend)
                    pend = None
                loc['pend'] = pend
            def part(js, I=I, J=J, loc=loc, head=head):
                if js == 0: head()
                if loc['pend'] is not None: fm(js, loc['pend'])
                if (I, J) != (6, 6) or js == 0: mm(js, I, J)
                if js == 3:
                    E("s_nop 1"); state['pend'] = (I, J, loc['w'])
            for js in range(4): it.append(lambda js=js, part=part: part(js))
        return it
    for t in range(25):
        s = t % 3
        dm = dma_items(t+2, OFFS[t & 1]) if t + 2 <= 24 else []
        wk = []
        def frag(half, t=t, s=s):
            if t == 0:
                for js in (2*half, 2*half+1): E(f"v_xor_b32 v{D+js}, 64, v{VP+js}")
                for js in (2*half, 2*half+1):
                    m = 0x11111111 << js
                    E(f"s_mov_b32 exec_lo, {m:#x}"); E(f"s_mov_b32 exec_hi, {m:#x}")
                    g.ds(f"ds_read_b128 v[{F6}:{F6+3}], v{VP+js} offset:{AP(s)}", 'pf')
                    g.ds(f"ds_read_b128 v[{F6+4}:{F6+7}], v{D+js} offset:{AP(s)}", 'pf')
            else:
                b = (t-1) >> 2; u = (t-1) & 3
                m = 0x11111111 << u
                E(f"s_mov_b32 exec_lo, {m:#x}"); E(f"s_mov_b32 exec_hi, {m:#x}")
                for js in (2*half, 2*half+1):
                    f0 = F(js, b, 0); f1 = F(js, b, 1)
                    if o.get('nov'):
                        g.ds(f"ds_read_b128 v[{f0}:{f0+3}], v{VP+js} offset:{AP(s)}", 'pf')
                        g.ds(f"ds_read_b128 v[{f1}:{f1+3}], v{VP+js} offset:{AP(s)+64}", 'pf')
                        continue
                    E(f"v_xor_b32 v{f1}, 64, v{VP+js}")
                    g.ds(f"ds_read_b128 v[{f0}:{f0+3}], v{VP+js} offset:{AP(s)}", 'pf')
                    g.ds(f"ds_read_b128 v[{f1}:{f1+3}], v{f1} offset:{AP(s)}", 'pf')
            E("s_mov_b64 exec, -1")
        if t + 3 <= 24: wk.append(lambda t=t: rdidx2(t+3, OFFS[(t+1) & 1]))
        if not o['nofr']: wk.append(lambda: frag(0)); wk.append(lambda: frag(1))
        if not o['nopnn']: wk += tile_items(sched[t])
        if t + 3 <= 24:
            def cvl(t=t):
                g.wait_ds('idx')
                if o.get('nov', 0) < 2 or t + 3 <= 4: cvidx2(OFFS[(t+1) & 1])
            wk.append(cvl)
        if not o['il']:
            for f in dm + wk: f()
        else:
            lead = o['lead']; nd = len(dm); nw = len(wk)
            seq = dm[:lead]; rest = dm[lead:]
            k = 0
            for i, w in enumerate(wk):
                seq.append(w)
                tgt = ((i+1) * len(rest)) // nw if o['il'] == 1 else min(len(rest), (i+1)*o['il'] - (i+1))
                while k < tgt: seq.append(rest[k]); k += 1
            seq += rest[k:]
            for f in seq: f()
        g.wait_ds()
        if o.get('trace'):
            E(f"v_writelane_b32 v254, s38, {t}"); E(f"v_writelane_b32 v250, s40, {t}")
            if t: E(f"v_writelane_b32 v254, s42, {31+t}"); E(f"v_writelane_b32 v250, s46, {31+t}")
            E("s_memtime s[42:43]")
        if t < 24:
            E(f"s_waitcnt vmcnt({len([x for x in dm if not hasattr(x, 'vm')]) + (4 if t == 0 and o.get('b2e') == 2 else 0)})")
            if o.get('trace'): E("s_memtime s[46:47]")
            E("s_barrier")
            if t == 11 and not o.get('pst'): stamp(2)
            if o.get('trace'): E("s_memtime s[38:39]"); E("s_memrealtime s[40:41]")
    stamp(5 if o.get('pst') else 3)
    if o.get('trace'):
        E("s_memtime s[38:39]"); E("s_memrealtime s[40:41]"); E("s_waitcnt lgkmcnt(0)")
        E(f"v_writelane_b32 v254, s38, 25"); E(f"v_writelane_b32 v250, s40, 25")
        E("v_mbcnt_lo_u32_b32 v232, -1, 0"); E("v_mbcnt_hi_u32_b32 v232, -1, v232")
        E("s_lshl_b32 s70, s2, 9"); E("s_add_u32 s70, s70, 0x8010000"); E("v_lshlrev_b32 v233, 2, v232"); E("v_add_u32 v233, s70, v233")
        E("s_cmp_lg_u32 s69, 0"); E(f"s_cbranch_scc1 {P}NOTR")
        E("global_store_dword v233, v254, s[22:23]"); E("global_store_dword v233, v250, s[22:23] offset:256")
        g.L(f"{P}NOTR")
        E("s_nop 4"); E("v_mov_b32 v250, v232")
    if not o['nopnn']: tiles(sched[25]); flush()
    E("s_nop 1")
    for sh in (1, 2, 4, 8):
        for js in range(4): E(f"v_add_f32_dpp v{SUM+js}, v{SUM+js}, v{SUM+js} row_shr:{sh} row_mask:0xf bank_mask:0xf bound_ctrl:1")
    E("v_lshrrev_b32 v248, 4, v250"); E("v_lshlrev_b32 v248, 6, v248")
    E("s_lshl_b32 s70, s69, 4"); E(f"s_add_u32 s70, s70, {RED + 2048}")
    E("v_add_u32 v248, s70, v248")
    E("s_mov_b32 exec_lo, 0x80008000"); E("s_mov_b32 exec_hi, 0x80008000")
    E(f"ds_write_b128 v248, v[{SUM}:{SUM+3}]")
    E("s_mov_b64 exec, -1")
    E("s_waitcnt lgkmcnt(0)")
    if not o.get('pst'): stamp(4)
    E("s_barrier")
    if stamps:
        if not o.get('pst'): stamp(5)
        g.srd(44, 20, 256)
        E("s_cmp_eq_u32 s69, 0"); E(f"s_cbranch_scc1 {P}STAMP")
    E("s_endpgm")
    def nonce_wait(lbl, vr):
        E(f"v_readfirstlane_b32 s78, v{vr}")
        E("s_cmp_lg_u32 s78, 0"); E(f"s_cbranch_scc1 {lbl}_x")
        E(f"s_mov_b32 s71, {SPIN}"); E("s_lshl_b32 s79, s64, 2")
        g.L(lbl)
        E(f"buffer_load_dword v{vr}, off, s[44:47], s79 offset:128 sc0 sc1")
        E("s_waitcnt vmcnt(0)")
        E(f"v_readfirstlane_b32 s78, v{vr}")
        E("s_sub_u32 s71, s71, 1"); E("s_cmp_eq_u32 s71, 0"); E(f"s_cbranch_scc1 {lbl}_x")
        E("s_cmp_eq_u32 s78, 0"); E(f"s_cbranch_scc1 {lbl}")
        g.L(lbl + "_x")
    g.q = []; role['L'] = False
    g.L(f"{P}CSTART")
    if o['prioC']: E(f"s_setprio {o['prioC']}")
    VA = 128; VBR = 130; VX = 134; CLR = 136; RDY = 150
    def FA(ks, st): return 64 + ks*32 + st*4
    def FB(ks, nt): return 64 + ks*32 + 16 + nt*4
    def ACC(nt, st): return (st*4 + nt)*4
    E("s_sub_u32 s72, s69, 4")
    if o.get('cpf'):
        E("s_getpc_b64 s[76:77]"); g.L(f"{P}PC")
        E(f"s_sub_u32 s76, s76, {P}PC-{name}"); E("s_subb_u32 s77, s77, 0")
        E("s_lshr_b32 s70, s2, 3"); E("s_lshl_b32 s70, s70, 2"); E("s_add_u32 s70, s70, s72"); E("s_lshl_b32 s70, s70, 9")
        E("v_lshlrev_b32 v240, 6, v250"); E("v_add_u32 v240, s70, v240")
        E(f"v_min_u32 v240, {P}END-{name}, v240")
        E("v_mov_b32 v241, s77"); E("v_add_co_u32 v240, vcc, s76, v240"); E("v_addc_co_u32 v241, vcc, 0, v241, vcc")
        E("s_mov_b64 exec, 0xff")
        E("global_load_dword v242, v[240:241], off")
        E("s_mov_b64 exec, -1")
    E("s_and_b32 s73, s72, 1"); E("s_lshr_b32 s74, s72, 1")
    E("v_lshlrev_b32 v254, 4, v250")
    E("s_mul_i32 s70, s72, 5120")
    E("s_memrealtime s[96:97]")
    E("s_waitcnt lgkmcnt(0)")
    if o.get('tlb', 0) & 2:
        g.srd(60, 6, 12800000)
        E("s_lshl_b32 s71, s72, 22"); E("v_lshlrev_b32 v243, 16, v250")
        E("buffer_load_dword v244, v243, s[60:63], s71 offen")
    g.srd(36, 8, 20000)
    for i in range(5):
        E(f"s_add_u32 m0, s70, {AP(2) + i*1024}"); E(f"s_add_u32 s71, s70, {i*1024}")
        E("buffer_load_dwordx4 v254, s[36:39], s71 offen lds")
    g.srd(40, 22, WSREC); g.srd(44, 20, 256)
    if o.get('wso'): E(f"s_add_u32 s40, s40, {o['wso'] << 20}"); E("s_addc_u32 s41, s41, 0")
    if o.get('tlb', 0) & 4:
        g.srd(60, 6, 12800000)
        E("s_lshl_b32 s71, s72, 22"); E("v_lshlrev_b32 v243, 16, v250")
        E("buffer_load_dword v244, v243, s[60:63], s71 offen")
    load_b1w2(248)
    ntpf = 0
    def setexec(m): E(f"s_mov_b32 exec_lo, {m & 0xffffffff:#x}"); E(f"s_mov_b32 exec_hi, {m >> 32:#x}")
    if o.get('tpf'):
        sh_ = {64: 6, 128: 7}[o['tpf']]; per = 64 << sh_
        nt_ = -(-12800000 // (per*1024)); nw_ = -(-3276800 // (per*1024))
        E("s_lshl_b32 s70, s2, 2"); E("s_add_u32 s70, s70, s72")
        E(f"v_lshlrev_b32 v243, {sh_}, v250")
        if o.get('tpw', 1):
            g.srd(60, 10, 3276800)
            E(f"s_mul_i32 s71, s70, {3276800 // 1024}")
            if per > 3200: setexec((1 << (3200 >> sh_)) - 1)
            E("buffer_load_dword v244, v243, s[60:63], s71 offen"); ntpf += 1
            E("s_mov_b64 exec, -1")
        if o.get('tpt', 1):
            g.srd(56, 6, 12800000)
            E(f"s_mul_i32 s71, s70, {12800}")
            n = 12800 >> sh_
            for i in range(-(-n // 64)):
                if n - 64*i < 64: setexec((1 << (n - 64*i)) - 1)
                E(f"buffer_load_dword v244, v243, s[56:59], s71 offen"); ntpf += 1
                E(f"s_add_u32 s71, s71, {per}")
            E("s_mov_b64 exec, -1")
    E("v_and_b32 v140, 15, v250"); E("v_lshrrev_b32 v141, 4, v250"); E("v_bfe_u32 v142, v250, 1, 3")
    E("v_xor_b32 v142, v141, v142"); E("v_lshlrev_b32 v142, 4, v142"); E("v_lshl_add_u32 v142, v140, 7, v142")
    E("s_lshl_b32 s70, s73, 13"); E(f"v_add_u32 v{VA}, s70, v142"); E(f"v_xor_b32 v{VA+1}, 64, v{VA}")
    E("v_bfe_u32 v142, v250, 2, 2")
    E("v_lshl_add_u32 v143, v141, 3, v142"); E("v_lshlrev_b32 v143, 8, v143")
    E("v_bfe_u32 v144, v250, 1, 1"); E("s_lshl_b32 s70, s74, 3"); E("v_or_b32 v144, s70, v144")
    E("v_lshlrev_b32 v142, 2, v142"); E("v_xor_b32 v144, v144, v142")
    E("v_and_b32 v142, 1, v141"); E("v_lshlrev_b32 v142, 1, v142"); E("v_xor_b32 v144, v144, v142")
    E("v_lshl_add_u32 v143, v144, 4, v143")
    E("v_and_b32 v144, 1, v250"); E("v_lshl_add_u32 v143, v144, 3, v143")
    for nt in range(4):
        E(f"v_xor_b32 v142, {nt*32}, v143"); E(f"v_add_u32 v{VBR+nt}, {BS0}, v142")
    E(f"v_lshlrev_b32 v{VX}, 4, v250")
    E("v_lshrrev_b32 v140, 4, v250")
    E("v_bfe_u32 v141, v250, 2, 2"); E("v_mul_u32_u24 v141, 25, v141")
    E("v_and_b32 v142, 3, v250")
    E("v_add_u32 v144, v141, v142")
    E("v_mul_u32_u24 v143, 5000, v140"); E(f"v_add_u32 v143, {AP(2)}, v143")
    E("v_lshl_add_u32 v147, v141, 1, v143")
    E("v_mul_u32_u24 v141, 50, v140"); E(f"v_add_u32 v141, {AP(2)}, v141")
    def var(J): return 1 if not RB else (0 if J == 0 else 2 if J == 5 else 1)
    JL = {0: 152, 1: 153, 2: 154}; BA1 = {0: 155, 1: 145, 2: 156}; BA2 = {0: 157, 1: 146, 2: 158}
    if RB:
        E(f"s_mul_i32 s70, s94, {RB}"); E(f"s_mul_i32 s71, s99, {RB}")
        lo = {1: 0x55555555, 2: 0x33333333}[RB]; fa = {1: 0x11111111, 2: 0x33333333}[RB]; fd = {1: 0x88888888, 2: 0xcccccccc}[RB]
        E("v_add_u32 v159, s71, v144"); E("v_subrev_u32 v160, s71, v144")
        E(f"s_mov_b32 vcc_lo, {lo:#x}"); E(f"s_mov_b32 vcc_hi, {lo:#x}")
        E(f"v_cndmask_b32 v{JL[1]}, v160, v159, vcc")
        E("v_add_u32 v159, s70, v144"); E("v_subrev_u32 v160, s70, v144")
        E(f"s_mov_b32 vcc_lo, {fa:#x}"); E(f"s_mov_b32 vcc_hi, {fa:#x}")
        E(f"v_cndmask_b32 v{JL[0]}, v{JL[1]}, v159, vcc")
        E(f"s_mov_b32 vcc_lo, {fd:#x}"); E(f"s_mov_b32 vcc_hi, {fd:#x}")
        E(f"v_cndmask_b32 v{JL[2]}, v{JL[1]}, v160, vcc")
    else: E(f"v_mov_b32 v{JL[1]}, v144")
    E("s_movk_i32 s75, 200")
    for vr in ((0, 1, 2) if RB else (1,)):
        E(f"v_lshl_add_u32 v{BA1[vr]}, v{JL[vr]}, 1, v143")
        E(f"v_mad_i32_i24 v{BA2[vr]}, v{JL[vr]}, s75, v141")
    E(f"v_add_u32 v148, {WP}, v254")
    E(f"v_lshlrev_b32 v149, 2, v250"); E(f"v_add_u32 v149, {WP6}, v149")
    wb_ = {}
    if RB:
        E(f"s_mul_i32 s75, s94, {200*RB}"); E(f"s_mul_i32 s76, s99, {200*RB}"); E(f"s_mul_i32 s77, s94, {2*RB}"); E(f"s_mul_i32 s78, s99, {2*RB}")
        keys = []
        for J in range(6):
            for I in range(J+1):
                for k in range(4):
                    c = cls(1+4*I+k)
                    for w in ((1, 2) if I < J else (1,)):
                        if (w, var(J), c) not in keys: keys.append((w, var(J), c))
        nx = 64
        for (w, vr, c) in keys:
            ca, cb = CV[c]; sr = (75 if ca else 76) + (2 if w == 2 else 0)
            src = (BA1 if w == 1 else BA2)[vr]
            if ca + cb > 0: E(f"v_add_u32 v{nx}, s{sr}, v{src}")
            else: E(f"v_subrev_u32 v{nx}, s{sr}, v{src}")
            wb_[(w, vr, c)] = nx; nx += 1
        assert nx <= 128
    def B1(tr, J): return BA1[var(J)] if cls(tr) == '0' else wb_[(1, var(J), cls(tr))]
    def B2(tr, J): return BA2[var(J)] if cls(tr) == '0' else wb_[(2, var(J), cls(tr))]
    for r in range(56): E(f"v_mov_b32 v{r}, 0")
    E(f"s_waitcnt vmcnt({(9 if o.get('tlb', 0) & 4 else 8) + ntpf})")
    E("s_barrier")
    if 'wpf' in o:
        T0, n = o['wpf']
        g.srd(60, 10, 3276800)
        E("s_lshr_b32 s70, s2, 3"); E("s_lshl_b32 s70, s70, 2"); E("s_add_u32 s70, s70, s72")
        E("s_lshr_b32 s71, s70, 5"); E("s_mul_i32 s71, s71, 819200"); E("s_and_b32 s70, s70, 31"); E("s_lshl_b32 s70, s70, 10")
        E("s_add_u32 s70, s70, s71"); E(f"s_add_u32 s70, s70, {T0*32768}")
        E("v_lshrrev_b32 v243, 4, v250"); E("v_lshlrev_b32 v243, 15, v243"); E("v_and_b32 v244, 15, v250"); E("v_lshl_add_u32 v243, v244, 6, v243")
        for i in range(n):
            E(f"buffer_load_dword v{164+i}, v243, s[60:63], s70 offen")
            if i < n-1: E("s_add_u32 s70, s70, 131072")
    if o.get('rpf'):
        g.srd(48, 6, 12800000)
        E("v_and_b32 v244, 15, v250"); E("s_lshl_b32 s70, s66, 2"); E("s_add_u32 s70, s70, s72"); E("s_lshl_b32 s70, s70, 11")
        E(f"s_add_u32 s70, s70, {IDXA}"); E("v_lshlrev_b32 v244, 7, v244"); E("v_add_u32 v244, s70, v244")
        E("v_bfe_u32 v245, v250, 4, 1"); E("v_lshlrev_b32 v245, 6, v245")
    big = [(I, J) for J in range(6) for I in range(J+1)] + [(6, 6)]
    for cw in range(4):
        if cw < 3: E(f"s_cmp_lg_u32 s72, {cw}"); E(f"s_cbranch_scc1 {P}WB{cw+1}")
        mine = [(n, t) for n, t in enumerate(big) if n % 4 == cw]
        small = [J for J in range(6) if cw >= 2 and J % 2 == cw % 2]
        r = 0; plan = []
        for n, (I, J) in mine:
            if I == 6:
                E(f"ds_read_u16_d16_hi v{r}, v147"); plan.append((n, I, J, r)); r += 1; continue
            for k in range(4): E(f"ds_read_u16_d16_hi v{r+k}, v{B1(1+4*I+k, J)} offset:{200*(1+4*I+k) + 2*(1+4*J)}")
            if I < J:
                for k in range(4): E(f"ds_read_u16_d16_hi v{r+4+k}, v{B2(1+4*I+k, J)} offset:{200*(1+4*J) + 2*(1+4*I+k)}")
            plan.append((n, I, J, r)); r += 8
        sp = []
        for J in small:
            E(f"ds_read_u16_d16_hi v{r}, v{B1(0, J)} offset:{2*(1+4*J)}"); E(f"ds_read_u16_d16_hi v{r+1}, v{B2(0, J)} offset:{200*(1+4*J)}")
            sp.append((J, r)); r += 2
        assert r <= 56
        E("s_waitcnt lgkmcnt(0)")
        for n, I, J, r in plan:
            if I == 6:
                for k in range(4):
                    m = 0x11111111 << k
                    E(f"s_mov_b32 vcc_lo, {m:#x}"); E(f"s_mov_b32 vcc_hi, {m:#x}")
                    E(f"v_cndmask_b32 v{60+k}, 0, v{r}, vcc")
                E(f"ds_write_b128 v148, v[60:63] offset:{n*1024}")
                continue
            if I < J:
                for k in range(4): E(f"v_add_f32 v{r+k}, v{r+k}, v{r+4+k}")
            E(f"ds_write_b128 v148, v[{r}:{r+3}] offset:{n*1024}")
        for J, r in sp:
            E(f"v_add_f32 v{r}, v{r}, v{r+1}"); E(f"ds_write_b32 v149, v{r} offset:{J*256}")
        if cw < 3: E(f"s_branch {P}WBDONE"); g.L(f"{P}WB{cw+1}")
    g.L(f"{P}WBDONE")
    E("s_waitcnt lgkmcnt(0)")
    E("s_barrier")
    stamp(1)
    def Rl(s, ks):
        la = [f"ds_read_b128 v[{FA(ks,st)}:{FA(ks,st)+3}], v{VA+ks} offset:{AP(s) + st*2048}" for st in range(4)]
        lb = [[f"ds_read_b64_tr_b16 v[{FB(ks,nt)+2*hf}:{FB(ks,nt)+2*hf+1}], v{VBR+nt} offset:{s*16384 + ks*8192 + hf*1024}" for hf in range(2)] for nt in range(4)]
        if o['nocr'] == 1: return []
        return [la[0]] + lb[0] + [la[1]] + lb[1] + [la[2]] + lb[2] + [la[3]] + lb[3]
    MORD = [(0,0),(0,1),(1,0),(1,1),(0,2),(1,2),(2,0),(2,1),(2,2),(0,3),(1,3),(2,3),(3,0),(3,1),(3,2),(3,3)]
    mo = o.get('mord', 0)
    if mo == 1: MORD = [(nt, st) for nt in range(4) for st in range(4)]
    if mo == 2: MORD = [(nt, st) for st in range(4) for nt in range(4)]
    if mo == 3: MORD = [(nt, st if nt % 2 == 0 else 3-st) for nt in range(4) for st in range(4)]
    if mo == 4: MORD = [(nt if st % 2 == 0 else 3-nt, st) for st in range(4) for nt in range(4)]
    if mo == 5: MORD = [((i + (i >> 2)) & 3, i & 3) for i in range(16)]
    def Ml(ks, first=False):
        l = []
        for nt, st in MORD:
            a = ACC(nt, st)
            l.append(f"v_mfma_f32_16x16x32_bf16 v[{a}:{a+3}], v[{FB(ks,nt)}:{FB(ks,nt)+3}], v[{FA(ks,st)}:{FA(ks,st)+3}], " + ("0" if first else f"v[{a}:{a+3}]"))
        if o['nocm']: return ["s_nop 0"]*16
        if o.get('m32'):
            l = []
            for kh, i, j in [(0,0,0),(1,0,0),(0,0,1),(0,1,0),(0,1,1),(1,0,1),(1,1,0),(1,1,1)]:
                a = (2*i + j)*16
                l.append(f"v_mfma_f32_32x32x16_bf16 v[{a}:{a+15}], v[{FB(ks,2*j+kh)}:{FB(ks,2*j+kh)+3}], v[{FA(ks,2*i+kh)}:{FA(ks,2*i+kh)+3}], " + ("0" if first and kh == 0 else f"v[{a}:{a+15}]"))
                l.append("s_nop 0")
        return l
    def inter(ms, rs, tag):
        for i, m in enumerate(ms):
            E(m)
            if i < len(rs): g.ds(rs[i], tag)
    for t in range(25):
        s = t % 3
        if t == 0:
            for x in Rl(s, 0): g.ds(x, 0)
        else: inter(Ml(1), Rl(s, 0), 0)
        if t == 1:
            E("s_or_b32 s70, s72, s67"); E("s_cmp_lg_u32 s70, 0"); E(f"s_cbranch_scc1 {P}NOLEAD")
            E("s_lshl_b32 s70, s64, 2")
            E("s_or_b32 s96, s96, 1"); E(f"v_mov_b32 v{RDY}, s96")
            E("s_mov_b64 exec, 1")
            E(f"buffer_store_dword v{RDY}, off, s[44:47], s70 offset:128 sc0 sc1")
            E("s_mov_b64 exec, -1")
            g.L(f"{P}NOLEAD")
        if t == o.get('tx', 12) and o.get('tlb', 0) & 1:
            E("s_lshl_b32 s70, s64, 18"); E("s_lshl_b32 s71, s73, 17"); E("s_add_u32 s71, s70, s71")
            E("s_lshl_b32 s75, s65, 13"); E("s_add_u32 s71, s71, s75"); E("s_lshl_b32 s75, s66, 12"); E("s_add_u32 s71, s71, s75")
            E("v_lshlrev_b32 v243, 15, v250"); E("v_add_u32 v243, s71, v243")
            E("s_lshl_b32 s71, s67, 15"); E("s_add_u32 s71, s70, s71"); E("s_lshl_b32 s75, s72, 11"); E("s_add_u32 s71, s71, s75")
            E("s_sub_u32 s71, s71, 32768")
            E("v_lshlrev_b32 v245, 13, v250"); E("v_add_u32 v245, s71, v245")
            E("v_cmp_lt_u32 vcc, 3, v250"); E("v_cndmask_b32 v243, v243, v245, vcc")
            E("s_lshl_b32 s71, s64, 10"); E(f"s_add_u32 s71, s71, {FLOFF}"); E("v_mov_b32 v245, s71")
            E("v_cmp_lt_u32 vcc, 7, v250"); E("v_cndmask_b32 v243, v243, v245, vcc")
            E("s_mov_b64 exec, 0x1ff")
            E("buffer_load_dword v244, v243, s[40:43], 0 offen sc1")
            g.srd(56, 18, 8192)
            E("s_mov_b64 exec, 1")
            E("buffer_load_dword v246, off, s[56:59], 0")
            E("s_mov_b64 exec, -1")
        if 'snap' in o:
            t0, per = o['snap']
            if t == t0:
                E("s_lshl_b32 s48, s64, 18"); E("s_lshl_b32 s71, s67, 15"); E("s_add_u32 s48, s48, s71")
                E("s_lshl_b32 s71, s72, 11"); E("s_add_u32 s48, s48, s71")
                for qq in range(1, 4): E(f"s_add_u32 s{48+qq}, s48, {qq*8192}")
            for n in range(8):
                if t0 + n//per == t:
                    qq, cp = n >> 1, n & 1
                    E(f"buffer_load_dwordx4 v[{164+4*n}:{164+4*n+3}], v{VX}, s[40:43], s{48+qq} offen offset:{cp*1024} sc1")
        if t == 24 and o.get('tag'): tailtag.tag_prep(g, o, P, nonce_wait, RDY)
        if t == o['chk']:
            E("s_lshl_b32 s79, s64, 2")
            E(f"buffer_load_dword v{RDY+2}, off, s[44:47], s79 offset:128 sc0 sc1")
        pf = o.get('rpf') and (t + o['rpf'] <= 24)
        pl = ([t + o['rpf']] if t else list(range(2, o['rpf'] + 1))) if pf else []
        for n, tt in enumerate(pl): g.ds(f"ds_read_b32 v{172+n}, v244 offset:{4*tt}", 0)
        g.wait_ds(0)
        for n, tt in enumerate(pl): E(f"v_lshl_add_u32 v{172+n}, v{172+n}, 7, v245")
        if pl and o.get('rpm', 16) < 64: E(f"s_mov_b64 exec, {(1 << o.get('rpm', 16)) - 1:#x}")
        for n, tt in enumerate(pl): E(f"buffer_load_dword v{180}, v{172+n}, s[48:51], 0 offen")
        if pl and o.get('rpm', 16) < 64: E("s_mov_b64 exec, -1")
        inter(Ml(0, t == 0), Rl(s, 1), 1)
        g.wait_ds()
        if t < 24: E("s_barrier")
        if t == 11: stamp(2)
    if o.get('tag'):
        tailtag.tail(g, o, P, ACC, FA, FB, VX, B1R, W2R, stamp)
    else:
        for m in Ml(1): E(m)
        stamp(3)
        E("s_lshl_b32 s77, s64, 18"); E("s_lshl_b32 s70, s73, 17"); E("s_add_u32 s77, s77, s70")
        E("s_lshl_b32 s70, s65, 13"); E("s_add_u32 s77, s77, s70")
        E("s_lshl_b32 s70, s66, 12"); E("s_add_u32 s77, s77, s70")
        E("s_lshl_b32 s70, s74, 11"); E("s_add_u32 s77, s77, s70")
        def xstores(fl):
            for st in range(4):
                if st: E("s_add_u32 s77, s77, 32768")
                for cp in range(2):
                    p = 64 + (st*2+cp)*4
                    for h in range(2):
                        a = ACC(2*cp+h, st)
                        E(f"v_cvt_pk_bf16_f32 v{p+2*h}, v{a}, v{a+1}"); E(f"v_cvt_pk_bf16_f32 v{p+2*h+1}, v{a+2}, v{a+3}")
                    if o.get('xhalf') and cp == 1: continue
                    E(f"buffer_store_dwordx4 v[{p}:{p+3}], v{VX}, s[40:43], s77 offen offset:{cp*1024}{fl}")
        E("s_lshl_b32 s75, s64, 1"); E("s_add_u32 s75, s75, s66"); E("s_lshl_b32 s75, s75, 2"); E("s_add_u32 s75, s75, s72")
        E("s_lshl_b32 s75, s75, 7"); E("s_lshl_b32 s71, s65, 2"); E("s_add_u32 s75, s75, s71"); E(f"s_add_u32 s75, s75, {FLOFF}")
        E("s_waitcnt vmcnt(0)")
        xstores(o.get('xfl', " sc0 sc1"))
        nonce_wait(f"{P}NWC", RDY+2)
        E("s_nop 0"); E(f"v_mov_b32 v{RDY}, s78")
        E("s_waitcnt vmcnt(0)")
        E("s_mov_b64 exec, 1")
        E(f"buffer_store_dword v{RDY}, off, s[40:43], s75{o.get('ffl', ' sc0 sc1')}")
        E("s_mov_b64 exec, -1")
        if not o.get('st4'): stamp(4)
        E("s_lshl_b32 s77, s64, 18"); E("s_lshl_b32 s71, s67, 15"); E("s_add_u32 s77, s77, s71")
        E("s_lshl_b32 s71, s72, 11"); E("s_add_u32 s77, s77, s71")
        E("v_mov_b32 v200, 0")
        E(f"s_mov_b32 s71, {SPIN}")
        E("s_lshl_b32 s70, s64, 1"); E("s_lshr_b32 s75, s72, 1"); E("s_add_u32 s70, s70, s75"); E("s_lshl_b32 s70, s70, 2")
        E("s_add_u32 s70, s70, s66"); E("s_and_b32 s75, s72, 1"); E("s_lshl_b32 s75, s75, 1"); E("s_add_u32 s70, s70, s75")
        E("s_lshl_b32 s70, s70, 7"); E(f"s_add_u32 s70, s70, {FLOFF}")
        E(f"buffer_load_dwordx4 v[204:207], off, s[40:43], s70{o['pfl']}")
        g.srd(56, 18, 8192)
        E("s_mov_b32 s79, 0xffff0000")
        for k in range(8):
            E(f"v_lshlrev_b32 v{2*k}, 16, v{B1R+k}"); E(f"v_and_b32 v{2*k+1}, s79, v{B1R+k}")
            E(f"v_lshlrev_b32 v{16+2*k}, 16, v{W2R+k}"); E(f"v_and_b32 v{16+2*k+1}, s79, v{W2R+k}")
        g.srd(60, 16, 2)
        E("v_mov_b32 v96, 0")
        for qq in range(1, 4): E(f"s_add_u32 s{73+qq}, s77, {qq*8192}")
        E("v_mov_b32 v97, 0xbdd2d3e8")
        if o.get('noflag'): E(f"s_branch {P}POLLED")
        E(f"s_branch {P}POLLT")
        g.L(f"{P}POLL")
        E(f"buffer_load_dwordx4 v[204:207], off, s[40:43], s70{o['pfl']}")
        g.L(f"{P}POLLT")
        E("s_sub_u32 s71, s71, 1"); E("s_cmp_eq_u32 s71, 0"); E(f"s_cbranch_scc1 {P}POLLED")
        E("s_waitcnt vmcnt(0)")
        for k in range(4): E(f"v_xor_b32 v{204+k}, s78, v{204+k}")
        E("v_or3_b32 v204, v204, v205, v206"); E("v_or_b32 v204, v204, v207")
        E("v_cmp_ne_u32 vcc, 0, v204"); E(f"s_cbranch_vccnz {P}POLL")
        g.L(f"{P}POLLED")
        if o.get('st4'): stamp(4)
        for qq in range(4):
            for cp in range(2):
                r = 32 + 8*qq + 4*cp
                E(f"buffer_load_dwordx4 v[{r}:{r+3}], v{VX}, s[40:43], s{73+qq if qq else 77} offen offset:{cp*1024}{o['lfl']}")
        E("buffer_load_short_d16_hi v96, v200, s[60:63], 0 offen")
        for qq in range(4):
            E(f"s_waitcnt vmcnt({7 - 2*qq})")
            if qq == 3: stamp(5)
            for k in range(8):
                E(f"v_lshlrev_b32 v{64+2*k}, 16, v{32+8*qq+k}"); E(f"v_and_b32 v{65+2*k}, s79, v{32+8*qq+k}")
            for k in range(16): E(f"v_add_f32 v{k}, v{k}, v{64+k}")
    N = 16
    for k in range(N): E(f"v_mul_f32 v{64+k}, v{k}, v{k}")
    for k in range(N): E(f"v_fmaak_f32 v{64+k}, v{64+k}, v97, 0xc0135761")
    for k in range(N): E(f"v_mul_f32 v{64+k}, v{64+k}, v{k}")
    for k in range(N): E(f"v_exp_f32 v{64+k}, v{64+k}")
    for k in range(N): E(f"v_mul_f32 v{k}, v{k}, v{16+k}")
    for k in range(N): E(f"v_add_f32 v{64+k}, 1.0, v{64+k}")
    for k in range(N): E(f"v_rcp_f32 v{64+k}, v{64+k}")
    E("s_lshl_b32 s70, s72, 8"); E(f"s_add_u32 s70, s70, {RED}")
    E("v_lshlrev_b32 v98, 2, v250"); E("v_add_u32 v99, s70, v98")
    for k in range(4): E(f"v_mul_f32 v{80+k}, v{k}, v{64+k}")
    for k in range(4, N): E(f"v_fmac_f32 v{80+(k&3)}, v{k}, v{64+k}")
    E("v_add_f32 v80, v80, v81"); E("v_add_f32 v82, v82, v83"); E("v_add_f32 v80, v80, v82")
    E("ds_write_b32 v99, v80")
    E("s_waitcnt lgkmcnt(0)")
    E("s_barrier")
    E("s_cmp_lg_u32 s72, 0"); E(f"s_cbranch_scc1 {P}END")
    E(f"v_add_u32 v98, {RED}, v98")
    for w in range(4): E(f"ds_read_b32 v{w}, v98 offset:{w*256}")
    E("ds_read_b32 v4, v98 offset:2048")
    E("s_lshl_b32 s70, s67, 4"); E("s_add_u32 s70, s70, s68"); E("s_lshl_b32 s70, s70, 1")
    E("v_lshlrev_b32 v43, 1, v250")
    E("s_waitcnt vmcnt(0) lgkmcnt(0)")
    E("v_add_f32 v0, v0, v1"); E("v_add_f32 v2, v2, v3"); E("v_add_f32 v0, v0, v4"); E("v_add_f32 v0, v0, v2")
    E("v_mov_b32 v1, v0"); E("s_nop 1"); E("v_permlane32_swap_b32 v0, v1"); E("s_nop 1"); E("v_add_f32 v0, v0, v1")
    E("v_mov_b32 v1, v0"); E("s_nop 1"); E("v_permlane16_swap_b32 v0, v1"); E("s_nop 1"); E("v_add_f32 v0, v0, v1")
    E(f"v_add_f32 v0, v0, v{222 if o.get('tag') else 96}")
    E("v_cvt_pk_bf16_f32 v0, v0, v0")
    E("s_mov_b64 exec, 0xffff")
    E("buffer_store_short v0, v43, s[56:59], s70 offen")
    if 'diag' in o:
        if o['diag'] == 6: E("s_waitcnt vmcnt(0)"); stamp(6)
        E("s_movk_i32 s75, 3000")
        if o['diag'] >= 10:
            a, b = {10: (1, 3), 11: (1, 2), 12: (3, 5)}[o['diag']]
            E("s_waitcnt lgkmcnt(0)")
            E(f"s_sub_u32 s76, s{80+2*b}, s{80+2*a}"); E("s_min_u32 s76, s76, 100000"); E("s_mul_i32 s76, s76, 6554"); E("s_lshr_b32 s76, s76, 16"); E("s_add_u32 s75, s75, s76")
        if 'dwg' in o: E(f"s_cmp_lg_u32 s2, {o['dwg']}"); E(f"s_cbranch_scc1 {P}END")
        g.L(f"{P}DIAG")
        E("s_memrealtime s[70:71]"); E("s_waitcnt lgkmcnt(0)")
        E(f"s_sub_u32 s70, s70, s{80+2*(o['diag'] if o['diag'] < 10 else 0)}"); E("s_cmp_lt_u32 s70, s75"); E(f"s_cbranch_scc1 {P}DIAG")
    if stamps:
        E("s_mov_b64 exec, -1")
        g.L(f"{P}STAMP")
        E("s_waitcnt vmcnt(0)")
        stamp(6)
        if stamps == 'dbg':
            E("s_waitcnt lgkmcnt(0)")
            E("s_mov_b64 exec, 1"); E("s_lshl_b32 s71, s69, 3"); E("v_mov_b32 v1, s71")
            E("s_not_b32 s71, s80"); E("v_mov_b32 v2, s71"); E("buffer_atomic_umax v2, v1, s[44:47], 0 offen sc1")
            for k in range(1, 7):
                E(f"v_mov_b32 v{2+k}, s{80+2*k}"); E(f"buffer_atomic_umax v{2+k}, v1, s[44:47], 0 offen offset:{4*k} sc1")
            E(f"v_mov_b32 v10, s80"); E(f"buffer_atomic_umax v10, v1, s[44:47], 0 offen offset:28 sc1")
            E("s_endpgm")
        E("s_mul_i32 s70, s2, 112"); E("s_add_u32 s70, s70, 0x8000000")
        E("s_cmp_eq_u32 s69, 0"); E("s_cselect_b32 s71, 56, 0"); E("s_add_u32 s70, s70, s71")
        E("v_mov_b32 v1, s70")
        E("s_waitcnt lgkmcnt(0)")
        if o.get('clk'):
            E("s_cmp_lg_u32 s69, 0"); E(f"s_cbranch_scc1 {P}NOCLK")
            for k in (2, 3, 1):
                E(f"s_sub_u32 s{80+2*k}, s{80+2*k}, s82"); E(f"s_add_u32 s{80+2*k}, s{80+2*k}, s80"); E(f"s_addc_u32 s{81+2*k}, s81, 0")
            g.L(f"{P}NOCLK")
        E("s_mov_b64 exec, 1")
        for k in range(7):
            E(f"v_mov_b32 v2, s{80+2*k}"); E(f"v_mov_b32 v3, s{81+2*k}")
            E(f"global_store_dwordx2 v1, v[2:3], s[22:23] offset:{8*k}"); E("s_nop 1")
    g.L(f"{P}END")
    E("s_endpgm")
    return "\n".join(x for x in g.l if x is not None) + "\n" + kd(name, vgpr=256)

def official(opts=None, path='standalone__deep_cross_pnn__recsys.s', stamps=False):
    asm = HDR + f"; @launch grid=(256,1,1) block=(512,1,1) lds={LDS}\n" + '.amdgcn_target "amdgcn-amd-amdhsa--gfx950"\n' + gen(NAME, stamps, opts)
    open(path, 'w').write(asm)

def bench(base, variants):
    hdr = []; ks = []
    for nm, op in variants:
        hdr.append(f"; @launch kernel={nm} grid=(256,1,1) block=(512,1,1) lds={LDS}")
        ks.append(gen(nm, True, op))
    asm = "\n".join(hdr) + '\n.amdgcn_target "amdgcn-amd-amdhsa--gfx950"\n' + "\n".join(ks)
    build(asm, base, variants[0][0])
    open(base + ".sh", "w").write("export NST=14\n" + "".join(f"timeout 60 ./run {os.path.basename(base)}.co 1 15 256 {nm}:256:512:{LDS}\n" for nm, _ in variants))

if __name__ == "__main__":
    official(path='v5.s')
    bench('g5', [("g5a_kernel", dict(st4=1))])
```

```python
import sys, os
sys.path.insert(0, 'bench')
from asmlib import kd, build
import tailtag
NAME = "standalone__deep_cross_pnn__recsys_kernel"
HDR = open('standalone__deep_cross_pnn__recsys.s.ref').read().split('; Override')[0]

def AP(s): return s*16384
BS0 = 65536
IDXA = AP(3)
IDXP = BS0 + 2*16384
WRAW = BS0 + 3*16384
RED = BS0 + 4*16384
WP = WRAW + 20480
WP6 = WP + 22*1024
LDSEND = WP6 + 6*256
LDS = 163840
assert LDSEND <= LDS
FLOFF = 8 << 20
WSREC = 16 << 20
SPIN = 200000

class G:
    def __init__(s): s.l = []; s.q = []; s.vq = []; s.vdone = 0; s.n = 0
    def E(s, x):
        s.l.append("    " + x)
        s.n += (int(x.split()[1]) + 1) if x.startswith("s_nop") else 1
    def L(s, x): s.l.append(x + ":")
    def ds(s, x, tag=None): s.E(x); s.q.append(tag)
    def wait_ds(s, tag=None):
        if tag is None:
            n = 0
            if not s.q: return
        else:
            c = [i for i, t in enumerate(s.q) if t == tag]
            if not c: return
            n = len(s.q) - 1 - max(c)
        s.E(f"s_waitcnt lgkmcnt({min(n,15)})")
        n = min(n, 15)
        s.q = s.q[len(s.q)-n:] if n else []
    def vm(s, x, tag=None): s.E(x); s.vq.append(tag)
    def wait_vm(s, tags):
        c = [i for i, t in enumerate(s.vq) if t in tags]
        if not c or max(c) < s.vdone: return
        n = len(s.vq) - 1 - max(c)
        assert n <= 63
        s.E(f"s_waitcnt vmcnt({n})"); s.vdone = max(c) + 1
    def since(s, mark, need):
        d = s.n - mark
        if d < need: s.E(f"s_nop {need - d - 1}")
    def srd(s, d, p, n):
        s.E(f"s_mov_b32 s{d}, s{p}"); s.E(f"s_mov_b32 s{d+1}, s{p+1}"); s.E(f"s_mov_b32 s{d+2}, {n}"); s.E(f"s_mov_b32 s{d+3}, 0x20000")

PSCH = {
    'A': lambda js, b: -1 if b < 2 or b == 6 else [6, 8, 10, 12][js] if b == 2 else [14, 16, 18, 20][js] if b == 3 else 22 if b == 4 else 23,
    'B': lambda js, b: -1 if b < 1 or b == 6 else 4*b - 2 + js,
    'C': lambda js, b: -1 if b < 2 or b == 6 else 22 if b < 4 else 23,
    'D': lambda js, b: -1 if b < 3 or b == 6 else [12, 14, 16, 18][js] if b == 3 else 22 if b == 4 else 23,
    'F': lambda js, b: -1 if b < 3 or b == 6 else 19 + b,
    'G': lambda js, b: -1 if b < 4 or b == 6 else 18 + b,
    'H': lambda js, b: -1 if b < 3 or b == 6 else 22 if b == 3 else 23 if js < 2 + 2*(b-4) and b == 4 or (b == 4) else 23,
    'E': lambda js, b: -1 if b < 2 or b == 6 else [4, 6, 8, 10][js] if b == 2 else [12, 13, 14, 15][js] if b == 3 else [16, 17, 18, 19][js] if b == 4 else 22,
}

def gen(name=NAME, stamps=False, opts=None):
    o = dict(prioL=0, prioC=2, lead=4, dord=1, nopnn=0, nocr=0, nocm=0, notr=0, chk=22, rot=1, rsel=0, sh=1, lfl=' sc1', pfl=' sc1',
             ns=4, cpf=1, nin=0, psch='A', tlag=3, t0=2, npre=99, ppst=3, lb=23)
    if opts: o.update(opts)
    NS = o['ns']; PD = NS - 1
    g = G(); E = g.E
    P = "L" + name.replace("_kernel", "")[-10:] + "_"
    role = dict(L=True)
    def stamp(k):
        if 'diag' in o:
            if o['diag'] >= 20:
                if k == 0 or not role['L']: E(f"s_memrealtime s[{80+2*k}:{81+2*k}]")
                return
            if o['diag'] >= 10:
                if k == 0: E("s_memrealtime s[80:81]")
                elif k in (1, 2, 3, 5) and not role['L']: E(f"s_memtime s[{80+2*k}:{81+2*k}]")
                return
            if k == o['diag'] and (k == 0 or not role['L']): E(f"s_memrealtime s[{80+2*k}:{81+2*k}]")
            return
        if stamps and o.get('clk') and role['L'] and k in (1, 2, 3): E(f"s_memtime s[{80+2*k}:{81+2*k}]")
        elif stamps: E(f"s_memrealtime s[{80+2*k}:{81+2*k}]")
    g.l.append(f".text\n.globl {name}\n.p2align 8\n.type {name},@function\n{name}:")
    stamp(0)
    E("s_cmp_ge_u32 s2, 256"); E(f"s_cbranch_scc1 {P}END")
    E("s_load_dwordx16 s[4:19], s[0:1], 0"); E("s_load_dwordx4 s[20:23], s[0:1], 64")
    E("v_lshrrev_b32 v1, 6, v0")
    E("s_and_b32 s64, s2, 7"); E("s_lshl_b32 s64, s64, 2")
    E("v_readfirstlane_b32 s69, v1")
    E("s_lshr_b32 s70, s2, 6"); E("s_add_u32 s64, s64, s70")
    E("s_lshr_b32 s67, s2, 3"); E("s_and_b32 s67, s67, 7")
    E("s_and_b32 s65, s67, 3"); E("s_lshr_b32 s66, s67, 2")
    E("s_lshl_b32 s68, s64, 7")
    RB = o['rot']
    def cls(t):
        if t == 0 or not RB: return '0'
        if t == 1: return 'A'
        if t == 24: return 'D'
        return 'B' if t & 1 else 'C'
    def fo(t): return 24 if t == 0 else t - 1
    E("v_and_b32 v250, 63, v0")
    E("s_cmp_ge_u32 s69, 4"); E(f"s_cbranch_scc1 {P}CSTART")
    B1R, W2R = 224, 232
    def load_b1w2(tmp):
        g.srd(48, 12, 512); g.srd(52, 14, 512)
        E(f"v_lshrrev_b32 v{tmp}, 4, v250"); E(f"v_lshlrev_b32 v{tmp}, 3, v{tmp}")
        E("s_lshl_b32 s71, s72, 7")
        for j in range(4): E(f"buffer_load_dwordx2 v[{B1R+2*j}:{B1R+2*j+1}], v{tmp}, s[48:51], s71 offen offset:{32*j}")
        for j in range(4): E(f"buffer_load_dwordx2 v[{W2R+2*j}:{W2R+2*j+1}], v{tmp}, s[52:55], s71 offen offset:{32*j}")
    D = 192; WREG = 208; SUM = 216; T = 220; F6 = 228; VB0, VB1, WA, WA6 = 236, 237, 238, 239
    def F(js, b, h=0): return ((js*6 + b)*2 + h)*4 if b < 6 else F6 + h*4
    FR = [(js, b) for b in (6, 0, 1, 2, 3, 4, 5) for js in (range(4) if b < 6 else (0,))]
    ps = PSCH[o['psch']]
    PS = {x: ps(*x) for x in FR}
    R8, P8, TA, TB, TC, VIX, L16 = range(T, T+7)
    host = [x for x in FR if PS[x] < 0][-3:]
    hreg = [F(*x) + k for x in host for k in range(2, 8)]
    VCA0, VCA1, VPC, VI0, VIa, VId, VIP0, VIP3, VIP6 = hreg[:9]
    VIB = hreg[9:13]; VIC = hreg[13:17]
    if RB: dem = [(0, 1), (2,)] + [(t, t+2) for t in (3, 4, 7, 8, 11, 12, 15, 16, 19, 20)] + [(23, 24)]
    else: dem = [(0, 1), (2,)] + [(t, t+1) for t in range(3, 25, 2)]
    dem = [(max(d) - PD, d, j) for d in dem for j in range(4)]
    slots = [(PS[x], F(*x) + k) for x in FR if x not in host for k in (2, 4, 6)]
    slots += [(99, r) for r in range(240, 256, 2) if not (o.get('trace') and r in (250, 254))]
    slots += [(o.get('tfirst', 0) - 1 if o['nin'] else 99, r) for r in range(D, D+24, 2)]
    dem.sort(key=lambda x: -x[0]); slots.sort(key=lambda x: -x[0])
    AO = {}; aoreads = []
    for (dth, d, j), (ex, r) in zip(dem, slots):
        assert ex >= max(dth, -1), (dth, d, ex)
        for k, t in enumerate(d): AO[(t, j)] = r + k
        aoreads.append((d, j, r))
    aoreads.sort(key=lambda x: (x[0], x[1]))
    if o['prioL']: E(f"s_setprio {o['prioL']}")
    if RB:
        E(f"s_lshr_b32 s94, s2, {6 + o['rsel']}"); E("s_xor_b32 s94, s94, s66"); E("s_and_b32 s94, s94, 1")
        if o['sh'] == 0: E("s_mov_b32 s99, s94")
        else:
            if o['sh'] == 1: E("s_and_b32 s70, s65, 1")
            elif o['sh'] == 2: E("s_lshr_b32 s70, s65, 1")
            else: E("s_lshr_b32 s70, s2, 7")
            E("s_and_b32 s70, s70, s94")
            E("s_sub_u32 s94, s94, s70"); E("s_sub_u32 s99, s94, s70")
    E(f"v_lshrrev_b32 v{R8}, 3, v250")
    E(f"v_and_b32 v{P8}, 7, v250")
    E(f"v_mul_u32_u24 v{TA}, 37, v250"); E(f"v_lshrrev_b32 v{TA}, 8, v{TA}")
    E(f"v_mul_u32_u24 v{VIX}, 288, v{TA}")
    E(f"v_lshl_add_u32 v{VIX}, v250, 4, v{VIX}")
    E(f"v_lshlrev_b32 v{L16}, 4, v250")
    E(f"v_lshrrev_b32 v{TA}, 4, v250")
    E(f"v_lshlrev_b32 v{TB}, 2, v{TA}")
    E(f"v_and_b32 v{TC}, 15, v250")
    E(f"v_xor_b32 v{TC}, v{TC}, v{TB}")
    E(f"v_lshlrev_b32 v{TC}, 4, v{TC}")
    E(f"v_lshl_add_u32 v{VB0}, v{TA}, 9, v{TC}")
    E(f"v_xor_b32 v{VB1}, 32, v{VB0}")
    E("s_lshl_b32 s73, s69, 12")
    E(f"s_add_u32 s75, s73, {BS0}")
    E("s_mul_i32 s72, s65, 819200"); E("s_lshl_b32 s70, s66, 8"); E("s_add_u32 s72, s72, s70")
    E("s_lshl_b32 s70, s69, 13"); E("s_add_u32 s72, s72, s70")
    if RB:
        E(f"s_lshl_b32 s70, s94, 15"); E("s_add_u32 s95, s72, s70"); E("s_sub_u32 s96, s72, s70")
        E(f"s_lshl_b32 s70, s99, 15"); E("s_add_u32 s100, s72, s70"); E("s_sub_u32 s101, s72, s70")
        E(f"s_lshl_b32 s97, s94, 2"); E(f"s_lshl_b32 s98, s99, 2")
    def SB(t): return {'0': 72, 'A': 95, 'D': 96, 'B': 100, 'C': 101}[cls(t)]
    E("s_lshl_b32 s70, s69, 5"); E("s_add_u32 s70, s70, s68"); E("s_mul_i32 s70, s70, 400")
    E("s_mul_i32 s71, s65, 100"); E("s_add_u32 s70, s70, s71")
    E("s_lshl_b32 s77, s67, 4"); E("s_lshl_b32 s78, s69, 2"); E("s_add_u32 s77, s77, s78")
    E("s_add_u32 s78, s77, s68"); E("s_mul_i32 s78, s78, 400")
    E(f"s_add_u32 s79, s73, {IDXP}")
    E("s_waitcnt lgkmcnt(0)")
    if o.get('pst') == 1: stamp(1)
    g.srd(24, 4, 1638400)
    for j in range(4):
        E(f"s_add_u32 m0, s73, {IDXA + j*1024}")
        if j: E(f"s_add_u32 s70, s70, 3200")
        else: E("s_nop 0")
        g.vm(f"buffer_load_dwordx4 v{VIX}, s[24:27], s70 offen lds", 'ia')
    E("s_mov_b32 m0, s79"); E("s_nop 0")
    g.vm(f"buffer_load_dwordx4 v{L16}, s[24:27], s78 offen lds", 'ip')
    E("s_mov_b32 exec_hi, 15")
    g.vm(f"buffer_load_dwordx4 v{L16}, s[24:27], s78 offen offset:1024 lds", 'ip')
    E("s_mov_b32 exec_hi, -1")
    g.srd(32, 10, 3276800)
    def mkB(t, ii):
        def f():
            E(f"s_add_u32 m0, s75, {(t % NS)*16384 + ii*1024}")
            E(f"s_add_u32 s70, s{SB(t)}, {fo(t)*32768 + ii*2048}")
            g.vm(f"buffer_load_dwordx4 v{VB0 if ii < 2 else VB1}, s[32:35], s70 offen{o.get('bfl','')} lds", ('d', t))
        return f
    def mkA(t, j):
        def f():
            E(f"s_add_u32 m0, s73, {AP(t % NS) + j*1024}"); E("s_nop 0")
            g.vm(f"buffer_load_dwordx4 v{AO[(t, j)]}, s[28:31], 0 offen{o.get('afl','')} lds", ('d', t))
        return f
    def mkP(x):
        def f():
            r = F(*x)
            if o.get('nolate') and PS[x] >= 20: return
            g.vm(f"buffer_load_dwordx4 v[{r+4}:{r+7}], v{r+1}, s[28:31], 0 offen{o.get('pfl2','')}", ('p', x))
            g.vm(f"buffer_load_dwordx4 v[{r}:{r+3}], v{r}, s[28:31], 0 offen{o.get('pfl2','')}", ('p', x))
        return f
    for t in (0, 1):
        for ii in range(4): mkB(t, ii)()
    g.srd(28, 6, 12800000)
    E(f"v_lshrrev_b32 v{TA}, 1, v{R8}"); E(f"v_xor_b32 v{TA}, v{TA}, v{P8}")
    E(f"v_lshlrev_b32 v{VCA0}, 4, v{TA}"); E(f"v_xor_b32 v{VCA1}, 64, v{VCA0}")
    E(f"v_mul_u32_u24 v{VI0}, 112, v{R8}"); E(f"s_add_u32 s70, s73, {IDXA}"); E(f"v_add_u32 v{VI0}, s70, v{VI0}")
    if RB:
        E(f"v_add_u32 v{VIa}, s97, v{VI0}"); E(f"v_subrev_u32 v{VId}, s97, v{VI0}")
        E(f"v_add_u32 v{VIB[0]}, s98, v{VI0}"); E(f"v_subrev_u32 v{VIC[0]}, s98, v{VI0}")
        for j in range(1, 4): E(f"v_add_u32 v{VIB[j]}, {1024*j}, v{VIB[0]}"); E(f"v_add_u32 v{VIC[j]}, {1024*j}, v{VIC[0]}")
    else:
        for j in range(4): E(f"v_add_u32 v{VIB[j]}, {1024*j}, v{VI0}")
    def vbase(t, j): return {'0': VI0, 'A': VIa, 'D': VId, 'B': VIB[j], 'C': VIC[j]}[cls(t)] if RB or j == 0 else VIB[j]
    E(f"v_bfe_u32 v{TA}, v250, 4, 1"); E(f"v_and_b32 v{TB}, 3, v250"); E(f"v_lshl_add_u32 v{TA}, v{TA}, 2, v{TB}"); E(f"v_lshlrev_b32 v{VPC}, 4, v{TA}")
    E(f"v_bfe_u32 v{TC}, v250, 2, 2"); E(f"v_mul_u32_u24 v{TA}, 96, v{TC}"); E(f"v_add_u32 v{TA}, s79, v{TA}")
    E(f"v_lshrrev_b32 v{TB}, 5, v250")
    E(f"v_lshl_add_u32 v{VIP0}, v{TB}, 3, v{TA}"); E(f"v_add_u32 v{VIP3}, 1200, v{VIP0}")
    E(f"v_mul_u32_u24 v{TB}, 800, v{TB}"); E(f"v_lshl_add_u32 v{TB}, v{TC}, 2, v{TB}"); E(f"v_add_u32 v{VIP6}, s79, v{TB}")
    for js in range(4): E(f"v_mov_b32 v{SUM+js}, 0")
    E(f"v_add_u32 v{WA}, {WP}, v{L16}")
    E(f"v_lshlrev_b32 v{WA6}, 2, v250"); E(f"v_add_u32 v{WA6}, {WP6}, v{WA6}")
    for k, m in enumerate((0x55555555, 0xaaaaaaaa, 0x33333333, 0xcccccccc)): E(f"s_mov_b32 s{48+2*k}, {m:#x}"); E(f"s_mov_b32 s{49+2*k}, {m:#x}")
    def rd_ao(d, j, r):
        if len(d) == 2 and cls(d[0]) == cls(d[1]): g.ds(f"ds_read2_b32 v[{r}:{r+1}], v{vbase(d[0], j)} offset0:{fo(d[0])} offset1:{fo(d[1])}", ('a', d, j))
        else:
            for k, t in enumerate(d): g.ds(f"ds_read_b32 v{r+k}, v{vbase(t, 0)} offset:{j*1024 + 4*fo(t)}", ('a', d, j))
    def cv_ao(d, j, r):
        g.wait_ds(('a', d, j))
        for k in range(len(d)): E(f"v_lshl_add_u32 v{r+k}, v{r+k}, 7, v{VCA0 + (j&1)}")
    def rd_p(x):
        js, b = x
        if b == 6: g.ds(f"ds_read2_b32 v[{F6}:{F6+1}], v{VIP6} offset0:96 offset1:196", ('pi', x))
        else:
            k = (js % 3)*100 + 4*b
            g.ds(f"ds_read2_b32 v[{F(*x)}:{F(*x)+1}], v{VIP3 if js == 3 else VIP0} offset0:{k} offset1:{k+1}", ('pi', x))
    def cv_p(x):
        g.wait_ds(('pi', x))
        for k in range(2): E(f"v_lshl_add_u32 v{F(*x)+k}, v{F(*x)+k}, 7, v{VPC}")
    g.wait_vm(['ia'])
    if o.get('pst') == 1: stamp(2)
    first = [a for a in aoreads if min(a[0]) < 3]; later = [a for a in aoreads if min(a[0]) >= 3]
    for a in first: rd_ao(*a)
    FRs = sorted(FR, key=lambda x: PS[x])
    pro = [x for x in FRs if PS[x] < 0]
    for j in range(4):
        cv_ao(*first[j]); mkA(0, j)()
    for j in range(4): mkA(1, j)()
    E("s_barrier")
    if o.get('pst'): stamp(3 if o['pst'] == 1 else 1)
    g.wait_vm(['ip'])
    for a in first[4:]: cv_ao(*a)
    if PD >= 3:
        for j in range(4): mkA(2, j)()
    if o.get('pst') == 2: stamp(2)
    for i, x in enumerate(FRs):
        rd_p(x)
        if i >= 8: cv_p(FRs[i-8])
    k = 0; pre = pro[:o['npre']]
    for i, a in enumerate(later):
        rd_ao(*a)
        if i < 8: cv_p(FRs[len(FRs)-8+i])
        if i >= 8: cv_ao(*later[i-8])
        if i == 8 and PD >= 3:
            for ii in range(4): mkB(2, ii)()
            if o.get('pst') == 2: stamp(3)
        if i > 8 and i % o.get('pint', 3) == 0 and k < len(pre) and pre[k] not in host: mkP(pre[k])(); k += 1
    for a in later[-8:]: cv_ao(*a)
    for x in pre[k:]: mkP(x)()
    pend0 = pro[o['npre']:]
    if o.get('pst') == 2: stamp(4)
    g.wait_vm([('d', 0)])
    if o.get('pst') == 2: stamp(5)
    E("s_barrier")
    if o.get('pst') != 2: stamp(4 if o.get('pst') else 1)
    TR0, TR1 = 254, 250
    if o.get('trace'): E("s_memtime s[38:39]"); E("s_memrealtime s[40:41]")
    def tr_items(x):
        r = F(*x)
        def a():
            g.wait_vm([('p', x)])
            E("s_mov_b64 vcc, s[48:49]")
            for w in range(4): E(f"v_cndmask_b32_dpp v{T+w}, v{r+4+w}, v{r+w}, vcc quad_perm:[1,0,3,2] row_mask:0xf bank_mask:0xf")
            E("s_mov_b64 vcc, s[50:51]")
            for w in range(4): E(f"v_cndmask_b32_dpp v{T+4+w}, v{r+w}, v{r+4+w}, vcc quad_perm:[1,0,3,2] row_mask:0xf bank_mask:0xf")
        def b():
            for c0 in range(2):
                for w in range(2): E(f"v_permlane32_swap_b32 v{T+4*c0+w}, v{T+4*c0+w+2}")
            E("s_mov_b64 vcc, s[52:53]")
            for c0 in range(2):
                for w in range(2): E(f"v_cndmask_b32_dpp v{r+4*c0+w}, v{T+4*c0+2+w}, v{T+4*c0+w}, vcc quad_perm:[2,3,0,1] row_mask:0xf bank_mask:0xf")
        def c():
            E("s_mov_b64 vcc, s[54:55]")
            for c0 in range(2):
                for w in range(2): E(f"v_cndmask_b32_dpp v{r+4*c0+2+w}, v{T+4*c0+w}, v{T+4*c0+2+w}, vcc quad_perm:[2,3,0,1] row_mask:0xf bank_mask:0xf")
            st['trm'] = g.n
        return [a, b, c]
    for i, x in enumerate(pend0): PS[x] = i // o['ppst']
    FRs = sorted(FR, key=lambda x: PS[x])
    TS = {}; cnt = {t: 0 for t in range(26)}
    for x in FRs:
        t = max(o['t0'], PS[x] + o['tlag'])
        while t < 25 and cnt[t] >= o.get('trps', 1 if t < 22 else 4): t += 1
        t = min(t, 25); TS[x] = t; cnt[t] += 1
    rdy = {b: max(TS[x] for x in FR if x[1] == b) + 1 for b in range(7)}
    allt = [(6, 6)] + [x for b in range(6) for x in [(6, b)] + [(I, b) for I in range(b+1)]]
    sched = {t: [] for t in range(26)}
    tprev = o.get('tfirst', 0); last = o.get('last', 24)
    for n, (I, J) in enumerate(allt):
        if n < o['nin']:
            t = max(rdy[I], rdy[J], tprev)
            while t < 25 and len(sched[t]) >= o.get('tps', 1): t += 1
            if t > last: t = 25
            tprev = t + o.get('tgap', 0)
        else: t = 25
        sched[min(t, 25)].append((I, J))
    st = dict(wsel=0, trm=-99, pend={}, mark={})
    def wread(I, J):
        w = WREG + 4*st['wsel']; st['wsel'] ^= 1
        if I < 6: g.ds(f"ds_read_b128 v[{w}:{w+3}], v{WA} offset:{(J*(J+1)//2 + I)*1024}", ('w', I, J))
        elif J == 6: g.ds(f"ds_read_b128 v[{w}:{w+3}], v{WA} offset:{21*1024}", ('w', I, J))
        else: g.ds(f"ds_read_b32 v{w}, v{WA6} offset:{J*256}", ('w', I, J))
        return w
    def fmops(js):
        p = st['pend'].pop(js, None)
        if p is None: return []
        I, J, w = p
        g.wait_ds(('w', I, J)); g.since(st['mark'][js], 8)
        if I < 6: return [f"v_fmac_f32 v{SUM+js}, v{D+4*js+r}, v{w+r}" for r in range(4)]
        if J == 6: return [f"v_fmac_f32 v{SUM+k}, v{D+k}, v{w+k}" for k in range(4)]
        return [f"v_fmac_f32 v{SUM+js}, v{D+4*js+js}, v{w}"]
    def tile_items(tl):
        it = []
        for (I, J) in tl:
            loc = {}
            def part(js, I=I, J=J, loc=loc):
                if js == 0: loc['w'] = wread(I, J)
                for x in fmops(js): E(x)
                nx = fmops((js+1) & 3) if (js < 3 or (I, J) != (6, 6)) else []
                if (I, J) == (6, 6) and js > 0:
                    for x in nx: E(x)
                    return
                g.since(st['trm'], 2)
                d = D + 4*js
                E(f"v_mfma_f32_16x16x32_bf16 v[{d}:{d+3}], v[{F(js,I,0)}:{F(js,I,0)+3}], v[{F(js,J,0)}:{F(js,J,0)+3}], 0")
                for x in nx[:2]: E(x)
                E(f"v_mfma_f32_16x16x32_bf16 v[{d}:{d+3}], v[{F(js,I,1)}:{F(js,I,1)+3}], v[{F(js,J,1)}:{F(js,J,1)+3}], v[{d}:{d+3}]")
                st['mark'][js] = g.n; st['pend'][js] = (I, J, loc['w'])
                for x in nx[2:]: E(x)
            for js in range(4): it.append(lambda js=js, part=part: part(js))
        return it
    def flush():
        for js in range(4):
            for x in fmops(js): E(x)
    for t in range(25):
        dm = []
        if t + PD <= 24:
            As = [mkA(t+PD, j) for j in range(4)]; Bs = [mkB(t+PD, i) for i in range(4)]
            dm = As + Bs if o['dord'] == 1 else Bs + As if o['dord'] == 0 else [x for p in zip(As, Bs) for x in p]
        dm += [mkP(x) for x in FRs if PS[x] == t]
        wk = []
        if not o['notr']:
            for x in FRs:
                if TS[x] == t: wk += tr_items(x)
        if not o['nopnn']: wk += tile_items(sched[t])
        lead = o['lead']; nw = len(wk)
        seq = dm[:lead]; rest = dm[lead:]
        k = 0
        for i, w in enumerate(wk):
            seq.append(w)
            tgt = ((i+1) * len(rest)) // nw
            while k < tgt: seq.append(rest[k]); k += 1
        seq += rest[k:]
        for f in seq: f()
        if o.get('trace'):
            E("s_waitcnt lgkmcnt(0)"); g.q = []
            E(f"v_writelane_b32 v{TR0}, s38, {t}"); E(f"v_writelane_b32 v{TR1}, s40, {t}")
            if t: E(f"v_writelane_b32 v{TR0}, s42, {31+t}"); E(f"v_writelane_b32 v{TR1}, s46, {31+t}")
            E("s_memtime s[42:43]")
        if t <= o['lb']:
            g.wait_vm([('d', t+1)] if t < o['lb'] else [('d', x) for x in range(t+1, 25)])
            if o.get('trace'): E("s_memtime s[46:47]")
            E("s_barrier")
            if t == 11 and not o.get('pst'): stamp(2)
            if o.get('trace'): E("s_memtime s[38:39]"); E("s_memrealtime s[40:41]")
    if o.get('pst') != 2: stamp(5 if o.get('pst') else 3)
    if o.get('trace'):
        E("s_memtime s[38:39]"); E("s_memrealtime s[40:41]"); E("s_waitcnt lgkmcnt(0)"); g.q = []
        E(f"v_writelane_b32 v{TR0}, s38, 25"); E(f"v_writelane_b32 v{TR1}, s40, 25")
        E("v_mbcnt_lo_u32_b32 v240, -1, 0"); E("v_mbcnt_hi_u32_b32 v240, -1, v240")
        E("s_lshl_b32 s70, s2, 9"); E("s_add_u32 s70, s70, 0x8010000"); E("v_lshlrev_b32 v241, 2, v240"); E("v_add_u32 v241, s70, v241")
        E("s_cmp_lg_u32 s69, 0"); E(f"s_cbranch_scc1 {P}NOTR")
        E(f"global_store_dword v241, v{TR0}, s[22:23]"); E(f"global_store_dword v241, v{TR1}, s[22:23] offset:256")
        g.L(f"{P}NOTR")
        E("s_waitcnt vmcnt(0)"); g.vdone = len(g.vq)
    done = {x for x in FR if TS[x] < 25}
    for (I, J) in sched[25]:
        for b in (I, J):
            for x in FRs:
                if x[1] == b and x not in done and not o['notr']:
                    for f in tr_items(x): f()
                    done.add(x)
        if not o['nopnn']:
            for f in tile_items([(I, J)]): f()
    flush()
    E("v_mbcnt_lo_u32_b32 v240, -1, 0"); E("v_mbcnt_hi_u32_b32 v240, -1, v240")
    for sh in (1, 2, 4, 8):
        for js in range(4): E(f"v_add_f32_dpp v{SUM+js}, v{SUM+js}, v{SUM+js} row_shr:{sh} row_mask:0xf bank_mask:0xf bound_ctrl:1")
    E("v_lshrrev_b32 v248, 4, v240"); E("v_lshlrev_b32 v248, 6, v248")
    E("s_lshl_b32 s70, s69, 4"); E(f"s_add_u32 s70, s70, {RED + 2048}")
    E("v_add_u32 v248, s70, v248")
    E("s_mov_b32 exec_lo, 0x80008000"); E("s_mov_b32 exec_hi, 0x80008000")
    E(f"ds_write_b128 v248, v[{SUM}:{SUM+3}]")
    E("s_mov_b64 exec, -1")
    E("s_waitcnt lgkmcnt(0)")
    if not o.get('pst'): stamp(4)
    E("s_barrier")
    if stamps:
        if not o.get('pst'): stamp(5)
        g.srd(44, 20, 256)
        E("s_cmp_eq_u32 s69, 0"); E(f"s_cbranch_scc1 {P}STAMP")
    E("s_endpgm")
    def nonce_wait(lbl, vr):
        E(f"v_readfirstlane_b32 s78, v{vr}")
        E("s_cmp_lg_u32 s78, 0"); E(f"s_cbranch_scc1 {lbl}_x")
        E(f"s_mov_b32 s71, {SPIN}"); E("s_lshl_b32 s79, s64, 2")
        g.L(lbl)
        E(f"buffer_load_dword v{vr}, off, s[44:47], s79 offset:128 sc0 sc1")
        E("s_waitcnt vmcnt(0)")
        E(f"v_readfirstlane_b32 s78, v{vr}")
        E("s_sub_u32 s71, s71, 1"); E("s_cmp_eq_u32 s71, 0"); E(f"s_cbranch_scc1 {lbl}_x")
        E("s_cmp_eq_u32 s78, 0"); E(f"s_cbranch_scc1 {lbl}")
        g.L(lbl + "_x")
    g.q = []; role['L'] = False
    g.L(f"{P}CSTART")
    if o['prioC']: E(f"s_setprio {o['prioC']}")
    VA = 128; VBR = 130; VX = 134; RDY = 150
    def FA(ks, st): return 64 + ks*32 + st*4
    def FB(ks, nt): return 64 + ks*32 + 16 + nt*4
    def ACC(nt, st): return (st*4 + nt)*4
    E("s_sub_u32 s72, s69, 4")
    if o.get('cpf'):
        E("s_getpc_b64 s[76:77]"); g.L(f"{P}PC")
        E(f"s_sub_u32 s76, s76, {P}PC-{name}"); E("s_subb_u32 s77, s77, 0")
        E("s_lshr_b32 s70, s2, 3"); E("s_lshl_b32 s70, s70, 2"); E("s_add_u32 s70, s70, s72"); E("s_lshl_b32 s70, s70, 9")
        E("v_lshlrev_b32 v240, 6, v250"); E("v_add_u32 v240, s70, v240")
        E(f"v_min_u32 v240, {P}END-{name}, v240")
        E("v_mov_b32 v241, s77"); E("v_add_co_u32 v240, vcc, s76, v240"); E("s_nop 1"); E("v_addc_co_u32 v241, vcc, 0, v241, vcc")
        E("s_mov_b64 exec, 0xff")
        E("global_load_dword v242, v[240:241], off")
        E("s_mov_b64 exec, -1")
    E("s_and_b32 s73, s72, 1"); E("s_lshr_b32 s74, s72, 1")
    E("v_lshlrev_b32 v254, 4, v250")
    E("s_mul_i32 s70, s72, 5120")
    E("s_memrealtime s[96:97]")
    E("s_waitcnt lgkmcnt(0)")
    g.srd(36, 8, 20000)
    for i in range(5):
        E(f"s_add_u32 m0, s70, {WRAW + i*1024}"); E(f"s_add_u32 s71, s70, {i*1024}")
        E("buffer_load_dwordx4 v254, s[36:39], s71 offen lds")
    g.srd(40, 22, WSREC); g.srd(44, 20, 256)
    if o.get('wso'): E(f"s_add_u32 s40, s40, {o['wso'] << 20}"); E("s_addc_u32 s41, s41, 0")
    load_b1w2(248)
    E("v_and_b32 v140, 15, v250"); E("v_lshrrev_b32 v141, 4, v250"); E("v_bfe_u32 v142, v250, 1, 3")
    E("v_xor_b32 v142, v141, v142"); E("v_lshlrev_b32 v142, 4, v142"); E("v_lshl_add_u32 v142, v140, 7, v142")
    E("s_lshl_b32 s70, s73, 13"); E(f"v_add_u32 v{VA}, s70, v142"); E(f"v_xor_b32 v{VA+1}, 64, v{VA}")
    E("v_bfe_u32 v142, v250, 2, 2")
    E("v_lshl_add_u32 v143, v141, 3, v142"); E("v_lshlrev_b32 v143, 8, v143")
    E("v_bfe_u32 v144, v250, 1, 1"); E("s_lshl_b32 s70, s74, 3"); E("v_or_b32 v144, s70, v144")
    E("v_lshlrev_b32 v142, 2, v142"); E("v_xor_b32 v144, v144, v142")
    E("v_and_b32 v142, 1, v141"); E("v_lshlrev_b32 v142, 1, v142"); E("v_xor_b32 v144, v144, v142")
    E("v_lshl_add_u32 v143, v144, 4, v143")
    E("v_and_b32 v144, 1, v250"); E("v_lshl_add_u32 v143, v144, 3, v143")
    for nt in range(4):
        E(f"v_xor_b32 v142, {nt*32}, v143"); E(f"v_add_u32 v{VBR+nt}, {BS0}, v142")
    E(f"v_lshlrev_b32 v{VX}, 4, v250")
    E(f"s_mov_b32 s76, {WRAW}")
    E("v_lshrrev_b32 v140, 4, v250")
    E("v_bfe_u32 v141, v250, 2, 2")
    E("v_and_b32 v142, 3, v250")
    E("v_mul_u32_u24 v143, 24, v140"); E("v_add_u32 v143, v143, v141"); E("v_mul_u32_u24 v143, 200, v143")
    E("v_mul_u32_u24 v144, 48, v142"); E(f"v_add3_u32 v145, v143, v144, s75".replace("s75", "s76"))
    E("v_mul_u32_u24 v143, 24, v141"); E("v_add_u32 v143, v143, v142")
    E("v_mul_u32_u24 v144, 200, v143"); E("v_add_u32 v144, s76, v144")
    E("v_lshl_add_u32 v151, v140, 1, v144")
    E("v_mul_u32_u24 v146, 48, v140"); E("v_add_u32 v146, v146, v144")
    E("v_mul_u32_u24 v144, 200, v140"); E("v_add_u32 v144, s76, v144")
    E("v_lshl_add_u32 v147, v143, 1, v144")
    E("v_lshl_add_u32 v153, v141, 1, v144")
    E(f"v_add_u32 v148, {WP}, v254")
    E(f"v_lshlrev_b32 v149, 2, v250"); E(f"v_add_u32 v149, {WP6}, v149")
    for r in range(48, 56): E(f"v_mov_b32 v{r}, 0")
    E("s_mov_b32 s75, 0xffff0000")
    E(f"s_waitcnt vmcnt(8)")
    E("s_barrier")
    big = [(I, J) for J in range(6) for I in range(J+1)] + [(6, 6)]
    own = {0: [0, 1, 3, 4, 6, 7], 1: [2, 8, 10, 11, 12, 21], 2: [5, 9, 13, 15, 16], 3: [14, 17, 18, 19, 20]}
    assert sorted(sum(own.values(), [])) == list(range(22))
    for cw in range(4):
        if cw < 3: E(f"s_cmp_lg_u32 s72, {cw}"); E(f"s_cbranch_scc1 {P}WB{cw+1}")
        mine = [(n, big[n]) for n in own[cw]]
        small = [J for J in range(6) if cw >= 2 and J % 2 == cw % 2]
        g.q = []
        for i, (n, (I, J)) in enumerate(mine):
            r = 4*i
            if I == 6: g.ds(f"ds_read_u16_d16_hi v48, v153 offset:{19200 + 192}", n); continue
            g.ds(f"ds_read_b64_tr_b16 v[{r}:{r+1}], v145 offset:{800*I + 8*J}", n)
            if I < J: g.ds(f"ds_read_b64 v[{r+2}:{r+3}], v146 offset:{800*J + 8*I}", n)
        for i, J in enumerate(small):
            g.ds(f"ds_read_u16_d16_hi v{48+2*i}, v147 offset:{19200 + 8*J}", ('s', J)); g.ds(f"ds_read_u16_d16_hi v{49+2*i}, v151 offset:{800*J + 192}", ('s', J))
        for i, (n, (I, J)) in enumerate(mine):
            r = 4*i; d = 24 + 8*(i % 3)
            g.wait_ds(n)
            if I == 6:
                for k in range(4):
                    m = 0x11111111 << k
                    E(f"s_mov_b32 vcc_lo, {m:#x}"); E(f"s_mov_b32 vcc_hi, {m:#x}")
                    E(f"v_cndmask_b32 v{d+k}, 0, v48, vcc")
            else:
                for k in range(4 if I < J else 2):
                    E(f"v_lshlrev_b32 v{d+2*k}, 16, v{r+k}"); E(f"v_and_b32 v{d+2*k+1}, s75, v{r+k}")
                if I < J:
                    for k in range(4): E(f"v_add_f32 v{d+k}, v{d+k}, v{d+4+k}")
            g.ds(f"ds_write_b128 v148, v[{d}:{d+3}] offset:{n*1024}", 'w')
        for i, J in enumerate(small):
            g.wait_ds(('s', J))
            E(f"v_add_f32 v{48+2*i}, v{48+2*i}, v{49+2*i}"); g.ds(f"ds_write_b32 v149, v{48+2*i} offset:{J*256}", 'w')
        if cw < 3: E(f"s_branch {P}WBDONE"); g.L(f"{P}WB{cw+1}")
    g.q = []
    g.L(f"{P}WBDONE")
    E("s_waitcnt lgkmcnt(0)")
    if o.get('pst') == 2: stamp(2)
    E("s_barrier")
    stamp(1)
    def Rl(s, ks):
        la = [f"ds_read_b128 v[{FA(ks,st)}:{FA(ks,st)+3}], v{VA+ks} offset:{AP(s) + st*2048}" for st in range(4)]
        lb = [[f"ds_read_b64_tr_b16 v[{FB(ks,nt)+2*hf}:{FB(ks,nt)+2*hf+1}], v{VBR+nt} offset:{s*16384 + ks*8192 + hf*1024}" for hf in range(2)] for nt in range(4)]
        if o['nocr'] == 1: return []
        return [la[0]] + lb[0] + [la[1]] + lb[1] + [la[2]] + lb[2] + [la[3]] + lb[3]
    MORD = [(0,0),(0,1),(1,0),(1,1),(0,2),(1,2),(2,0),(2,1),(2,2),(0,3),(1,3),(2,3),(3,0),(3,1),(3,2),(3,3)]
    mo = o.get('mord', 0)
    if mo == 3: MORD = [(nt, st if nt % 2 == 0 else 3-st) for nt in range(4) for st in range(4)]
    def Ml(ks, first=False):
        l = []
        for nt, st in MORD:
            a = ACC(nt, st)
            l.append(f"v_mfma_f32_16x16x32_bf16 v[{a}:{a+3}], v[{FB(ks,nt)}:{FB(ks,nt)+3}], v[{FA(ks,st)}:{FA(ks,st)+3}], " + ("0" if first else f"v[{a}:{a+3}]"))
        if o['nocm']: return ["s_nop 0"]*16
        return l
    def inter(ms, rs, tag):
        for i, m in enumerate(ms):
            E(m)
            if i < len(rs): g.ds(rs[i], tag)
    for t in range(23 if o.get('stm') else 25):
        s = t % NS
        if t == 0:
            for x in Rl(s, 0): g.ds(x, 0)
        else: inter(Ml(1), Rl(s, 0), 0)
        if t == 1:
            E("s_or_b32 s70, s72, s67"); E("s_cmp_lg_u32 s70, 0"); E(f"s_cbranch_scc1 {P}NOLEAD")
            E("s_lshl_b32 s70, s64, 2")
            E("s_or_b32 s96, s96, 1"); E(f"v_mov_b32 v{RDY}, s96")
            E("s_mov_b64 exec, 1")
            E(f"buffer_store_dword v{RDY}, off, s[44:47], s70 offset:128 sc0 sc1")
            E("s_mov_b64 exec, -1")
            g.L(f"{P}NOLEAD")
        if t == 24 and o.get('tag'): tailtag.tag_prep(g, o, P, nonce_wait, RDY)
        if 'pst0' in o:
            t0, per, lanes = o['pst0']
            if t == t0:
                E("s_lshl_b32 s63, s64, 18"); E("s_lshl_b32 s70, s73, 17"); E("s_add_u32 s63, s63, s70")
                E("s_lshl_b32 s70, s65, 13"); E("s_add_u32 s63, s63, s70")
                E("s_lshl_b32 s70, s66, 12"); E("s_add_u32 s63, s63, s70")
                E("s_lshl_b32 s70, s74, 11"); E("s_add_u32 s63, s63, s70")
            for n in range(8):
                if t0 + n//per == t:
                    if lanes < 64: E(f"s_mov_b64 exec, {(1 << lanes) - 1}")
                    if n and n % 2 == 0: E("s_add_u32 s63, s63, 32768")
                    if o.get('pstl'): E(f"buffer_load_dwordx4 v[{160+4*(n&3)}:{163+4*(n&3)}], v{VX}, s[40:43], s63 offen offset:{(n&1)*1024} sc1")
                    else: E(f"buffer_store_dwordx4 v[160:163], v{VX}, s[40:43], s63 offen offset:{(n&1)*1024} sc0 sc1")
                    if lanes < 64: E("s_mov_b64 exec, -1")
        if t == o['chk']:
            E("s_lshl_b32 s79, s64, 2")
            E(f"buffer_load_dword v{RDY+2}, off, s[44:47], s79 offset:128 sc0 sc1")
        g.wait_ds(0)
        inter(Ml(0, t == 0), Rl(s, 1), 1)
        g.wait_ds()
        if t <= o['lb']: E("s_barrier")
        if t == 11 and o.get('pst') != 2: stamp(2)
    if o.get('tag'):
        tailtag.tail(g, o, P, ACC, FA, FB, VX, B1R, W2R, stamp)
    else:
        if o.get('stm'):
            assert o['lb'] == 22 and NS == 4
            HV = [(23, 0), (23, 1), (24, 0), (24, 1)]
            BX = [80, 160, 176, 192]; AX = [64, 208]
            def rdB(h):
                t, ks = HV[h]
                return [f"ds_read_b64_tr_b16 v[{BX[h]+4*nt+2*hf}:{BX[h]+4*nt+2*hf+1}], v{VBR+nt} offset:{(t % NS)*16384 + ks*8192 + hf*1024}" for nt in range(4) for hf in range(2)]
            def rdA(st, h):
                t, ks = HV[h]; r = AX[st & 1] + 4*h
                return f"ds_read_b128 v[{r}:{r+3}], v{VA+ks} offset:{AP(t % NS) + st*2048}"
            rs = []
            for h in range(4): rs += [(rdA(0, h), ('A', 0, h))] + [(x, ('B', h)) for x in rdB(h)]
            ms = Ml(1); k = 0
            for i, m in enumerate(ms):
                E(m)
                while k < len(rs) and k < ((i+1)*o.get('stn', 27))//16: g.ds(*rs[k]); k += 1
            E("s_lshl_b32 s77, s64, 18"); E("s_lshl_b32 s70, s73, 17"); E("s_add_u32 s77, s77, s70")
            E("s_lshl_b32 s70, s65, 13"); E("s_add_u32 s77, s77, s70")
            E("s_lshl_b32 s70, s66, 12"); E("s_add_u32 s77, s77, s70")
            E("s_lshl_b32 s70, s74, 11"); E("s_add_u32 s77, s77, s70")
            E("s_lshl_b32 s75, s64, 1"); E("s_add_u32 s75, s75, s66"); E("s_lshl_b32 s75, s75, 2"); E("s_add_u32 s75, s75, s72")
            E(f"s_lshl_b32 s75, s75, {9 if o.get('pfs') else 7}"); E("s_lshl_b32 s71, s65, 2"); E("s_add_u32 s75, s75, s71"); E(f"s_add_u32 s75, s75, {FLOFF}")
            fl = o.get('xfl', " sc0 sc1")
            mk = {}
            def outs(st):
                l = []
                if st: l.append(("s_add_u32 s77, s77, 32768", None))
                for cp in range(2):
                    p = 96 + (st*2+cp)*4
                    for h in range(2):
                        a = ACC(2*cp+h, st)
                        l += [(f"v_cvt_pk_bf16_f32 v{p+2*h}, v{a}, v{a+1}", a), (f"v_cvt_pk_bf16_f32 v{p+2*h+1}, v{a+2}, v{a+3}", a)]
                    l.append((f"buffer_store_dwordx4 v[{p}:{p+3}], v{VX}, s[40:43], s77 offen offset:{cp*1024}{fl}", None))
                return l
            def put(x):
                if x[1] is not None: g.since(mk[x[1]], 8)
                E(x[0])
            for st in range(4):
                ex = outs(st-1) if st else []
                n = 0
                for h in range(4):
                    g.wait_ds(('A', st, h))
                    if st == 0: g.wait_ds(('B', h))
                    for nt in range(4):
                        a = ACC(nt, st)
                        E(f"v_mfma_f32_16x16x32_bf16 v[{a}:{a+3}], v[{BX[h]+4*nt}:{BX[h]+4*nt+3}], v[{AX[st&1]+4*h}:{AX[st&1]+4*h+3}], v[{a}:{a+3}]")
                        mk[a] = g.n
                        n += 1
                        if st == 0:
                            for _ in range(2):
                                if k < len(rs): g.ds(*rs[k]); k += 1
                            if 9 <= n <= 12: g.ds(rdA(1, n-9), ('A', 1, n-9))
                            if n == 13:
                                E("s_waitcnt vmcnt(0)")
                                nonce_wait(f"{P}NWC", RDY+2)
                        elif st < 3 and n <= 4: g.ds(rdA(st+1, n-1), ('A', st+1, n-1))
                        if n >= o.get('ost', 3):
                            for _ in range(2):
                                if ex: put(ex.pop(0))
                for x in ex: put(x)
            stamp(3)
            E(f"v_mov_b32 v{RDY}, s78")
            for x in outs(3): put(x)
            E("s_mov_b64 exec, 1")
            if o.get('pfs'):
                for st in range(4):
                    E(f"s_waitcnt vmcnt({6 - st})")
                    E(f"buffer_store_dword v{RDY}, off, s[40:43], s75 offset:{128*st} sc0 sc1")
            else:
                E("s_waitcnt vmcnt(0)")
                E(f"buffer_store_dword v{RDY}, off, s[40:43], s75 sc0 sc1")
            E("s_mov_b64 exec, -1")
        else:
            for m in Ml(1): E(m)
            stamp(3)
            E("s_lshl_b32 s77, s64, 18"); E("s_lshl_b32 s70, s73, 17"); E("s_add_u32 s77, s77, s70")
            E("s_lshl_b32 s70, s65, 13"); E("s_add_u32 s77, s77, s70")
            E("s_lshl_b32 s70, s66, 12"); E("s_add_u32 s77, s77, s70")
            E("s_lshl_b32 s70, s74, 11"); E("s_add_u32 s77, s77, s70")
            def xstores(fl):
                for st in range(4):
                    if st: E("s_add_u32 s77, s77, 32768")
                    for cp in range(2):
                        p = 64 + (st*2+cp)*4
                        for h in range(2):
                            a = ACC(2*cp+h, st)
                            E(f"v_cvt_pk_bf16_f32 v{p+2*h}, v{a}, v{a+1}"); E(f"v_cvt_pk_bf16_f32 v{p+2*h+1}, v{a+2}, v{a+3}")
                        E(f"buffer_store_dwordx4 v[{p}:{p+3}], v{VX}, s[40:43], s77 offen offset:{cp*1024}{fl}")
            E("s_lshl_b32 s75, s64, 1"); E("s_add_u32 s75, s75, s66"); E("s_lshl_b32 s75, s75, 2"); E("s_add_u32 s75, s75, s72")
            E("s_lshl_b32 s75, s75, 7"); E("s_lshl_b32 s71, s65, 2"); E("s_add_u32 s75, s75, s71"); E(f"s_add_u32 s75, s75, {FLOFF}")
            E("s_waitcnt vmcnt(0)")
            xstores(o.get('xfl', " sc0 sc1"))
            nonce_wait(f"{P}NWC", RDY+2)
            E("s_nop 0"); E(f"v_mov_b32 v{RDY}, s78")
            E("s_waitcnt vmcnt(0)")
            E("s_mov_b64 exec, 1")
            E(f"buffer_store_dword v{RDY}, off, s[40:43], s75 sc0 sc1")
            E("s_mov_b64 exec, -1")
        if not o.get('st4'): stamp(4)
        E("s_lshl_b32 s77, s64, 18"); E("s_lshl_b32 s71, s67, 15"); E("s_add_u32 s77, s77, s71")
        E("s_lshl_b32 s71, s72, 11"); E("s_add_u32 s77, s77, s71")
        E("v_mov_b32 v200, 0")
        E(f"s_mov_b32 s71, {SPIN}")
        E("s_lshl_b32 s70, s64, 1"); E("s_lshr_b32 s75, s72, 1"); E("s_add_u32 s70, s70, s75"); E("s_lshl_b32 s70, s70, 2")
        E("s_add_u32 s70, s70, s66"); E("s_and_b32 s75, s72, 1"); E("s_lshl_b32 s75, s75, 1"); E("s_add_u32 s70, s70, s75")
        if o.get('pfs'): E("s_lshl_b32 s70, s70, 2"); E("s_add_u32 s70, s70, s65")
        E("s_lshl_b32 s70, s70, 7"); E(f"s_add_u32 s70, s70, {FLOFF}")
        E(f"buffer_load_dwordx4 v[204:207], off, s[40:43], s70{o['pfl']}")
        g.srd(56, 18, 8192)
        E("s_mov_b32 s79, 0xffff0000")
        for k in range(8):
            E(f"v_lshlrev_b32 v{2*k}, 16, v{B1R+k}"); E(f"v_and_b32 v{2*k+1}, s79, v{B1R+k}")
            E(f"v_lshlrev_b32 v{16+2*k}, 16, v{W2R+k}"); E(f"v_and_b32 v{16+2*k+1}, s79, v{W2R+k}")
        g.srd(60, 16, 2)
        E("v_mov_b32 v96, 0")
        for qq in range(1, 4): E(f"s_add_u32 s{73+qq}, s77, {qq*8192}")
        E("v_mov_b32 v97, 0xbdd2d3e8")
        if o.get('noflag'): E(f"s_branch {P}POLLED")
        E(f"s_branch {P}POLLT")
        g.L(f"{P}POLL")
        E(f"buffer_load_dwordx4 v[204:207], off, s[40:43], s70{o['pfl']}")
        g.L(f"{P}POLLT")
        E("s_sub_u32 s71, s71, 1"); E("s_cmp_eq_u32 s71, 0"); E(f"s_cbranch_scc1 {P}POLLED")
        E("s_waitcnt vmcnt(0)")
        for k in range(4): E(f"v_xor_b32 v{204+k}, s78, v{204+k}")
        E("v_or3_b32 v204, v204, v205, v206"); E("v_or_b32 v204, v204, v207")
        E("v_cmp_ne_u32 vcc, 0, v204"); E(f"s_cbranch_vccnz {P}POLL")
        g.L(f"{P}POLLED")
        if o.get('st4'): stamp(4)
        for qq in range(4):
            for cp in range(2):
                r = 32 + 8*qq + 4*cp
                E(f"buffer_load_dwordx4 v[{r}:{r+3}], v{VX}, s[40:43], s{73+qq if qq else 77} offen offset:{cp*1024}{o['lfl']}")
        E("buffer_load_short_d16_hi v96, v200, s[60:63], 0 offen")
        for qq in range(4):
            E(f"s_waitcnt vmcnt({7 - 2*qq})")
            if qq == 3: stamp(5)
            for k in range(8):
                E(f"v_lshlrev_b32 v{64+2*k}, 16, v{32+8*qq+k}"); E(f"v_and_b32 v{65+2*k}, s79, v{32+8*qq+k}")
            for k in range(16): E(f"v_add_f32 v{k}, v{k}, v{64+k}")
    N = 16
    for k in range(N): E(f"v_mul_f32 v{64+k}, v{k}, v{k}")
    for k in range(N): E(f"v_fmaak_f32 v{64+k}, v{64+k}, v97, 0xc0135761")
    for k in range(N): E(f"v_mul_f32 v{64+k}, v{64+k}, v{k}")
    for k in range(N): E(f"v_exp_f32 v{64+k}, v{64+k}")
    for k in range(N): E(f"v_mul_f32 v{k}, v{k}, v{16+k}")
    for k in range(N): E(f"v_add_f32 v{64+k}, 1.0, v{64+k}")
    for k in range(N): E(f"v_rcp_f32 v{64+k}, v{64+k}")
    E("s_lshl_b32 s70, s72, 8"); E(f"s_add_u32 s70, s70, {RED}")
    E("v_lshlrev_b32 v98, 2, v250"); E("v_add_u32 v99, s70, v98")
    for k in range(4): E(f"v_mul_f32 v{80+k}, v{k}, v{64+k}")
    for k in range(4, N): E(f"v_fmac_f32 v{80+(k&3)}, v{k}, v{64+k}")
    E("v_add_f32 v80, v80, v81"); E("v_add_f32 v82, v82, v83"); E("v_add_f32 v80, v80, v82")
    E("ds_write_b32 v99, v80")
    E("s_waitcnt lgkmcnt(0)")
    E("s_barrier")
    E("s_cmp_lg_u32 s72, 0"); E(f"s_cbranch_scc1 {P}END")
    E(f"v_add_u32 v98, {RED}, v98")
    for w in range(4): E(f"ds_read_b32 v{w}, v98 offset:{w*256}")
    E("ds_read_b32 v4, v98 offset:2048")
    E("s_lshl_b32 s70, s67, 4"); E("s_add_u32 s70, s70, s68"); E("s_lshl_b32 s70, s70, 1")
    E("v_lshlrev_b32 v43, 1, v250")
    E("s_waitcnt vmcnt(0) lgkmcnt(0)")
    E("v_add_f32 v0, v0, v1"); E("v_add_f32 v2, v2, v3"); E("v_add_f32 v0, v0, v4"); E("v_add_f32 v0, v0, v2")
    E("v_mov_b32 v1, v0"); E("s_nop 1"); E("v_permlane32_swap_b32 v0, v1"); E("s_nop 1"); E("v_add_f32 v0, v0, v1")
    E("v_mov_b32 v1, v0"); E("s_nop 1"); E("v_permlane16_swap_b32 v0, v1"); E("s_nop 1"); E("v_add_f32 v0, v0, v1")
    E(f"v_add_f32 v0, v0, v{222 if o.get('tag') else 96}")
    E("v_cvt_pk_bf16_f32 v0, v0, v0")
    E("s_mov_b64 exec, 0xffff")
    E("buffer_store_short v0, v43, s[56:59], s70 offen")
    if 'diag' in o:
        if o['diag'] == 6: E("s_waitcnt vmcnt(0)"); stamp(6)
        E("s_movk_i32 s75, 3000")
        if o['diag'] >= 20:
            a, b = {20: (3, 4), 21: (4, 5), 22: (3, 5), 23: (1, 3)}[o['diag']]
            E("s_waitcnt lgkmcnt(0)")
            E(f"s_sub_u32 s76, s{80+2*b}, s{80+2*a}"); E("s_min_u32 s76, s76, 2000"); E("s_mul_i32 s76, s76, 10"); E("s_add_u32 s75, s75, s76")
        elif o['diag'] >= 10:
            a, b = {10: (1, 3), 11: (1, 2), 12: (3, 5)}[o['diag']]
            E("s_waitcnt lgkmcnt(0)")
            E(f"s_sub_u32 s76, s{80+2*b}, s{80+2*a}"); E("s_min_u32 s76, s76, 100000"); E("s_mul_i32 s76, s76, 6554"); E("s_lshr_b32 s76, s76, 16"); E("s_add_u32 s75, s75, s76")
        if 'dwg' in o: E(f"s_cmp_lg_u32 s2, {o['dwg']}"); E(f"s_cbranch_scc1 {P}END")
        if 'dmask' in o: E(f"s_and_b32 s70, s2, {o['dmask'][0]}"); E(f"s_cmp_lg_u32 s70, {o['dmask'][1]}"); E(f"s_cbranch_scc1 {P}END")
        g.L(f"{P}DIAG")
        E("s_memrealtime s[70:71]"); E("s_waitcnt lgkmcnt(0)")
        E(f"s_sub_u32 s70, s70, s{80+2*(o['diag'] if o['diag'] < 10 else 0)}"); E("s_cmp_lt_u32 s70, s75"); E(f"s_cbranch_scc1 {P}DIAG")
    if stamps:
        E("s_mov_b64 exec, -1")
        g.L(f"{P}STAMP")
        E("s_waitcnt vmcnt(0)")
        stamp(6)
        E("s_mul_i32 s70, s2, 112"); E("s_add_u32 s70, s70, 0x8000000")
        E("s_cmp_eq_u32 s69, 0"); E("s_cselect_b32 s71, 56, 0"); E("s_add_u32 s70, s70, s71")
        E("v_mov_b32 v1, s70")
        E("s_waitcnt lgkmcnt(0)")
        if o.get('clk'):
            E("s_cmp_lg_u32 s69, 0"); E(f"s_cbranch_scc1 {P}NOCLK")
            for k in (2, 3, 1):
                E(f"s_sub_u32 s{80+2*k}, s{80+2*k}, s82"); E(f"s_add_u32 s{80+2*k}, s{80+2*k}, s80"); E(f"s_addc_u32 s{81+2*k}, s81, 0")
            g.L(f"{P}NOCLK")
        E("s_mov_b64 exec, 1")
        for k in range(7):
            E(f"v_mov_b32 v2, s{80+2*k}"); E(f"v_mov_b32 v3, s{81+2*k}")
            E(f"global_store_dwordx2 v1, v[2:3], s[22:23] offset:{8*k}"); E("s_nop 1")
    g.L(f"{P}END")
    E("s_endpgm")
    return "\n".join(x for x in g.l if x is not None) + "\n" + kd(name, vgpr=256)

def official(opts=None, path='standalone__deep_cross_pnn__recsys.s', stamps=False):
    asm = HDR + f"; @launch grid=(256,1,1) block=(512,1,1) lds={LDS}\n" + '.amdgcn_target "amdgcn-amd-amdhsa--gfx950"\n' + gen(NAME, stamps, opts)
    open(path, 'w').write(asm)

def bench(base, variants):
    hdr = []; ks = []
    for nm, op in variants:
        hdr.append(f"; @launch kernel={nm} grid=(256,1,1) block=(512,1,1) lds={LDS}")
        ks.append(gen(nm, True, op))
    asm = "\n".join(hdr) + '\n.amdgcn_target "amdgcn-amd-amdhsa--gfx950"\n' + "\n".join(ks)
    build(asm, base, variants[0][0])
```

```python
import gen6, gen5, sys
N = dict(psch='F', lb=22, npre=4, ppst=1, nin=10, tfirst=14)
gen5.official(dict(diag=1), f'd0.s')
gen5.official(dict(diag=3), f'd1.s')
gen6.official(dict(N, diag=1), f'd2.s')
gen6.official(dict(N, diag=3), f'd3.s')
gen6.official(dict(N, diag=1, npre=0, nin=8, tfirst=16), f'd4.s')
gen6.official(dict(N, diag=3, npre=0, nin=8, tfirst=16), f'd5.s')
```

```python
import gen6, gen5, sys
N = dict(psch='F', lb=22, npre=4, ppst=1, nin=10, tfirst=14)
gen6.official(dict(N, diag=10), f'd0.s')
gen6.official(dict(N, diag=23), f'd1.s')
gen6.official(dict(N, diag=10, dwg=77), f'd2.s')
gen6.official(dict(N, diag=23, dwg=77), f'd3.s')
gen6.official(dict(N, diag=10, nopnn=1, notr=1), f'd4.s')
gen6.official(dict(N, diag=23, nopnn=1, notr=1), f'd5.s')
```

```python
import sys, os
sys.path.insert(0, 'bench')
from asmlib import kd, build
import tailtag
NAME = "standalone__deep_cross_pnn__recsys_kernel"
HDR = open('standalone__deep_cross_pnn__recsys.s.ref').read().split('; Override')[0]

def AP(s): return s*16384
BS0 = 65536
IDXA = AP(3)
IDXP = BS0 + 2*16384
WRAW = BS0 + 3*16384
RED = BS0 + 4*16384
WP = WRAW + 20480
WP6 = WP + 22*1024
LDSEND = WP6 + 6*256
LDS = 163840
assert LDSEND <= LDS
FLOFF = 8 << 20
WSREC = 16 << 20
SPIN = 200000

class G:
    def __init__(s): s.l = []; s.q = []; s.vq = []; s.vdone = 0; s.n = 0
    def E(s, x):
        s.l.append("    " + x)
        s.n += (int(x.split()[1]) + 1) if x.startswith("s_nop") else 1
    def L(s, x): s.l.append(x + ":")
    def ds(s, x, tag=None): s.E(x); s.q.append(tag)
    def wait_ds(s, tag=None):
        if tag is None:
            n = 0
            if not s.q: return
        else:
            c = [i for i, t in enumerate(s.q) if t == tag]
            if not c: return
            n = len(s.q) - 1 - max(c)
        s.E(f"s_waitcnt lgkmcnt({min(n,15)})")
        n = min(n, 15)
        s.q = s.q[len(s.q)-n:] if n else []
    def vm(s, x, tag=None): s.E(x); s.vq.append(tag)
    def wait_vm(s, tags):
        c = [i for i, t in enumerate(s.vq) if t in tags]
        if not c or max(c) < s.vdone: return
        n = len(s.vq) - 1 - max(c)
        assert n <= 63
        s.E(f"s_waitcnt vmcnt({n})"); s.vdone = max(c) + 1
    def since(s, mark, need):
        d = s.n - mark
        if d < need: s.E(f"s_nop {need - d - 1}")
    def srd(s, d, p, n):
        s.E(f"s_mov_b32 s{d}, s{p}"); s.E(f"s_mov_b32 s{d+1}, s{p+1}"); s.E(f"s_mov_b32 s{d+2}, {n}"); s.E(f"s_mov_b32 s{d+3}, 0x20000")

PSCH = {
    'A': lambda js, b: -1 if b < 2 or b == 6 else [6, 8, 10, 12][js] if b == 2 else [14, 16, 18, 20][js] if b == 3 else 22 if b == 4 else 23,
    'B': lambda js, b: -1 if b < 1 or b == 6 else 4*b - 2 + js,
    'C': lambda js, b: -1 if b < 2 or b == 6 else 22 if b < 4 else 23,
    'D': lambda js, b: -1 if b < 3 or b == 6 else [12, 14, 16, 18][js] if b == 3 else 22 if b == 4 else 23,
    'F': lambda js, b: -1 if b < 3 or b == 6 else 19 + b,
    'G': lambda js, b: -1 if b < 4 or b == 6 else 18 + b,
    'H': lambda js, b: -1 if b < 3 or b == 6 else 22 if b == 3 else 23 if js < 2 + 2*(b-4) and b == 4 or (b == 4) else 23,
    'E': lambda js, b: -1 if b < 2 or b == 6 else [4, 6, 8, 10][js] if b == 2 else [12, 13, 14, 15][js] if b == 3 else [16, 17, 18, 19][js] if b == 4 else 22,
}

def gen(name=NAME, stamps=False, opts=None):
    o = dict(prioL=0, prioC=2, lead=4, dord=1, nopnn=0, nocr=0, nocm=0, notr=0, chk=22, rot=1, rsel=0, sh=1, lfl=' sc1', pfl=' sc1',
             ns=4, cpf=1, nin=0, tlag=3, t0=2, npre=4, ppst=1, lb=22, nl=3, pdel=3)
    if opts: o.update(opts)
    NS = o['ns']; PD = NS - 1
    g = G(); E = g.E
    P = "L" + name.replace("_kernel", "")[-10:] + "_"
    role = dict(L=True)
    def stamp(k):
        if 'diag' in o:
            if o['diag'] >= 20:
                if k == 0 or not role['L']: E(f"s_memrealtime s[{80+2*k}:{81+2*k}]")
                return
            if o['diag'] >= 10:
                if k == 0: E("s_memrealtime s[80:81]")
                elif k in (1, 2, 3, 5) and not role['L']: E(f"s_memtime s[{80+2*k}:{81+2*k}]")
                return
            if k == o['diag'] and (k == 0 or not role['L']): E(f"s_memrealtime s[{80+2*k}:{81+2*k}]")
            return
        if stamps and o.get('clk') and role['L'] and k in (1, 2, 3): E(f"s_memtime s[{80+2*k}:{81+2*k}]")
        elif stamps: E(f"s_memrealtime s[{80+2*k}:{81+2*k}]")
    g.l.append(f".text\n.globl {name}\n.p2align 8\n.type {name},@function\n{name}:")
    stamp(0)
    E("s_cmp_ge_u32 s2, 256"); E(f"s_cbranch_scc1 {P}END")
    E("s_load_dwordx16 s[4:19], s[0:1], 0"); E("s_load_dwordx4 s[20:23], s[0:1], 64")
    E("v_lshrrev_b32 v1, 6, v0")
    E("s_and_b32 s64, s2, 7"); E("s_lshl_b32 s64, s64, 2")
    E("v_readfirstlane_b32 s69, v1")
    E("s_lshr_b32 s70, s2, 6"); E("s_add_u32 s64, s64, s70")
    E("s_lshr_b32 s67, s2, 3"); E("s_and_b32 s67, s67, 7")
    E("s_and_b32 s65, s67, 3"); E("s_lshr_b32 s66, s67, 2")
    E("s_lshl_b32 s68, s64, 7")
    RB = o['rot']
    def cls(t):
        if t == 0 or not RB: return '0'
        if t == 1: return 'A'
        if t == 24: return 'D'
        return 'B' if t & 1 else 'C'
    def fo(t): return 24 if t == 0 else t - 1
    E("v_and_b32 v250, 63, v0")
    E("s_cmp_ge_u32 s69, 4"); E(f"s_cbranch_scc1 {P}CSTART")
    B1R, W2R = 224, 232
    def load_b1w2(tmp):
        g.srd(48, 12, 512); g.srd(52, 14, 512)
        E(f"v_lshrrev_b32 v{tmp}, 4, v250"); E(f"v_lshlrev_b32 v{tmp}, 3, v{tmp}")
        if o.get('osk'):
            E("s_lshl_b32 s71, s73, 1"); E("s_add_u32 s61, s71, s74"); E("s_lshl_b32 s71, s61, 7")
            E("s_cmp_eq_u32 s73, s66"); E("s_cselect_b32 s62, s65, 99")
        else: E("s_lshl_b32 s71, s72, 7")
        if o.get('mu'):
            assert o.get('osk')
            E("s_cmp_eq_u32 s65, 0"); E("s_cselect_b32 s50, 512, 0")
            E("s_lshl_b32 s60, s66, 1"); E("s_add_u32 s60, s60, s74"); E("s_lshl_b32 s60, s60, 7")
            for j in range(4): E(f"buffer_load_dwordx2 v[{176+2*j}:{177+2*j}], v{tmp}, s[48:51], s60 offen offset:{32*j}")
            W2 = 224 if o.get('g2') else 184
            for j in range(4): E(f"buffer_load_dwordx2 v[{W2+2*j}:{W2+1+2*j}], v{tmp}, s[52:55], s71 offen offset:{32*j}")
            return
        for j in range(4): E(f"buffer_load_dwordx2 v[{B1R+2*j}:{B1R+2*j+1}], v{tmp}, s[48:51], s71 offen offset:{32*j}")
        for j in range(4): E(f"buffer_load_dwordx2 v[{W2R+2*j}:{W2R+2*j+1}], v{tmp}, s[52:55], s71 offen offset:{32*j}")
    D = 192; WREG = 208; SUM = 216; T = 220; F6 = 228; VB0, VB1, WA, WA6 = 236, 237, 238, 239
    def F(js, b, h=0): return ((js*6 + b)*2 + h)*4 if b < 6 else F6 + h*4
    FR = [(js, b) for b in (6, 0, 1, 2, 3, 4, 5) for js in (range(4) if b < 6 else (0,))]
    NL = o['nl']; LB0 = 6 - NL
    def late(x): return LB0 <= x[1] < 6
    PS = {x: (99 if late(x) else -1) for x in FR}
    OWN = o.get('own', 0)
    def ring(x): return OWN and x[1] == 0 and not o.get('noring')
    def half(x): return OWN and x[1] == 1 and not o.get('noring')
    QF = 24 if OWN else 25
    assert o['lb'] == 22 and NS == 4
    R8, P8, TA, TB, TC, VIX, L16 = range(T, T+7)
    host = [x for x in FR if PS[x] < 0][-3:]
    hreg = [F(*x) + k for x in host for k in range(2, 8)]
    VCA0, VCA1, VPC, VI0, VIa, VId, VIP0, VIP3, VIP6 = hreg[:9]
    VIB = hreg[9:13]; VIC = hreg[13:17]; VL = [hreg[17], T+7]
    EA = o.get('early', 0)
    if EA: VCA0, VCA1, VPC = 240, 241, 242
    if RB: dem = [(0, 1), (2,)] + [(t, t+2) for t in (3, 4, 7, 8, 11, 12, 15, 16, 19, 20)] + [(23, 24)]
    else: dem = [(0, 1), (2,)] + [(t, t+1) for t in range(3, 25, 2)]
    dem = [(max(d) - PD, d, j) for d in dem for j in range(4)]
    slots = [(PS[x], F(*x) + k) for x in FR if x not in host for k in (2, 4, 6)]
    slots += [(99, r) for r in range(244 if EA else 240, 256, 2) if not ((o.get('trace') or o.get('ptrace')) and r in (250, 254))]
    slots += [(o.get('tfirst', 0) - 1 if o['nin'] else 99, r) for r in range(D, D+24, 2)]
    dem.sort(key=lambda x: -x[0]); slots.sort(key=lambda x: -x[0])
    AO = {}; aoreads = []
    for (dth, d, j), (ex, r) in zip(dem, slots):
        assert ex >= max(dth, -1), (dth, d, ex)
        for k, t in enumerate(d): AO[(t, j)] = r + k
        aoreads.append((d, j, r))
    aoreads.sort(key=lambda x: (x[0], x[1]))
    if o['prioL']: E(f"s_setprio {o['prioL']}")
    if RB:
        E(f"s_lshr_b32 s94, s2, {6 + o['rsel']}"); E("s_xor_b32 s94, s94, s66"); E("s_and_b32 s94, s94, 1")
        if o['sh'] == 0: E("s_mov_b32 s99, s94")
        else:
            if o['sh'] == 1: E("s_and_b32 s70, s65, 1")
            elif o['sh'] == 2: E("s_lshr_b32 s70, s65, 1")
            else: E("s_lshr_b32 s70, s2, 7")
            E("s_and_b32 s70, s70, s94")
            E("s_sub_u32 s94, s94, s70"); E("s_sub_u32 s99, s94, s70")
    E(f"v_lshrrev_b32 v{R8}, 3, v250")
    E(f"v_and_b32 v{P8}, 7, v250")
    E(f"v_mul_u32_u24 v{TA}, 37, v250"); E(f"v_lshrrev_b32 v{TA}, 8, v{TA}")
    E(f"v_mul_u32_u24 v{VIX}, 288, v{TA}")
    E(f"v_lshl_add_u32 v{VIX}, v250, 4, v{VIX}")
    if OWN:
        E(f"v_mul_u32_u24 v{TA}, 7, v{TA}"); E(f"v_sub_u32 v{TA}, v250, v{TA}"); E(f"v_cmp_eq_u32 vcc, 6, v{TA}")
        E("s_mul_i32 s70, s65, 96"); E("s_sub_u32 s70, 288, s70"); E(f"v_mov_b32 v{TA}, s70")
        E(f"v_cndmask_b32 v{TA}, 0, v{TA}, vcc"); E(f"v_add_u32 v{VIX}, v{VIX}, v{TA}")
    E(f"v_lshlrev_b32 v{L16}, 4, v250")
    E(f"v_lshrrev_b32 v{TA}, 4, v250")
    E(f"v_lshlrev_b32 v{TB}, 2, v{TA}")
    E(f"v_and_b32 v{TC}, 15, v250")
    E(f"v_xor_b32 v{TC}, v{TC}, v{TB}")
    E(f"v_lshlrev_b32 v{TC}, 4, v{TC}")
    E(f"v_lshl_add_u32 v{VB0}, v{TA}, 9, v{TC}")
    E(f"v_xor_b32 v{VB1}, 32, v{VB0}")
    if OWN:
        E("s_mul_i32 s63, s65, 6")
        for k, r in enumerate((TA, TB)):
            E(f"v_add_u32 v{r}, {64*k}, v250")
            E(f"v_mul_u32_u24 v{TC}, 41, v{r}"); E(f"v_lshrrev_b32 v{TC}, 10, v{TC}")
            E(f"v_mul_u32_u24 v{TC}, 25, v{TC}"); E(f"v_sub_u32 v{r}, v{r}, v{TC}")
            E(f"v_cmp_eq_u32 vcc, 24, v{r}")
            E(f"v_add_u32 v{r}, s63, v{r}"); E(f"v_subrev_u32 v243, 24, v{r}"); E(f"v_min_u32 v{r}, v{r}, v243")
            E(f"v_cndmask_b32 v{r}, v{r}, 24, vcc") if 0 else E(f"v_mov_b32 v243, 24")
            E(f"v_cndmask_b32 v{r}, v{r}, v243, vcc")
            E(f"v_add_lshl_u32 v{r}, v{r}, v{TC}, 4")
    E("s_lshl_b32 s73, s69, 12")
    E(f"s_add_u32 s75, s73, {BS0}")
    E(f"s_mul_i32 s72, s65, {o.get('qb', QF)*32768}"); E("s_lshl_b32 s70, s66, 8"); E("s_add_u32 s72, s72, s70")
    E("s_lshl_b32 s70, s69, 13"); E("s_add_u32 s72, s72, s70")
    if RB:
        E(f"s_lshl_b32 s70, s94, 15"); E("s_add_u32 s95, s72, s70"); E("s_sub_u32 s96, s72, s70")
        E(f"s_lshl_b32 s70, s99, 15"); E("s_add_u32 s100, s72, s70"); E("s_sub_u32 s101, s72, s70")
        E(f"s_lshl_b32 s97, s94, 2"); E(f"s_lshl_b32 s98, s99, 2")
    if OWN:
        assert RB and EA
        if 'qb' not in o: E(f"s_mul_i32 s70, s65, {23*32768}"); E("s_sub_u32 s72, s72, s70"); E(f"s_add_u32 s72, s72, {72*32768}")
    def SB(t): return {'0': 72, 'A': 95, 'D': 96, 'B': 100, 'C': 101}[cls(t)]
    E("s_lshl_b32 s70, s69, 5"); E("s_add_u32 s70, s70, s68"); E("s_mul_i32 s70, s70, 400")
    E(f"s_mul_i32 s71, s65, {4*QF}"); E("s_add_u32 s70, s70, s71")
    E("s_lshl_b32 s77, s67, 4"); E("s_lshl_b32 s78, s69, 2"); E("s_add_u32 s77, s77, s78")
    E("s_add_u32 s78, s77, s68"); E("s_mul_i32 s78, s78, 400")
    E(f"s_add_u32 s79, s73, {IDXP}")
    E("s_waitcnt lgkmcnt(0)")
    if o.get('pst') == 1: stamp(1)
    g.srd(24, 4, 1638400)
    for j in range(4):
        E(f"s_add_u32 m0, s73, {IDXA + j*1024}")
        if j: E(f"s_add_u32 s70, s70, 3200")
        else: E("s_nop 0")
        g.vm(f"buffer_load_dwordx4 v{VIX}, s[24:27], s70 offen lds", 'ia')
    if OWN:
        E("s_mov_b32 m0, s79"); E("s_nop 0")
        g.vm(f"buffer_load_dwordx4 v{TA}, s[24:27], s78 offen lds", 'ip')
        E("s_add_u32 m0, s79, 1024"); E("s_mov_b32 exec_hi, 15")
        g.vm(f"buffer_load_dwordx4 v{TB}, s[24:27], s78 offen lds", 'ip')
        E("s_mov_b32 exec_hi, -1")
    else:
        E("s_mov_b32 m0, s79"); E("s_nop 0")
        g.vm(f"buffer_load_dwordx4 v{L16}, s[24:27], s78 offen lds", 'ip')
        E("s_mov_b32 exec_hi, 15")
        g.vm(f"buffer_load_dwordx4 v{L16}, s[24:27], s78 offen offset:1024 lds", 'ip')
        E("s_mov_b32 exec_hi, -1")
    g.srd(32, 10, 3276800)
    def mkB(t, ii):
        def f():
            E(f"s_add_u32 m0, s75, {(t % NS)*16384 + ii*1024}")
            E(f"s_add_u32 s70, s{SB(t)}, {fo(t)*32768 + ii*2048}")
            g.vm(f"buffer_load_dwordx4 v{VB0 if ii < 2 else VB1}, s[32:35], s70 offen{o.get('bfl','')} lds", ('d', t))
        return f
    def mkA(t, j):
        def f():
            E(f"s_add_u32 m0, s73, {AP(t % NS) + j*1024}")
            if EA and t >= 3:
                g.wait_ds(('a',) + aoreads[-1][:2])
                E(f"v_lshl_add_u32 v{AO[(t, j)]}, v{AO[(t, j)]}, 7, v{VCA0 + (j&1)}")
            else: E("s_nop 0")
            g.vm(f"buffer_load_dwordx4 v{AO[(t, j)]}, s[28:31], 0 offen{o.get('afl','')} lds", ('d', t))
        return f
    def mkP(x):
        def f():
            r = F(*x)
            if EA: cv_p(x)
            if o.get('pmode') == 2:
                for u in range(2):
                    E(f"s_add_u32 m0, s58, {1024*u}"); E("s_nop 0")
                    g.vm(f"buffer_load_dwordx4 v{r+u}, s[28:31], 0 offen lds", ('p', x))
                return
            if half(x): E("s_mov_b64 exec, s[56:57]")
            g.vm(f"buffer_load_dwordx4 v[{r+4}:{r+7}], v{r+1}, s[28:31], 0 offen{o.get('pfl2','')}", ('p', x))
            g.vm(f"buffer_load_dwordx4 v[{r}:{r+3}], v{r}, s[28:31], 0 offen{o.get('pfl2','')}", ('p', x))
            if half(x): E("s_mov_b64 exec, -1")
        return f
    def lbuf(x): return 1 + ((x[1] - LB0) & 1)
    def mkL(x, u):
        def f():
            js, b = x
            E(f"s_add_u32 m0, s{73 if js < 2 else 75}, {lbuf(x)*16384 + (js&1)*2048 + u*1024}")
            if EA: E(f"v_lshl_add_u32 v{F(*x)+u}, v{F(*x)+u}, 7, v{VCA0 + u}")
            else: E("s_nop 0")
            g.vm(f"buffer_load_dwordx4 v{F(*x)+u}, s[28:31], 0 offen{o.get('pfl3','')} lds", ('p', b))
        return f
    def dmaL(b): return [mkL((js, b), u) for js in range(4) for u in range(2)]
    def rdL(b):
        g.wait_vm([('p', b)])
        for js in range(4):
            for c0 in range(2):
                for c1 in range(2):
                    r = F(js, b) + 4*c0 + 2*c1
                    g.ds(f"ds_read_b64 v[{r}:{r+1}], v{T + 4*(js>>1) + 2*c1 + c0} offset:{lbuf((js, b))*16384 + (js&1)*2048}", ('lr', b))
    for t in (0, 1):
        for ii in range(4): mkB(t, ii)()
    g.srd(28, 6, 12800000)
    E(f"v_lshrrev_b32 v{TA}, 1, v{R8}"); E(f"v_xor_b32 v{TA}, v{TA}, v{P8}")
    E(f"v_lshlrev_b32 v{VCA0}, 4, v{TA}"); E(f"v_xor_b32 v{VCA1}, 64, v{VCA0}")
    E(f"v_mul_u32_u24 v{VI0}, 112, v{R8}"); E(f"s_add_u32 s70, s73, {IDXA}"); E(f"v_add_u32 v{VI0}, s70, v{VI0}")
    if RB:
        E(f"v_add_u32 v{VIa}, s97, v{VI0}"); E(f"v_subrev_u32 v{VId}, s97, v{VI0}")
        E(f"v_add_u32 v{VIB[0]}, s98, v{VI0}"); E(f"v_subrev_u32 v{VIC[0]}, s98, v{VI0}")
        for j in range(1, 4): E(f"v_add_u32 v{VIB[j]}, {1024*j}, v{VIB[0]}"); E(f"v_add_u32 v{VIC[j]}, {1024*j}, v{VIC[0]}")
    else:
        for j in range(4): E(f"v_add_u32 v{VIB[j]}, {1024*j}, v{VI0}")
    if OWN: E("s_lshl_b32 s70, s65, 2"); E(f"v_add_u32 v{VI0}, s70, v{VI0}")
    def vbase(t, j): return {'0': VI0, 'A': VIa, 'D': VId, 'B': VIB[j], 'C': VIC[j]}[cls(t)] if RB or j == 0 else VIB[j]
    E(f"v_bfe_u32 v{TA}, v250, 4, 1"); E(f"v_and_b32 v{TB}, 3, v250"); E(f"v_lshl_add_u32 v{TA}, v{TA}, 2, v{TB}"); E(f"v_lshlrev_b32 v{VPC}, 4, v{TA}")
    if OWN:
        E(f"v_bfe_u32 v243, v250, 4, 1"); E(f"v_lshlrev_b32 v243, 6, v243")
        E("s_lshl_b32 s62, s69, 5"); E(f"v_xor_b32 v{VPC}, s62, v{VPC}")
        E(f"v_lshrrev_b32 v{TB}, 5, v250"); E(f"v_lshl_add_u32 v243, v{TB}, 3, v243")
        E("s_lshl_b32 s70, s77, 7"); E(f"v_add_u32 v243, s70, v243")
        E("s_mov_b32 s56, 0xff00ff00"); E("s_mov_b32 s57, 0xff00ff00"); E("s_mov_b32 s58, 0x00010001"); E("s_mov_b32 s59, 0x00010001")
    E(f"v_bfe_u32 v{TC}, v250, 2, 2"); E(f"v_mul_u32_u24 v{TA}, {16 if OWN else 96}, v{TC}"); E(f"v_add_u32 v{TA}, s79, v{TA}")
    E(f"v_lshrrev_b32 v{TB}, 5, v250")
    E(f"v_lshl_add_u32 v{VIP0}, v{TB}, 3, v{TA}"); E(f"v_add_u32 v{VIP3}, 1200, v{VIP0}")
    E(f"v_mul_u32_u24 v{TB}, 800, v{TB}"); E(f"v_lshl_add_u32 v{TB}, v{TC}, 2, v{TB}"); E(f"v_add_u32 v{VIP6}, s79, v{TB}")
    if o.get('pmode'):
        E(f"v_and_b32 v{VPC}, 7, v250"); E(f"v_lshlrev_b32 v{VPC}, 4, v{VPC}")
        E(f"v_lshrrev_b32 v{TC}, 4, v250"); E(f"v_mul_u32_u24 v{TA}, 96, v{TC}"); E(f"v_add_u32 v{TA}, s79, v{TA}")
        E(f"v_bfe_u32 v{TB}, v250, 3, 1")
        E(f"v_lshl_add_u32 v{VIP0}, v{TB}, 3, v{TA}"); E(f"v_add_u32 v{VIP3}, 1200, v{VIP0}")
        E(f"v_mul_u32_u24 v{TB}, 800, v{TB}"); E(f"v_lshl_add_u32 v{TB}, v{TC}, 2, v{TB}"); E(f"v_add_u32 v{VIP6}, s79, v{TB}")
        E("s_lshr_b32 s58, s69, 1"); E(f"s_mul_i32 s58, s58, {LDSEND - RED - 4096}"); E("s_lshl_b32 s59, s69, 11"); E("s_add_u32 s58, s58, s59"); E(f"s_add_u32 s58, s58, {RED}")
    E(f"v_lshrrev_b32 v{TA}, 2, v{R8}"); E(f"v_mul_u32_u24 v{TA}, {16 if OWN else 96}, v{TA}"); E(f"v_and_b32 v{TB}, 3, v{R8}")
    E(f"v_lshl_add_u32 v{TA}, v{TB}, 2, v{TA}"); E(f"v_add_u32 v{VL[0]}, s79, v{TA}"); E(f"v_add_u32 v{VL[1]}, 800, v{VL[0]}")
    for js in range(4): E(f"v_mov_b32 v{SUM+js}, 0")
    E(f"v_add_u32 v{WA}, {WP}, v{L16}")
    E(f"v_lshlrev_b32 v{WA6}, 2, v250"); E(f"v_add_u32 v{WA6}, {WP6}, v{WA6}")
    for k, m in enumerate((0x55555555, 0xaaaaaaaa, 0x33333333, 0xcccccccc)): E(f"s_mov_b32 s{48+2*k}, {m:#x}"); E(f"s_mov_b32 s{49+2*k}, {m:#x}")
    def rd_ao(d, j, r):
        if len(d) == 2 and cls(d[0]) == cls(d[1]): g.ds(f"ds_read2_b32 v[{r}:{r+1}], v{vbase(d[0], j)} offset0:{fo(d[0])} offset1:{fo(d[1])}", ('a', d, j))
        else:
            for k, t in enumerate(d): g.ds(f"ds_read_b32 v{r+k}, v{vbase(t, 0)} offset:{j*1024 + 4*fo(t)}", ('a', d, j))
    def cv_ao(d, j, r):
        g.wait_ds(('a', d, j))
        for k in range(len(d)): E(f"v_lshl_add_u32 v{r+k}, v{r+k}, 7, v{VCA0 + (j&1)}")
    def rd_p(x):
        js, b = x
        if b == 6: g.ds(f"ds_read2_b32 v[{F6}:{F6+1}], v{VIP6} offset0:96 offset1:196", ('pi', x))
        elif ring(x): return
        elif late(x): g.ds(f"ds_read2_b32 v[{F(*x)}:{F(*x)+1}], v{VL[js>>1]} offset0:{100*(js&1) + (16 if OWN else 4)*b} offset1:{100*(js&1) + (16*b + 8 if OWN else 4*b + 48)}", ('pi', x))
        else:
            k = (js % 3)*100 + (16 if OWN else 4)*b
            g.ds(f"ds_read2_b32 v[{F(*x)}:{F(*x)+1}], v{VIP3 if js == 3 else VIP0} offset0:{k} offset1:{k+1}", ('pi', x))
    def cv_p(x):
        g.wait_ds(('pi', x))
        for k in range(2): E(f"v_lshl_add_u32 v{F(*x)+k}, v{F(*x)+k}, 7, v{VCA0 + k if late(x) else VPC}")
    E2 = o.get('e2', 0)
    if E2 & 1: E("s_barrier")
    g.wait_vm(['ia'])
    if o.get('pst') == 1: stamp(2)
    first = [a for a in aoreads if min(a[0]) < 3]; later = [a for a in aoreads if min(a[0]) >= 3]
    for a in first: rd_ao(*a)
    FRs = sorted(FR, key=lambda x: PS[x])
    pro = [x for x in FRs if PS[x] < 0 and not ring(x)]
    for j in range(4):
        cv_ao(*first[j]); mkA(0, j)()
    for j in range(4): mkA(1, j)()
    if E2 & 4:
        for a in first[4:]: cv_ao(*a)
        for j in range(4): mkA(2, j)()
    if not E2 & 1: E("s_barrier")
    if o.get('pst'): stamp(3 if o['pst'] == 1 else 1)
    g.wait_vm(['ip'])
    if not E2 & 4:
        for a in first[4:]: cv_ao(*a)
        for j in range(4): mkA(2, j)()
    if o.get('pst') == 2: stamp(2)
    if o.get('probe0'):
        g.wait_vm([('d', 0)]); stamp(3); g.wait_vm([('d', 1)]); stamp(4); g.wait_vm([('d', 2)]); stamp(5)
    if EA:
        for x in FRs: rd_p(x)
        nb = o.get('nb2', 8)
        for a in later[:nb]: rd_ao(*a)
        g.wait_ds(('pi', FRs[-1]))
        for ii in range(4): mkB(2, ii)()
        if o.get('pst') == 2 and not o.get('probe0'): stamp(3)
        nb3 = o.get('nb3', nb) if E2 & 2 else len(later)
        for a in later[nb:nb3]: rd_ao(*a)
        for x in pro[:o['npre']]:
            assert x not in host
            mkP(x)()
    else:
        for i, x in enumerate(FRs):
            rd_p(x)
            if i >= 8: cv_p(FRs[i-8])
        k = 0; pre = pro[:o['npre']]
        for i, a in enumerate(later):
            rd_ao(*a)
            if i < 8: cv_p(FRs[len(FRs)-8+i])
            if i >= 8: cv_ao(*later[i-8])
            if i == 8 and PD >= 3:
                for ii in range(4): mkB(2, ii)()
                if o.get('pst') == 2 and not o.get('probe0'): stamp(3)
            if i > 8 and i % o.get('pint', 3) == 0 and k < len(pre) and pre[k] not in host: mkP(pre[k])(); k += 1
        for a in later[-8:]: cv_ao(*a)
        for x in pre[k:]: mkP(x)()
    pend0 = pro[o['npre']:]
    if o.get('pst') == 2 and not o.get('probe0'): stamp(4)
    g.wait_vm([('d', 0)])
    if o.get('pst') == 2 and not o.get('probe0'): stamp(5)
    E("s_barrier")
    if o.get('pst') != 2: stamp(4 if o.get('pst') else 1)
    TR0, TR1 = 254, 250
    if o.get('trace'): E("s_memtime s[38:39]"); E("s_memrealtime s[40:41]")
    def tr_items(x):
        r = F(*x)
        def a():
            g.wait_vm([('p', x)])
            E("s_mov_b64 vcc, s[48:49]")
            for w in range(4): E(f"v_cndmask_b32_dpp v{T+w}, v{r+4+w}, v{r+w}, vcc quad_perm:[1,0,3,2] row_mask:0xf bank_mask:0xf")
            E("s_mov_b64 vcc, s[50:51]")
            for w in range(4): E(f"v_cndmask_b32_dpp v{T+4+w}, v{r+w}, v{r+4+w}, vcc quad_perm:[1,0,3,2] row_mask:0xf bank_mask:0xf")
        def b():
            for c0 in range(2):
                for w in range(2): E(f"v_permlane32_swap_b32 v{T+4*c0+w}, v{T+4*c0+w+2}")
            E("s_mov_b64 vcc, s[52:53]")
            for c0 in range(2):
                for w in range(2): E(f"v_cndmask_b32_dpp v{r+4*c0+w}, v{T+4*c0+2+w}, v{T+4*c0+w}, vcc quad_perm:[2,3,0,1] row_mask:0xf bank_mask:0xf")
        def c():
            E("s_mov_b64 vcc, s[54:55]")
            for c0 in range(2):
                for w in range(2): E(f"v_cndmask_b32_dpp v{r+4*c0+2+w}, v{T+4*c0+w}, v{T+4*c0+2+w}, vcc quad_perm:[2,3,0,1] row_mask:0xf bank_mask:0xf")
            st['trm'] = g.n
        def msk(f):
            def m():
                if f is a: g.wait_vm([('p', x)])
                E("s_mov_b64 exec, s[56:57]"); f(); E("s_mov_b64 exec, -1")
            return m
        return [msk(a), msk(b), msk(c)] if half(x) else [a, b, c]
    def own_rd(t):
        def rd(b):
            for js in range(o.get('rdn', 4)):
                for c0 in range(2):
                    r = F(js, b) + 4*c0; k = 16*js + 2*(c0 ^ (js >> 1))
                    g.ds(f"ds_read2_b64 v[{r}:{r+3}], v243 offset0:{k} offset1:{k+4}", ('own', t))
        def f():
            E(f"v_xor_b32 v243, {AP(t % NS) ^ AP((t-1) % NS)}, v243")
            c = cls(t); sg = 94 if c in 'AD' else 99
            x = fo(t) if t in (16, 17) else fo(t) & 15
            E(f"s_add_u32 s60, s{sg}, {x}" if c in 'AB' else f"s_sub_u32 s60, {x}, s{sg}")
            if t in (16, 17):
                E("s_and_b32 s61, s60, 15"); E("s_lshl_b64 s[36:37], s[58:59], s61"); E("s_cmp_lt_u32 s60, 16")
                E("s_cselect_b64 exec, s[36:37], 0"); rd(0)
                E("s_cselect_b64 exec, 0, s[36:37]"); rd(1)
            else:
                E("s_lshl_b64 exec, s[58:59], s60"); rd(fo(t) >> 4)
            E("s_mov_b64 exec, -1")
        return f
    for i, x in enumerate(pend0): PS[x] = o['pss'][i] if 'pss' in o else o.get('p0', 0) + i // o['ppst']
    FRs = sorted(FR, key=lambda x: PS[x])
    TS = {}; cnt = {t: 0 for t in range(26)}
    for x in FRs:
        if late(x): TS[x] = 24; continue
        if ring(x): TS[x] = -5; continue
        t = max(o['t0'], PS[x] + o['tlag'])
        while t < 25 and cnt[t] >= o.get('trps', 1 if t < 22 else 4): t += 1
        t = min(t, 25); TS[x] = t; cnt[t] += 1
    rdy = {b: max(TS[x] for x in FR if x[1] == b) + 1 for b in range(7)}
    if OWN: rdy[0] = 18; rdy[1] = 25
    allt = [(6, 6)] + [x for b in range(6) for x in [(6, b)] + [(I, b) for I in range(b+1)]]
    sched = {t: [] for t in range(26)}
    tprev = o.get('tfirst', 0); last = o.get('last', 24)
    for n, (I, J) in enumerate(allt):
        if n < o['nin']:
            t = max(rdy[I], rdy[J], tprev)
            while t < 25 and len(sched[t]) >= o.get('tps', 1): t += 1
            if t > last: t = 25
            tprev = t + o.get('tgap', 0)
        else: t = 25
        sched[min(t, 25)].append((I, J))
    st = dict(wsel=0, trm=-99, pend={}, mark={})
    def wread(I, J):
        w = WREG + 4*st['wsel']; st['wsel'] ^= 1
        if I < 6: g.ds(f"ds_read_b128 v[{w}:{w+3}], v{WA} offset:{(J*(J+1)//2 + I)*1024}", ('w', I, J))
        elif J == 6: g.ds(f"ds_read_b128 v[{w}:{w+3}], v{WA} offset:{21*1024}", ('w', I, J))
        else: g.ds(f"ds_read_b32 v{w}, v{WA6} offset:{J*256}", ('w', I, J))
        return w
    def fmops(js):
        p = st['pend'].pop(js, None)
        if p is None: return []
        I, J, w = p
        g.wait_ds(('w', I, J)); g.since(st['mark'][js], 8)
        if I < 6 and o.get('pkf'):
            assert not o['nin']
            a = f"v[{244+2*js}:{245+2*js}]"
            return [(f"v_pk_mul_f32 {a}, " if (I, J, r) == (0, 0, 0) else f"v_pk_fma_f32 {a}, ") + f"v[{D+4*js+r}:{D+4*js+r+1}], v[{w+r}:{w+r+1}]" + ("" if (I, J, r) == (0, 0, 0) else f", {a}") for r in (0, 2)]
        if I < 6: return [f"v_fmac_f32 v{SUM+js}, v{D+4*js+r}, v{w+r}" for r in range(4)]
        if J == 6: return [f"v_fmac_f32 v{SUM+k}, v{D+k}, v{w+k}" for k in range(4)]
        return [f"v_fmac_f32 v{SUM+js}, v{D+4*js+js}, v{w}"]
    def tile_items(tl):
        it = []
        for (I, J) in tl:
            loc = {}
            def part(js, I=I, J=J, loc=loc):
                if js == 0: loc['w'] = wread(I, J)
                for x in fmops(js): E(x)
                nx = fmops((js+1) & 3) if (js < 3 or (I, J) != (6, 6)) else []
                if (I, J) == (6, 6) and js > 0:
                    for x in nx: E(x)
                    return
                g.since(st['trm'], 2)
                d = D + 4*js
                E(f"v_mfma_f32_16x16x32_bf16 v[{d}:{d+3}], v[{F(js,I,0)}:{F(js,I,0)+3}], v[{F(js,J,0)}:{F(js,J,0)+3}], 0")
                hh = o.get('pkh', 1) if len(nx) == 2 else 2
                for x in nx[:hh]: E(x)
                E(f"v_mfma_f32_16x16x32_bf16 v[{d}:{d+3}], v[{F(js,I,1)}:{F(js,I,1)+3}], v[{F(js,J,1)}:{F(js,J,1)+3}], v[{d}:{d+3}]")
                st['mark'][js] = g.n; st['pend'][js] = (I, J, loc['w'])
                for x in nx[hh:]: E(x)
            for js in range(4): it.append(lambda js=js, part=part: part(js))
        return it
    def flush():
        for js in range(4):
            for x in fmops(js): E(x)
    for t in range(25):
        dm = []
        if t + PD <= 24:
            As = [mkA(t+PD, j) for j in range(4)]; Bs = [mkB(t+PD, i) for i in range(4)]
            dm = As + Bs if o['dord'] == 1 else Bs + As if o['dord'] == 0 else [x for p in zip(As, Bs) for x in p]
        if t == 0 and E2 & 2:
            def rest():
                for a in later[nb3:]: rd_ao(*a)
            dm = Bs + [rest] + As
        dm += [mkP(x) for x in FRs if PS[x] == t]
        if t in (22, 23): dm += dmaL(LB0 + t - 22)
        if t == 24:
            rdL(LB0); g.wait_ds(('lr', LB0)); dm += dmaL(LB0 + 2)
        wk = []
        if OWN and t >= 1 and not o.get('noring') and not o.get('nord') and not o.get('rdlast'): wk.append(own_rd(t))
        if not o['notr']:
            for x in FRs:
                if TS[x] == t and not late(x): wk += tr_items(x)
        if t == 22:
            assert max(TS[x] for x in FR if not late(x)) < 22
            def lr():
                E(f"v_mbcnt_lo_u32_b32 v{T+7}, -1, 0"); E(f"v_mbcnt_hi_u32_b32 v{T+7}, -1, v{T+7}")
                E(f"v_bfe_u32 v{T+1}, v{T+7}, 1, 3"); E(f"v_bfe_u32 v{T+2}, v{T+7}, 4, 1"); E(f"v_lshlrev_b32 v{T+2}, 2, v{T+2}")
                E(f"v_xor_b32 v{T+1}, v{T+1}, v{T+2}"); E(f"v_lshlrev_b32 v{T+1}, 4, v{T+1}")
                E(f"v_and_b32 v{T+2}, 15, v{T+7}"); E(f"v_lshl_add_u32 v{T+1}, v{T+2}, 7, v{T+1}")
                E(f"v_lshrrev_b32 v{T+2}, 5, v{T+7}"); E(f"v_lshl_add_u32 v{T+1}, v{T+2}, 3, v{T+1}")
                if OWN: E(f"v_xor_b32 v{T+1}, s62, v{T+1}")
                E(f"v_add_u32 v{T}, s73, v{T+1}")
                for k in range(1, 4): E(f"v_xor_b32 v{T+k}, {16*k}, v{T}")
                for k in range(4): E(f"v_add_u32 v{T+4+k}, {BS0}, v{T+k}")
            wk.append(lr)
        if not o['nopnn']: wk += tile_items(sched[t])
        lead = o['lead']; nw = len(wk)
        seq = dm[:lead]; rest = dm[lead:]
        k = 0
        for i, w in enumerate(wk):
            seq.append(w)
            tgt = ((i+1) * len(rest)) // nw
            while k < tgt: seq.append(rest[k]); k += 1
        seq += rest[k:]
        if OWN and t >= 1 and o.get('rdlast'): seq.append(own_rd(t))
        for f in seq: f()
        if o.get('trace'):
            E("s_waitcnt lgkmcnt(0)"); g.q = []
            E(f"v_writelane_b32 v{TR0}, s38, {t}"); E(f"v_writelane_b32 v{TR1}, s40, {t}")
            if t: E(f"v_writelane_b32 v{TR0}, s42, {31+t}"); E(f"v_writelane_b32 v{TR1}, s46, {31+t}")
            E("s_memtime s[42:43]")
        if t <= o['lb']:
            g.wait_vm([('d', t+1)] if t < o['lb'] else [('d', x) for x in range(t+1, 25)])
            if o.get('trace'): E("s_memtime s[46:47]")
            if OWN: g.wait_ds()
            E("s_barrier")
            if t == 11 and not o.get('pst'): stamp(2)
            if o.get('trace'): E("s_memtime s[38:39]"); E("s_memrealtime s[40:41]")
    if o.get('pst') != 2: stamp(5 if o.get('pst') else 3)
    if o.get('trace'):
        E("s_memtime s[38:39]"); E("s_memrealtime s[40:41]"); E("s_waitcnt lgkmcnt(0)"); g.q = []
        E(f"v_writelane_b32 v{TR0}, s38, 25"); E(f"v_writelane_b32 v{TR1}, s40, 25")
        E("v_mbcnt_lo_u32_b32 v240, -1, 0"); E("v_mbcnt_hi_u32_b32 v240, -1, v240")
        E("s_lshl_b32 s70, s2, 9"); E("s_add_u32 s70, s70, 0x8010000"); E("v_lshlrev_b32 v241, 2, v240"); E("v_add_u32 v241, s70, v241")
        E("s_cmp_lg_u32 s69, 0"); E(f"s_cbranch_scc1 {P}NOTR")
        E(f"global_store_dword v241, v{TR0}, s[22:23]"); E(f"global_store_dword v241, v{TR1}, s[22:23] offset:256")
        g.L(f"{P}NOTR")
        E("s_waitcnt vmcnt(0)"); g.vdone = len(g.vq)
    done = {x for x in FR if TS[x] < 25}
    pt = dict(k=0)
    def ptr():
        if o.get('ptrace'):
            E("s_memtime s[38:39]"); E("s_waitcnt lgkmcnt(0)"); g.q = []
            E(f"v_writelane_b32 v254, s38, {pt['k']}"); pt['k'] += 1
    ptr()
    if o.get('pkf') or o.get('ea'):
        E("v_mbcnt_lo_u32_b32 v240, -1, 0"); E("v_mbcnt_hi_u32_b32 v240, -1, v240")
        E("v_lshrrev_b32 v252, 4, v240"); E("v_lshlrev_b32 v252, 6, v252")
        E("s_lshl_b32 s70, s69, 4"); E(f"s_add_u32 s70, s70, {RED + 2048}")
        E("v_add_u32 v252, s70, v252")
    S = sched[25]; have = {LB0}; pre_ev = {i: [] for i in range(len(S) + 1)}
    firstuse = {b: min(i for i, (I, J) in enumerate(S) if J == b) for b in range(LB0 + 1, 6)}
    pos = o['pdel']; rdat = {}
    for k in range(1, NL):
        b = LB0 + k
        if k + 2 < NL: rdat[b] = min(pos, max(firstuse[b] - 1, 0)); pos = rdat[b] + o.get('pgap', 2)
        else: rdat[b] = max(firstuse[b] - o.get('rlead', 1), 0, max(rdat.values(), default=0))
    pend_dma = []
    for i, (I, J) in enumerate(S):
        for b in sorted(rdat):
            if rdat[b] == i:
                for f in pend_dma: f()
                pend_dma = []
                ptr(); rdL(b); have.add(b)
                if b + 2 < 6: g.wait_ds(('lr', b)); pend_dma = dmaL(b + 2)
                ptr()
        if LB0 <= J < 6: assert J in have; g.wait_ds(('lr', J))
        if OWN and J == 1: g.wait_ds(('own', 24))
        for f in tile_items([(I, J)]):
            if not o.get('nopost'): f()
            if pend_dma: pend_dma.pop(0)()
    flush()
    ptr()
    if o.get('ptrace'):
        E("s_memrealtime s[40:41]"); E("s_waitcnt lgkmcnt(0)"); E("v_writelane_b32 v254, s40, 31")
        E("v_mbcnt_lo_u32_b32 v240, -1, 0"); E("v_mbcnt_hi_u32_b32 v240, -1, v240")
        E("s_lshl_b32 s70, s2, 9"); E("s_add_u32 s70, s70, 0x8010000"); E("s_lshl_b32 s71, s69, 7"); E("s_add_u32 s70, s70, s71")
        E("v_lshlrev_b32 v241, 2, v240"); E("v_add_u32 v241, s70, v241")
        E("s_mov_b64 exec, 0xffffffff")
        E(f"global_store_dword v241, v254, s[22:23]")
        E("s_mov_b64 exec, -1")
        E("s_waitcnt vmcnt(0)")
    EAD = o.get('pkf') or o.get('ea')
    if o.get('pkf'):
        for k in range(2):
            for js in range(4): E(f"v_add_f32 v{SUM+js}, v{SUM+js}, v{244+2*js+k}")
    if not EAD: E("v_mbcnt_lo_u32_b32 v240, -1, 0"); E("v_mbcnt_hi_u32_b32 v240, -1, v240")
    for sh in (1, 2, 4, 8):
        for js in range(4): E(f"v_add_f32_dpp v{SUM+js}, v{SUM+js}, v{SUM+js} row_shr:{sh} row_mask:0xf bank_mask:0xf bound_ctrl:1")
    if not EAD:
        E("v_lshrrev_b32 v248, 4, v240"); E("v_lshlrev_b32 v248, 6, v248")
        E("s_lshl_b32 s70, s69, 4"); E(f"s_add_u32 s70, s70, {RED + 2048}")
        E("v_add_u32 v248, s70, v248")
    E("s_mov_b32 exec_lo, 0x80008000"); E("s_mov_b32 exec_hi, 0x80008000")
    E(f"ds_write_b128 v{252 if EAD else 248}, v[{SUM}:{SUM+3}]")
    E("s_mov_b64 exec, -1")
    E("s_waitcnt lgkmcnt(0)")
    if not o.get('pst'): stamp(4)
    E("s_barrier")
    if stamps:
        if not o.get('pst'): stamp(5)
        g.srd(44, 20, 256)
        E("s_cmp_eq_u32 s69, 0"); E(f"s_cbranch_scc1 {P}STAMP")
    E("s_endpgm")
    def nonce_wait(lbl, vr):
        E(f"v_readfirstlane_b32 s78, v{vr}")
        E("s_cmp_lg_u32 s78, 0"); E(f"s_cbranch_scc1 {lbl}_x")
        E(f"s_mov_b32 s71, {SPIN}"); E("s_lshl_b32 s79, s64, 2")
        g.L(lbl)
        E(f"buffer_load_dword v{vr}, off, s[44:47], s79 offset:128 sc0 sc1")
        E("s_waitcnt vmcnt(0)")
        E(f"v_readfirstlane_b32 s78, v{vr}")
        E("s_sub_u32 s71, s71, 1"); E("s_cmp_eq_u32 s71, 0"); E(f"s_cbranch_scc1 {lbl}_x")
        E("s_cmp_eq_u32 s78, 0"); E(f"s_cbranch_scc1 {lbl}")
        g.L(lbl + "_x")
    g.q = []; role['L'] = False
    g.L(f"{P}CSTART")
    if o['prioC']: E(f"s_setprio {o['prioC']}")
    VA = 128; VBR = 130; VX = 134; RDY = 150
    def FA(ks, st): return 64 + ks*32 + st*4
    def FB(ks, nt): return 64 + ks*32 + 16 + nt*4
    def ACC(nt, st): return (st*4 + nt)*4
    E("s_sub_u32 s72, s69, 4")
    if o.get('cpf'):
        E("s_getpc_b64 s[76:77]"); g.L(f"{P}PC")
        E(f"s_sub_u32 s76, s76, {P}PC-{name}"); E("s_subb_u32 s77, s77, 0")
        E("s_lshr_b32 s70, s2, 3"); E("s_lshl_b32 s70, s70, 2"); E("s_add_u32 s70, s70, s72"); E("s_lshl_b32 s70, s70, 9")
        E("v_lshlrev_b32 v240, 6, v250"); E("v_add_u32 v240, s70, v240")
        E(f"v_min_u32 v240, {P}END-{name}, v240")
        E("v_mov_b32 v241, s77"); E("v_add_co_u32 v240, vcc, s76, v240"); E("s_nop 1"); E("v_addc_co_u32 v241, vcc, 0, v241, vcc")
        E("s_mov_b64 exec, 0xff")
        E("global_load_dword v242, v[240:241], off")
        E("s_mov_b64 exec, -1")
    E("s_and_b32 s73, s72, 1"); E("s_lshr_b32 s74, s72, 1")
    E("v_lshlrev_b32 v254, 4, v250")
    E("s_mul_i32 s70, s72, 5120")
    E("s_memrealtime s[96:97]")
    E("s_waitcnt lgkmcnt(0)")
    g.srd(36, 8, 20000)
    for i in range(5):
        E(f"s_add_u32 m0, s70, {WRAW + i*1024}"); E(f"s_add_u32 s71, s70, {i*1024}")
        E("buffer_load_dwordx4 v254, s[36:39], s71 offen lds")
    ntl = 0
    if 'tlb' in o:
        nw, stride = o['tlb']
        g.srd(28, 6, 12800000)
        E("s_lshr_b32 s71, s2, 3"); E(f"s_mul_i32 s71, s71, {stride*nw}"); E(f"s_mul_i32 s77, s72, {stride}"); E("s_add_u32 s71, s71, s77")
        E(f"s_mov_b32 s77, 200000"); E("v_mul_lo_u32 v160, v250, s77")
        if nw < 4: E(f"s_cmp_ge_u32 s72, {nw}"); E(f"s_cselect_b32 s30, 0, s30")
        E("buffer_load_dword v161, v160, s[28:31], s71 offen"); ntl += 1
    g.srd(40, 22, WSREC); g.srd(44, 20, 256)
    if o.get('wso'): E(f"s_add_u32 s40, s40, {o['wso'] << 20}"); E("s_addc_u32 s41, s41, 0")
    load_b1w2(248)
    npf = ntl
    if o.get('b2e'):
        g.srd(60, 16, 2)
        E("v_mov_b32 v244, 0"); E("buffer_load_short_d16_hi v244, off, s[60:63], 0"); npf += 1
    if o.get('otl'):
        g.srd(56, 18, 8192)
        E("buffer_load_dword v245, off, s[56:59], 0"); npf += 1
    if 'wpf' in o:
        t0, n, stride = o['wpf']
        g.srd(32, 10, 3276800)
        sh = {64: 2, 32: 3}[stride]
        E(f"v_lshrrev_b32 v160, {sh}, v250"); E("v_lshlrev_b32 v160, 9, v160")
        E(f"v_and_b32 v161, {(1 << sh) - 1}, v250"); E(f"v_mul_u32_u24 v161, {stride}, v161"); E("v_add_u32 v160, v160, v161")
        E("s_mul_i32 s77, s65, 819200"); E("s_lshl_b32 s71, s66, 8"); E("s_add_u32 s77, s77, s71")
        E("s_lshl_b32 s71, s72, 13"); E("s_add_u32 s77, s77, s71")
        E("s_lshr_b32 s71, s2, 6"); E("s_lshl_b32 s71, s71, 15"); E("s_add_u32 s77, s77, s71")
        E(f"s_add_u32 s77, s77, {(t0 - 1)*32768}")
        for i in range(n):
            if i: E(f"s_add_u32 s77, s77, {4*32768}")
            E(f"buffer_load_dword v{162+npf}, v160, s[32:35], s77 offen"); npf += 1
            if stride == 32:
                E("s_add_u32 s71, s77, 4096")
                E(f"buffer_load_dword v{162+npf}, v160, s[32:35], s71 offen"); npf += 1
    E("v_and_b32 v140, 15, v250"); E("v_lshrrev_b32 v141, 4, v250"); E("v_bfe_u32 v142, v250, 1, 3")
    E("v_xor_b32 v142, v141, v142"); E("v_lshlrev_b32 v142, 4, v142"); E("v_lshl_add_u32 v142, v140, 7, v142")
    E("s_lshl_b32 s70, s73, 13"); E(f"v_add_u32 v{VA}, s70, v142"); E(f"v_xor_b32 v{VA+1}, 64, v{VA}")
    E("v_bfe_u32 v142, v250, 2, 2")
    E("v_lshl_add_u32 v143, v141, 3, v142"); E("v_lshlrev_b32 v143, 8, v143")
    E("v_bfe_u32 v144, v250, 1, 1"); E("s_lshl_b32 s70, s74, 3"); E("v_or_b32 v144, s70, v144")
    E("v_lshlrev_b32 v142, 2, v142"); E("v_xor_b32 v144, v144, v142")
    E("v_and_b32 v142, 1, v141"); E("v_lshlrev_b32 v142, 1, v142"); E("v_xor_b32 v144, v144, v142")
    E("v_lshl_add_u32 v143, v144, 4, v143")
    E("v_and_b32 v144, 1, v250"); E("v_lshl_add_u32 v143, v144, 3, v143")
    for nt in range(4):
        E(f"v_xor_b32 v142, {nt*32}, v143"); E(f"v_add_u32 v{VBR+nt}, {BS0}, v142")
    E(f"v_lshlrev_b32 v{VX}, 4, v250")
    E(f"s_mov_b32 s76, {WRAW}")
    E("v_lshrrev_b32 v140, 4, v250")
    E("v_bfe_u32 v141, v250, 2, 2")
    E("v_and_b32 v142, 3, v250")
    E("v_mul_u32_u24 v143, 24, v140"); E("v_add_u32 v143, v143, v141"); E("v_mul_u32_u24 v143, 200, v143")
    E("v_mul_u32_u24 v144, 48, v142"); E(f"v_add3_u32 v145, v143, v144, s75".replace("s75", "s76"))
    E("v_mul_u32_u24 v143, 24, v141"); E("v_add_u32 v143, v143, v142")
    E("v_mul_u32_u24 v144, 200, v143"); E("v_add_u32 v144, s76, v144")
    E("v_lshl_add_u32 v151, v140, 1, v144")
    E("v_mul_u32_u24 v146, 48, v140"); E("v_add_u32 v146, v146, v144")
    E("v_mul_u32_u24 v144, 200, v140"); E("v_add_u32 v144, s76, v144")
    E("v_lshl_add_u32 v147, v143, 1, v144")
    E("v_lshl_add_u32 v153, v141, 1, v144")
    if OWN:
        QG, QC, QV, RA, RBB = 64, 70, 76, 82, 88
        E("v_mul_u32_u24 v143, 200, v141"); E("v_add_u32 v143, s76, v143")
        E("v_mul_u32_u24 v144, 200, v142"); E("v_add_u32 v144, s76, v144")
        E("s_mul_i32 s70, s65, 48"); E("s_movk_i32 s71, 100")
        for I in range(6):
            for q8, src in ((QG, 140), (QC, 142), (QV, 141)):
                E(f"v_lshl_add_u32 v{q8+I}, v{src}, 3, s70"); E(f"v_subrev_u32 v94, 192, v{q8+I}"); E(f"v_min_u32 v{q8+I}, v{q8+I}, v94")
            E(f"v_mad_u32_u24 v{RA+I}, v{QG+I}, s71, v143"); E(f"v_mad_u32_u24 v{RBB+I}, v{QV+I}, s71, v144")
            if I < 5:
                E("s_add_u32 s70, s70, 32"); E("s_sub_u32 s77, s70, 192"); E("s_min_u32 s70, s70, s77")
        E("v_mul_u32_u24 v144, 200, v140"); E("v_add_u32 v144, s76, v144")
        E("v_lshl_add_u32 v147, v142, 1, v144")
        E("v_lshlrev_b32 v151, 1, v140")
    E(f"v_add_u32 v148, {WP}, v254")
    E(f"v_lshlrev_b32 v149, 2, v250"); E(f"v_add_u32 v149, {WP6}, v149")
    for r in range(48, 56): E(f"v_mov_b32 v{r}, 0")
    E("s_mov_b32 s75, 0xffff0000")
    E(f"s_waitcnt vmcnt({8 + npf})")
    E("s_barrier")
    big = [(I, J) for J in range(6) for I in range(J+1)] + [(6, 6)]
    own = {0: [0, 1, 3, 4, 6, 7], 1: [2, 8, 10, 11, 12, 21], 2: [5, 9, 13, 15, 16], 3: [14, 17, 18, 19, 20]}
    assert sorted(sum(own.values(), [])) == list(range(22))
    for cw in range(4):
        if cw < 3: E(f"s_cmp_lg_u32 s72, {cw}"); E(f"s_cbranch_scc1 {P}WB{cw+1}")
        mine = [(n, big[n]) for n in own[cw]]
        small = [J for J in range(6) if cw >= 2 and J % 2 == cw % 2]
        g.q = []
        for i, (n, (I, J)) in enumerate(mine):
            r = 4*i
            if I == 6: g.ds(f"ds_read_u16_d16_hi v48, v153 offset:{19200 + 192}", n); continue
            if OWN:
                E(f"v_add_u32 v{r}, v{RA+I}, v{QC+J}"); E(f"v_add_u32 v{r+2}, v{RBB+J}, v{QG+I}")
                g.ds(f"ds_read_b64_tr_b16 v[{r}:{r+1}], v{r}", n)
                if I < J: g.ds(f"ds_read_b64 v[{r+2}:{r+3}], v{r+2}", n)
                continue
            g.ds(f"ds_read_b64_tr_b16 v[{r}:{r+1}], v145 offset:{800*I + 8*J}", n)
            if I < J: g.ds(f"ds_read_b64 v[{r+2}:{r+3}], v146 offset:{800*J + 8*I}", n)
        for i, J in enumerate(small):
            if OWN:
                E(f"v_add_u32 v{96+2*i}, v147, v{QV+J}"); E(f"v_add_u32 v{97+2*i}, v151, v{RBB+J}")
                g.ds(f"ds_read_u16_d16_hi v{48+2*i}, v{96+2*i} offset:19200", ('s', J)); g.ds(f"ds_read_u16_d16_hi v{49+2*i}, v{97+2*i} offset:192", ('s', J))
                continue
            g.ds(f"ds_read_u16_d16_hi v{48+2*i}, v147 offset:{19200 + 8*J}", ('s', J)); g.ds(f"ds_read_u16_d16_hi v{49+2*i}, v151 offset:{800*J + 192}", ('s', J))
        for i, (n, (I, J)) in enumerate(mine):
            r = 4*i; d = 24 + 8*(i % 3)
            g.wait_ds(n)
            if I == 6:
                for k in range(4):
                    m = 0x11111111 << k
                    E(f"s_mov_b32 vcc_lo, {m:#x}"); E(f"s_mov_b32 vcc_hi, {m:#x}")
                    E(f"v_cndmask_b32 v{d+k}, 0, v48, vcc")
            else:
                for k in range(4 if I < J else 2):
                    E(f"v_lshlrev_b32 v{d+2*k}, 16, v{r+k}"); E(f"v_and_b32 v{d+2*k+1}, s75, v{r+k}")
                if I < J:
                    for k in range(4): E(f"v_add_f32 v{d+k}, v{d+k}, v{d+4+k}")
            g.ds(f"ds_write_b128 v148, v[{d}:{d+3}] offset:{n*1024}", 'w')
        for i, J in enumerate(small):
            g.wait_ds(('s', J))
            E(f"v_add_f32 v{48+2*i}, v{48+2*i}, v{49+2*i}"); g.ds(f"ds_write_b32 v149, v{48+2*i} offset:{J*256}", 'w')
        if cw < 3: E(f"s_branch {P}WBDONE"); g.L(f"{P}WB{cw+1}")
    g.q = []
    g.L(f"{P}WBDONE")
    SEL = 240
    if o.get('ffull'): E("v_lshlrev_b32 v153, 2, v250"); E("v_and_b32 v154, 3, v250"); E("v_lshlrev_b32 v154, 7, v154")
    if o.get('mu'):
        E("s_waitcnt vmcnt(0)")
        for k in range(8):
            E(f"v_lshlrev_b32 v{160+2*k}, 16, v{176+k}"); E(f"v_and_b32 v{161+2*k}, s75, v{176+k}")
            if not o.get('g2'): E(f"v_lshlrev_b32 v{224+2*k}, 16, v{184+k}"); E(f"v_and_b32 v{225+2*k}, s75, v{184+k}")
        E("v_and_b32 v140, 1, v250"); E("v_lshlrev_b32 v140, 4, v140"); E("v_mov_b32 v141, 0x3f80"); E("v_lshlrev_b32 v140, v140, v141")
        E("v_bfe_u32 v141, v250, 1, 3"); E("v_lshrrev_b32 v142, 4, v250"); E("v_lshlrev_b32 v142, 1, v142")
        E("v_cmp_eq_u32 vcc, v141, v142"); E("v_add_u32 v142, 1, v142"); E(f"v_mov_b32 v{SEL+2}, 0"); E(f"v_mov_b32 v{SEL+3}, 0")
        E(f"v_cndmask_b32 v{SEL}, 0, v140, vcc")
        E("v_cmp_eq_u32 vcc, v141, v142"); E(f"v_mov_b32 v{SEL+4}, v{SEL}"); E("s_nop 1")
        E(f"v_cndmask_b32 v{SEL+1}, 0, v140, vcc"); E(f"v_mov_b32 v{SEL+5}, v{SEL+1}")
    if o.get('g2'):
        assert o.get('mu')
        E("v_mov_b32 v232, 0xbdd2d3e8"); E("v_mov_b32 v233, 0xc0135761"); E("v_mov_b32 v234, 1.0"); E("v_mov_b32 v235, 1.0")
        E("v_and_b32 v236, 15, v250"); E("v_lshlrev_b32 v236, 2, v236"); E(f"v_add_u32 v236, {RED + 1792}, v236")
        E("s_lshl_b32 s70, s72, 6"); E("v_add_u32 v237, s70, v236"); E("v_lshlrev_b32 v238, 1, v250")
    E("s_waitcnt lgkmcnt(0)")
    if o.get('pst') == 2: stamp(2)
    E("s_barrier")
    stamp(1)
    def Rl(s, ks):
        la = [f"ds_read_b128 v[{FA(ks,st)}:{FA(ks,st)+3}], v{VA+ks} offset:{AP(s) + st*2048}" for st in range(4)]
        lb = [[f"ds_read_b64_tr_b16 v[{FB(ks,nt)+2*hf}:{FB(ks,nt)+2*hf+1}], v{VBR+nt} offset:{s*16384 + ks*8192 + hf*1024}" for hf in range(2)] for nt in range(4)]
        if o['nocr'] == 1: return []
        return [la[0]] + lb[0] + [la[1]] + lb[1] + [la[2]] + lb[2] + [la[3]] + lb[3]
    MORD = [(0,0),(0,1),(1,0),(1,1),(0,2),(1,2),(2,0),(2,1),(2,2),(0,3),(1,3),(2,3),(3,0),(3,1),(3,2),(3,3)]
    mo = o.get('mord', 0)
    if mo == 3: MORD = [(nt, st if nt % 2 == 0 else 3-st) for nt in range(4) for st in range(4)]
    def Ml(ks, first=False):
        l = []
        for nt, st in MORD:
            a = ACC(nt, st)
            l.append(f"v_mfma_f32_16x16x32_bf16 v[{a}:{a+3}], v[{FB(ks,nt)}:{FB(ks,nt)+3}], v[{FA(ks,st)}:{FA(ks,st)+3}], " + ((f"v[{160+4*nt}:{163+4*nt}]" if o.get('mu') else "0") if first else f"v[{a}:{a+3}]"))
        if o['nocm']: return ["s_nop 0"]*16
        return l
    def inter(ms, rs, tag):
        for i, m in enumerate(ms):
            E(m)
            if i < len(rs): g.ds(rs[i], tag)
    for t in range(23 if o.get('stm') else 25):
        s = t % NS
        if t == 0:
            for x in Rl(s, 0): g.ds(x, 0)
        else: inter(Ml(1), Rl(s, 0), 0)
        if t == 1:
            E("s_or_b32 s70, s72, s67"); E("s_cmp_lg_u32 s70, 0"); E(f"s_cbranch_scc1 {P}NOLEAD")
            E("s_lshl_b32 s70, s64, 2")
            E("s_or_b32 s96, s96, 1"); E(f"v_mov_b32 v{RDY}, s96")
            E("s_mov_b64 exec, 1")
            E(f"buffer_store_dword v{RDY}, off, s[44:47], s70 offset:128 sc0 sc1")
            E("s_mov_b64 exec, -1")
            g.L(f"{P}NOLEAD")
        if t == 24 and o.get('tag'): tailtag.tag_prep(g, o, P, nonce_wait, RDY)
        if 'pst0' in o:
            t0, per, lanes = o['pst0']
            if t == t0:
                E("s_lshl_b32 s63, s64, 18"); E("s_lshl_b32 s70, s73, 17"); E("s_add_u32 s63, s63, s70")
                E("s_lshl_b32 s70, s65, 13"); E("s_add_u32 s63, s63, s70")
                E("s_lshl_b32 s70, s66, 12"); E("s_add_u32 s63, s63, s70")
                E("s_lshl_b32 s70, s74, 11"); E("s_add_u32 s63, s63, s70")
            for n in range(8):
                if t0 + n//per == t:
                    if lanes < 64: E(f"s_mov_b64 exec, {(1 << lanes) - 1}")
                    if n and n % 2 == 0: E("s_add_u32 s63, s63, 32768")
                    if o.get('pstl'): E(f"buffer_load_dwordx4 v[{160+4*(n&3)}:{163+4*(n&3)}], v{VX}, s[40:43], s63 offen offset:{(n&1)*1024}{o.get('ptf', ' sc1')}")
                    else: E(f"buffer_store_dwordx4 v[160:163], v{VX}, s[40:43], s63 offen offset:{(n&1)*1024}{o.get('ptf', ' sc0 sc1')}")
                    if lanes < 64: E("s_mov_b64 exec, -1")
        if 'pt1' in o and t == o['pt1'][0]:
            E("s_lshl_b32 s63, s64, 18"); E("s_lshl_b32 s70, s73, 17"); E("s_add_u32 s63, s63, s70")
            E("s_lshl_b32 s70, s65, 13"); E("s_add_u32 s63, s63, s70")
            E("s_lshl_b32 s70, s66, 12"); E("s_add_u32 s63, s63, s70")
            E("s_lshl_b32 s70, s74, 11"); E("s_add_u32 s63, s63, s70")
            E("v_lshrrev_b32 v160, 4, v250"); E("v_lshlrev_b32 v160, 15, v160")
            E("v_and_b32 v161, 15, v250"); E("v_lshl_add_u32 v160, v161, 7, v160")
            if o['pt1'][1] == 'ld': E(f"buffer_load_dword v161, v160, s[40:43], s63 offen{o.get('ptf', '')}")
            else: E(f"buffer_store_dword v161, v160, s[40:43], s63 offen{o.get('ptf', '')}")
        if t == o.get('ftl', -1):
            E(f"s_lshl_b32 s79, s64, 10"); E(f"s_add_u32 s79, s79, {FLOFF}")
            E(f"buffer_load_dword v246, off, s[40:43], s79 sc1")
        if t == o.get('otl2', -1):
            g.srd(56, 18, 8192)
            E("buffer_load_dword v245, off, s[56:59], 0")
        if t == o['chk']:
            E("s_lshl_b32 s79, s64, 2")
            E(f"buffer_load_dword v{RDY+2}, off, s[44:47], s79 offset:128 sc0 sc1")
        g.wait_ds(0)
        inter(Ml(0, t == 0), Rl(s, 1), 1)
        g.wait_ds()
        if t <= o['lb']: E("s_barrier")
        if t == 11 and o.get('pst') != 2: stamp(2)
    if o.get('tag'):
        tailtag.tail(g, o, P, ACC, FA, FB, VX, B1R, W2R, stamp)
    else:
        if o.get('stm'):
            assert o['lb'] == 22 and NS == 4
            HV = [(23, 0), (23, 1), (24, 0), (24, 1)]
            BX = [80, 160, 176, 192]; AX = [64, 208]
            def rdB(h):
                t, ks = HV[h]
                return [f"ds_read_b64_tr_b16 v[{BX[h]+4*nt+2*hf}:{BX[h]+4*nt+2*hf+1}], v{VBR+nt} offset:{(t % NS)*16384 + ks*8192 + hf*1024}" for nt in range(4) for hf in range(2)]
            def rdA(st, h):
                t, ks = HV[h]; r = AX[st & 1] + 4*h
                return f"ds_read_b128 v[{r}:{r+3}], v{VA+ks} offset:{AP(t % NS) + st*2048}"
            rs = []
            for h in range(4): rs += [(rdA(0, h), ('A', 0, h))] + [(x, ('B', h)) for x in rdB(h)]
            ms = Ml(1); k = 0
            for i, m in enumerate(ms):
                E(m)
                while k < len(rs) and k < ((i+1)*o.get('stn', 27))//16: g.ds(*rs[k]); k += 1
            E("s_lshl_b32 s77, s64, 18"); E("s_lshl_b32 s70, s73, 17"); E("s_add_u32 s77, s77, s70")
            E("s_lshl_b32 s70, s65, 13"); E("s_add_u32 s77, s77, s70")
            E("s_lshl_b32 s70, s66, 12"); E("s_add_u32 s77, s77, s70")
            E("s_lshl_b32 s70, s74, 11"); E("s_add_u32 s77, s77, s70")
            E("s_lshl_b32 s75, s64, 1"); E("s_add_u32 s75, s75, s66"); E("s_lshl_b32 s75, s75, 2"); E("s_add_u32 s75, s75, s72")
            E(f"s_lshl_b32 s75, s75, {9 if o.get('pfs') or o.get('ffull') else 7}"); E(f"s_lshl_b32 s71, s65, {7 if o.get('ffull') else 2}"); E("s_add_u32 s75, s75, s71"); E(f"s_add_u32 s75, s75, {FLOFF}")
            fl = o.get('xfl', " sc0 sc1")
            mk = {}
            def outs(st):
                l = []
                if st: l.append(("s_add_u32 s77, s77, 32768", None))
                for cp in range(2):
                    p = 96 + (st*2+cp)*4
                    for h in range(2):
                        a = ACC(2*cp+h, st)
                        l += [(f"v_cvt_pk_bf16_f32 v{p+2*h}, v{a}, v{a+1}", a), (f"v_cvt_pk_bf16_f32 v{p+2*h+1}, v{a+2}, v{a+3}", a)]
                    l.append((f"buffer_store_dwordx4 v[{p}:{p+3}], v{VX}, s[40:43], s77 offen offset:{cp*1024}{fl}", None, (st, cp)))
                return l
            def put(x):
                if x[1] is not None: g.since(mk[x[1]], 8)
                if len(x) == 3 and o.get('osk'):
                    E(f"s_cmp_eq_u32 s62, {x[2][0]}"); E(f"s_cbranch_scc1 {P}SK{x[2][0]}{x[2][1]}"); E(x[0]); g.L(f"{P}SK{x[2][0]}{x[2][1]}")
                    return
                E(x[0])
            fin = outs(3)
            for st in range(4):
                ex = outs(st-1) if st else []
                n = 0
                lo = o.get('lo') and st == 3
                for h, nts in ([(h, (2*c, 2*c+1)) for c in range(2) for h in range(4)] if lo else [(h, range(4)) for h in range(4)]):
                    g.wait_ds(('A', st, h))
                    if st == 0: g.wait_ds(('B', h))
                    for nt in nts:
                        if lo and n == o['lo']:
                            assert not ex
                            ex = fin[:6]; fin = fin[6:]
                        a = ACC(nt, st)
                        E(f"v_mfma_f32_16x16x32_bf16 v[{a}:{a+3}], v[{BX[h]+4*nt}:{BX[h]+4*nt+3}], v[{AX[st&1]+4*h}:{AX[st&1]+4*h+3}], v[{a}:{a+3}]")
                        mk[a] = g.n
                        n += 1
                        if st == 0:
                            for _ in range(2):
                                if k < len(rs): g.ds(*rs[k]); k += 1
                            if 9 <= n <= 12: g.ds(rdA(1, n-9), ('A', 1, n-9))
                            if n == 13:
                                E("s_waitcnt vmcnt(0)")
                                nonce_wait(f"{P}NWC", RDY+2)
                        elif st < 3 and n <= 4: g.ds(rdA(st+1, n-1), ('A', st+1, n-1))
                        if n >= o.get('ost', 3):
                            for _ in range(2):
                                if ex: put(ex.pop(0))
                for x in ex: put(x)
            stamp(3)
            E(f"v_mov_b32 v{RDY}, s78")
            for x in fin: put(x)
            E({0: "s_mov_b64 exec, 1", 1: "s_mov_b32 exec_hi, 0", 2: "s_mov_b64 exec, 0xffff"}[o.get('ffull', 0)])
            if o.get('pfs'):
                for st in range(4):
                    E(f"s_waitcnt vmcnt({6 - st})")
                    E(f"buffer_store_dword v{RDY}, off, s[40:43], s75 offset:{128*st} sc0 sc1")
            else:
                if not o.get('nack'): E("s_waitcnt vmcnt(0)")
                if o.get('ffull'): E(f"buffer_store_dword v{RDY}, v153, s[40:43], s75 offen{o.get('ffl', ' sc0 sc1')}")
                else: E(f"buffer_store_dword v{RDY}, off, s[40:43], s75{o.get('ffl', ' sc0 sc1')}")
            E("s_mov_b64 exec, -1")
        else:
            for m in Ml(1): E(m)
            stamp(3)
            E("s_lshl_b32 s77, s64, 18"); E("s_lshl_b32 s70, s73, 17"); E("s_add_u32 s77, s77, s70")
            E("s_lshl_b32 s70, s65, 13"); E("s_add_u32 s77, s77, s70")
            E("s_lshl_b32 s70, s66, 12"); E("s_add_u32 s77, s77, s70")
            E("s_lshl_b32 s70, s74, 11"); E("s_add_u32 s77, s77, s70")
            def xstores(fl):
                for st in range(4):
                    if st: E("s_add_u32 s77, s77, 32768")
                    for cp in range(2):
                        p = 64 + (st*2+cp)*4
                        for h in range(2):
                            a = ACC(2*cp+h, st)
                            E(f"v_cvt_pk_bf16_f32 v{p+2*h}, v{a}, v{a+1}"); E(f"v_cvt_pk_bf16_f32 v{p+2*h+1}, v{a+2}, v{a+3}")
                        E(f"buffer_store_dwordx4 v[{p}:{p+3}], v{VX}, s[40:43], s77 offen offset:{cp*1024}{fl}")
            E("s_lshl_b32 s75, s64, 1"); E("s_add_u32 s75, s75, s66"); E("s_lshl_b32 s75, s75, 2"); E("s_add_u32 s75, s75, s72")
            E("s_lshl_b32 s75, s75, 7"); E("s_lshl_b32 s71, s65, 2"); E("s_add_u32 s75, s75, s71"); E(f"s_add_u32 s75, s75, {FLOFF}")
            E("s_waitcnt vmcnt(0)")
            if o.get('rpf'): E("s_mov_b32 s63, s77")
            xstores(o.get('xfl', " sc0 sc1"))
            nonce_wait(f"{P}NWC", RDY+2)
            E("s_nop 0"); E(f"v_mov_b32 v{RDY}, s78")
            if o.get('rpf'):
                E("v_lshrrev_b32 v160, 4, v250"); E("v_lshlrev_b32 v160, 15, v160")
                E("v_and_b32 v161, 15, v250"); E("v_lshl_add_u32 v160, v161, 7, v160")
            E("s_waitcnt vmcnt(0)")
            E("s_mov_b64 exec, 1")
            E(f"buffer_store_dword v{RDY}, off, s[40:43], s75{o.get('ffl', ' sc0 sc1')}")
            E("s_mov_b64 exec, -1")
            if o.get('rpf') == 1: E(f"buffer_load_dword v161, v160, s[40:43], s63 offen{o.get('rfl', ' sc1')}")
        if not o.get('st4'): stamp(4)
        E("s_lshl_b32 s77, s64, 18"); E("s_lshl_b32 s71, s67, 15"); E("s_add_u32 s77, s77, s71")
        CP = 61 if o.get('osk') else 72
        E(f"s_lshl_b32 s71, s{CP}, 11"); E("s_add_u32 s77, s77, s71")
        E("v_mov_b32 v200, 0")
        E(f"s_mov_b32 s71, {SPIN}")
        E("s_lshl_b32 s70, s64, 1"); E(f"s_lshr_b32 s75, s{CP}, 1"); E("s_add_u32 s70, s70, s75"); E("s_lshl_b32 s70, s70, 2")
        E("s_add_u32 s70, s70, s66"); E(f"s_and_b32 s75, s{CP}, 1"); E("s_lshl_b32 s75, s75, 1"); E("s_add_u32 s70, s70, s75")
        if o.get('pfs'): E("s_lshl_b32 s70, s70, 2"); E("s_add_u32 s70, s70, s65")
        E(f"s_lshl_b32 s70, s70, {9 if o.get('ffull') else 7}"); E(f"s_add_u32 s70, s70, {FLOFF}")
        PL = f"buffer_load_dword v204, v154, s[40:43], s70 offen{o['pfl']}" if o.get('ffull') else f"buffer_load_dwordx4 v[204:207], off, s[40:43], s70{o['pfl']}"
        if o.get('p1'): E("s_mov_b64 exec, 1")
        if not o.get('pd'): E(PL)
        if o.get('p1'): E("s_mov_b64 exec, -1")
        if o.get('rpf') == 2: E(f"buffer_load_dword v161, v160, s[40:43], s63 offen{o.get('rfl', ' sc1')}")
        g.srd(56, 18, 8192)
        E("s_mov_b32 s79, 0xffff0000")
        if o.get('mu'):
            for qq in range(1, 4):
                E(f"s_add_u32 s63, s65, {qq}"); E("s_and_b32 s63, s63, 3"); E("s_lshl_b32 s63, s63, 13"); E(f"s_add_u32 s{73+qq}, s77, s63")
            E("s_lshl_b32 s63, s65, 13"); E("s_add_u32 s77, s77, s63")
            g.srd(52, 16, 2)
        elif o.get('osk'):
            for k in range(8): E(f"v_lshlrev_b32 v{64+2*k}, 16, v{B1R+k}"); E(f"v_and_b32 v{65+2*k}, s79, v{B1R+k}")
            for q in range(4):
                E(f"s_cmp_lg_u32 s62, {q}"); E(f"s_cbranch_scc1 {P}OQ{q+1}")
                for k in range(16): E(f"v_add_f32 v{k}, v{64+k}, v{16*q+k}")
                E(f"s_branch {P}OQD"); g.L(f"{P}OQ{q+1}")
            for k in range(16): E(f"v_mov_b32 v{k}, v{64+k}")
            g.L(f"{P}OQD")
            for k in range(8): E(f"v_lshlrev_b32 v{16+2*k}, 16, v{W2R+k}"); E(f"v_and_b32 v{16+2*k+1}, s79, v{W2R+k}")
            for qq in range(1, 4):
                E(f"s_add_u32 s63, s65, {qq}"); E("s_and_b32 s63, s63, 3"); E("s_lshl_b32 s63, s63, 13"); E(f"s_add_u32 s{73+qq}, s77, s63")
            E("s_lshl_b32 s63, s65, 13"); E("s_add_u32 s77, s77, s63")
            g.srd(52, 16, 2)
        else:
            for k in range(8):
                E(f"v_lshlrev_b32 v{2*k}, 16, v{B1R+k}"); E(f"v_and_b32 v{2*k+1}, s79, v{B1R+k}")
                E(f"v_lshlrev_b32 v{16+2*k}, 16, v{W2R+k}"); E(f"v_and_b32 v{16+2*k+1}, s79, v{W2R+k}")
            g.srd(60, 16, 2)
            for qq in range(1, 4): E(f"s_add_u32 s{73+qq}, s77, {qq*8192}")
        E("v_mov_b32 v96, 0")
        E("v_mov_b32 v97, 0xbdd2d3e8")
        if o.get('noflag'): E(f"s_branch {P}POLLED")
        if o.get('p1'): E("s_mov_b64 exec, 1")
        if o.get('rpf') == 2: E("s_waitcnt vmcnt(1)"); E(f"s_branch {P}POLLU")
        elif o.get('pd'): E("s_waitcnt vmcnt(0)")
        else: E(f"s_branch {P}POLLT")
        g.L(f"{P}POLL")
        E(PL)
        g.L(f"{P}POLLT")
        E("s_sub_u32 s71, s71, 1"); E("s_cmp_eq_u32 s71, 0"); E(f"s_cbranch_scc1 {P}POLLED")
        E("s_waitcnt vmcnt(0)")
        g.L(f"{P}POLLU")
        if o.get('ffull'): E("v_cmp_ne_u32 vcc, s78, v204")
        else:
            for k in range(4): E(f"v_xor_b32 v{204+k}, s78, v{204+k}")
            E("v_or3_b32 v204, v204, v205, v206"); E("v_or_b32 v204, v204, v207")
            E("v_cmp_ne_u32 vcc, 0, v204")
        E(f"s_cbranch_vccnz {P}POLL")
        g.L(f"{P}POLLED")
        if o.get('p1'): E("s_mov_b64 exec, -1")
        if o.get('st4'): stamp(4)
        for qq in range(4):
            if qq == 0 and o.get('osk'): E("s_cmp_lt_u32 s62, 4"); E(f"s_cbranch_scc1 {P}OL")
            for cp in range(2):
                r = (160 if o.get('mu') else 32) + 8*qq + 4*cp
                E(f"buffer_load_dwordx4 v[{r}:{r+3}], v{VX}, s[40:43], s{73+qq if qq else 77} offen offset:{cp*1024}{o['lfl']}")
            if qq == 0 and o.get('osk'): g.L(f"{P}OL")
        if not o.get('b2e'): E(f"buffer_load_short_d16_hi v96, v200, s[{52 if o.get('osk') else 60}:{55 if o.get('osk') else 63}], 0 offen")
        def mun(qq, c):
            for cp in range(2):
                for h in range(2):
                    d = 8*cp + 4*h; r = 160 + 8*qq + 4*cp
                    E(f"v_mfma_f32_16x16x32_bf16 v[{d}:{d+3}], v[{SEL+2*h}:{SEL+2*h+3}], v[{r}:{r+3}], " + ("0" if c is None else f"v[{c+d}:{c+d+3}]"))
        if o.get('mu'):
            E(f"s_cbranch_scc1 {P}OA")
            E("s_waitcnt vmcnt(7)"); mun(0, None)
            g.L(f"{P}OQ0")
            E("s_waitcnt vmcnt(5)"); mun(1, 0)
            g.L(f"{P}OQD")
            E("s_waitcnt vmcnt(3)"); mun(2, 0)
            E("s_waitcnt vmcnt(1)"); stamp(5); mun(3, 0)
            E("s_nop 4")
        for qq in range(0 if o.get('mu') else 4):
            if qq == 0 and o.get('osk'): E(f"s_cbranch_scc1 {P}OA")
            E(f"s_waitcnt vmcnt({(6 if o.get('b2e') else 7) - 2*qq})")
            if qq == 3: stamp(5)
            for k in range(8):
                E(f"v_lshlrev_b32 v{64+2*k}, 16, v{32+8*qq+k}"); E(f"v_and_b32 v{65+2*k}, s79, v{32+8*qq+k}")
            for k in range(16): E(f"v_add_f32 v{k}, v{k}, v{64+k}")
            if qq == 0 and o.get('osk'): g.L(f"{P}OA")
    N = 16
    if o.get('g2'):
        N = 0
        def pr(r): return f"v[{r}:{r+1}]"
        if o['g2'] == 3:
            def pre(b): return [f"v_pk_mul_f32 {pr(64+k)}, {pr(k)}, {pr(k)}" for k in range(b, b+8, 2)] + \
                [f"v_pk_fma_f32 {pr(64+k)}, {pr(64+k)}, v[232:233], v[232:233] op_sel:[0,0,1] op_sel_hi:[1,0,1]" for k in range(b, b+8, 2)] + \
                [f"v_pk_mul_f32 {pr(64+k)}, {pr(64+k)}, {pr(k)}" for k in range(b, b+8, 2)]
            def tr(op, b): return [f"v_{op}_f32 v{64+k}, v{64+k}" for k in range(b, b+8)]
            def add1(b): return [f"v_pk_add_f32 {pr(64+k)}, {pr(64+k)}, v[234:235]" for k in range(b, b+8, 2)]
            def post(b): return [f"v_pk_mul_f32 {pr(k)}, {pr(k)}, {pr(64+k)}" for k in range(b, b+8, 2)] + [f"v_cvt_pk_bf16_f32 v{80+k//2}, v{k}, v{k+1}" for k in range(b, b+8, 2)]
            def mix(t, v):
                n = 0
                for i, x in enumerate(t):
                    E(x)
                    while n < ((i+1)*len(v))//len(t): E(v[n]); n += 1
            for x in pre(0): E(x)
            mix(tr('exp', 0), pre(8)); mix(tr('exp', 8), add1(0)); mix(tr('rcp', 0), add1(8)); mix(tr('rcp', 8), post(0))
            E("v_mfma_f32_16x16x32_bf16 v[88:91], v[224:227], v[80:83], 0" if 0 else "s_nop 0")
            for x in post(8): E(x)
        H = range(0, 16, 2) if o['g2'] == 1 else []
        H1 = range(16) if o['g2'] == 2 else []
        for k in H1: E(f"v_mul_f32 v{64+k}, v{k}, v{k}")
        for k in H1: E(f"v_fma_f32 v{64+k}, v{64+k}, v232, v233")
        for k in H1: E(f"v_mul_f32 v{64+k}, v{64+k}, v{k}")
        for k in H: E(f"v_pk_mul_f32 {pr(64+k)}, {pr(k)}, {pr(k)}")
        for k in H: E(f"v_pk_fma_f32 {pr(64+k)}, {pr(64+k)}, v[232:233], v[232:233] op_sel:[0,0,1] op_sel_hi:[1,0,1]")
        for k in H: E(f"v_pk_mul_f32 {pr(64+k)}, {pr(64+k)}, {pr(k)}")
        for k in range(16 if o['g2'] < 3 else 0): E(f"v_exp_f32 v{64+k}, v{64+k}")
        for k in H: E(f"v_pk_add_f32 {pr(64+k)}, {pr(64+k)}, v[234:235]")
        for k in H1: E(f"v_add_f32 v{64+k}, 1.0, v{64+k}")
        for k in range(16 if o['g2'] < 3 else 0): E(f"v_rcp_f32 v{64+k}, v{64+k}")
        for k in H: E(f"v_pk_mul_f32 {pr(k)}, {pr(k)}, {pr(64+k)}")
        for k in H1: E(f"v_mul_f32 v{k}, v{k}, v{64+k}")
        for k in range(8 if o['g2'] < 3 else 0): E(f"v_cvt_pk_bf16_f32 v{80+k}, v{2*k}, v{2*k+1}")
        E("v_mfma_f32_16x16x32_bf16 v[88:91], v[224:227], v[80:83], 0"); E("s_nop 1")
        E("v_mfma_f32_16x16x32_bf16 v[88:91], v[228:231], v[84:87], v[88:91]")
        E("s_lshl_b32 s70, s67, 4"); E("s_add_u32 s70, s70, s68"); E("s_lshl_b32 s70, s70, 1"); E("s_nop 4")
        E("ds_write_b32 v237, v88")
        E("s_waitcnt lgkmcnt(0)")
        E("s_barrier")
        E("s_cmp_lg_u32 s72, 0"); E(f"s_cbranch_scc1 {P}END")
        for w in range(4): E(f"ds_read2_b32 v[{2*w}:{2*w+1}], v236 offset0:{32*w} offset1:{32*w+16}")
        E("s_mov_b64 exec, 0xffff")
        E("s_waitcnt lgkmcnt(2)"); E("v_pk_add_f32 v[0:1], v[0:1], v[2:3]")
        E("s_waitcnt lgkmcnt(0)"); E("v_pk_add_f32 v[4:5], v[4:5], v[6:7]")
        E("s_waitcnt vmcnt(0)"); E("v_add_f32 v0, v0, v96")
        E("v_pk_add_f32 v[0:1], v[0:1], v[4:5]"); E("v_add_f32 v0, v0, v1")
        E("v_cvt_pk_bf16_f32 v0, v0, v0")
        E("buffer_store_short v0, v238, s[56:59], s70 offen")
    for k in range(N): E(f"v_mul_f32 v{64+k}, v{k}, v{k}")
    for k in range(N): E(f"v_fmaak_f32 v{64+k}, v{64+k}, v97, 0xc0135761")
    for k in range(N): E(f"v_mul_f32 v{64+k}, v{64+k}, v{k}")
    for k in range(N): E(f"v_exp_f32 v{64+k}, v{64+k}")
    for k in range(N): E(f"v_mul_f32 v{k}, v{k}, v{(224 if o.get('mu') else 16)+k}")
    for k in range(N): E(f"v_add_f32 v{64+k}, 1.0, v{64+k}")
    for k in range(N): E(f"v_rcp_f32 v{64+k}, v{64+k}")
    if not o.get('g2'):
        E("s_lshl_b32 s70, s72, 8"); E(f"s_add_u32 s70, s70, {RED}")
        E("v_lshlrev_b32 v98, 2, v250"); E("v_add_u32 v99, s70, v98")
        for k in range(4): E(f"v_mul_f32 v{80+k}, v{k}, v{64+k}")
        for k in range(4, N): E(f"v_fmac_f32 v{80+(k&3)}, v{k}, v{64+k}")
        E("v_add_f32 v80, v80, v81"); E("v_add_f32 v82, v82, v83"); E("v_add_f32 v80, v80, v82")
        E("ds_write_b32 v99, v80")
        E("s_waitcnt lgkmcnt(0)")
        E("s_barrier")
        if stamps and o.get('stw'): E(f"s_cmp_eq_u32 s72, {o['stw']}"); E(f"s_cbranch_scc1 {P}STAMP")
        E("s_cmp_lg_u32 s72, 0"); E(f"s_cbranch_scc1 {P}END")
        E(f"v_add_u32 v98, {RED}, v98")
        for w in range(4): E(f"ds_read_b32 v{w}, v98 offset:{w*256}")
        E("ds_read_b32 v4, v98 offset:2048")
        E("s_lshl_b32 s70, s67, 4"); E("s_add_u32 s70, s70, s68"); E("s_lshl_b32 s70, s70, 1")
        E("v_lshlrev_b32 v43, 1, v250")
        E("s_waitcnt vmcnt(0) lgkmcnt(0)")
        E("v_add_f32 v0, v0, v1"); E("v_add_f32 v2, v2, v3"); E("v_add_f32 v0, v0, v4"); E("v_add_f32 v0, v0, v2")
        E("v_mov_b32 v1, v0"); E("s_nop 1"); E("v_permlane32_swap_b32 v0, v1"); E("s_nop 1"); E("v_add_f32 v0, v0, v1")
        E("v_mov_b32 v1, v0"); E("s_nop 1"); E("v_permlane16_swap_b32 v0, v1"); E("s_nop 1"); E("v_add_f32 v0, v0, v1")
        E(f"v_add_f32 v0, v0, v{222 if o.get('tag') else 244 if o.get('b2e') else 96}")
        E("v_cvt_pk_bf16_f32 v0, v0, v0")
        E("s_mov_b64 exec, 0xffff")
        E("buffer_store_short v0, v43, s[56:59], s70 offen")
    if o.get('mu'):
        E(f"s_branch {P}FIN")
        g.L(f"{P}OA")
        E("s_cmp_eq_u32 s62, 0"); E(f"s_cbranch_scc1 {P}OQ0")
        E("s_waitcnt vmcnt(5)")
        for q in range(1, 4):
            if q < 3: E(f"s_cmp_lg_u32 s62, {q}"); E(f"s_cbranch_scc1 {P}OB{q+1}")
            mun(1, 16*q); E(f"s_branch {P}OQD")
            if q < 3: g.L(f"{P}OB{q+1}")
        g.L(f"{P}FIN")
    if 'diag' in o:
        if o['diag'] == 6: E("s_waitcnt vmcnt(0)"); stamp(6)
        E("s_movk_i32 s75, 3000")
        if o['diag'] >= 20:
            a, b = {20: (3, 4), 21: (4, 5), 22: (3, 5), 23: (1, 3)}[o['diag']]
            E("s_waitcnt lgkmcnt(0)")
            E(f"s_sub_u32 s76, s{80+2*b}, s{80+2*a}"); E("s_min_u32 s76, s76, 2000"); E("s_mul_i32 s76, s76, 10"); E("s_add_u32 s75, s75, s76")
        elif o['diag'] >= 10:
            a, b = {10: (1, 3), 11: (1, 2), 12: (3, 5)}[o['diag']]
            E("s_waitcnt lgkmcnt(0)")
            E(f"s_sub_u32 s76, s{80+2*b}, s{80+2*a}"); E("s_min_u32 s76, s76, 100000"); E("s_mul_i32 s76, s76, 6554"); E("s_lshr_b32 s76, s76, 16"); E("s_add_u32 s75, s75, s76")
        if 'dwg' in o: E(f"s_cmp_lg_u32 s2, {o['dwg']}"); E(f"s_cbranch_scc1 {P}END")
        if 'dmask' in o: E(f"s_and_b32 s70, s2, {o['dmask'][0]}"); E(f"s_cmp_lg_u32 s70, {o['dmask'][1]}"); E(f"s_cbranch_scc1 {P}END")
        g.L(f"{P}DIAG")
        E("s_memrealtime s[70:71]"); E("s_waitcnt lgkmcnt(0)")
        E(f"s_sub_u32 s70, s70, s{80+2*(o['diag'] if o['diag'] < 10 else 0)}"); E("s_cmp_lt_u32 s70, s75"); E(f"s_cbranch_scc1 {P}DIAG")
    if stamps:
        E("s_mov_b64 exec, -1")
        if o.get('stw'): E(f"s_branch {P}END")
        g.L(f"{P}STAMP")
        E("s_waitcnt vmcnt(0)")
        stamp(6)
        E("s_mul_i32 s70, s2, 112"); E("s_add_u32 s70, s70, 0x8000000")
        E("s_cmp_eq_u32 s69, 0"); E("s_cselect_b32 s71, 56, 0"); E("s_add_u32 s70, s70, s71")
        E("v_mov_b32 v1, s70")
        E("s_waitcnt lgkmcnt(0)")
        if o.get('clk'):
            E("s_cmp_lg_u32 s69, 0"); E(f"s_cbranch_scc1 {P}NOCLK")
            for k in (2, 3, 1):
                E(f"s_sub_u32 s{80+2*k}, s{80+2*k}, s82"); E(f"s_add_u32 s{80+2*k}, s{80+2*k}, s80"); E(f"s_addc_u32 s{81+2*k}, s81, 0")
            g.L(f"{P}NOCLK")
        E("s_mov_b64 exec, 1")
        for k in range(7):
            E(f"v_mov_b32 v2, s{80+2*k}"); E(f"v_mov_b32 v3, s{81+2*k}")
            E(f"global_store_dwordx2 v1, v[2:3], s[22:23] offset:{8*k}"); E("s_nop 1")
    g.L(f"{P}END")
    E("s_endpgm")
    return "\n".join(x for x in g.l if x is not None) + "\n" + kd(name, vgpr=256)

def official(opts=None, path='standalone__deep_cross_pnn__recsys.s', stamps=False):
    asm = HDR + f"; @launch grid=(256,1,1) block=(512,1,1) lds={LDS}\n" + '.amdgcn_target "amdgcn-amd-amdhsa--gfx950"\n' + gen(NAME, stamps, opts)
    open(path, 'w').write(asm)

def bench(base, variants):
    hdr = []; ks = []
    for nm, op in variants:
        hdr.append(f"; @launch kernel={nm} grid=(256,1,1) block=(512,1,1) lds={LDS}")
        ks.append(gen(nm, True, op))
    asm = "\n".join(hdr) + '\n.amdgcn_target "amdgcn-amd-amdhsa--gfx950"\n' + "\n".join(ks)
    build(asm, base, variants[0][0])
```

```python
import gen8
b = dict(npre=0, ppst=2, nl=3, early=1, stm=1, osk=1, e2=1, mu=1, g2=1, p1=1, pd=1)
V = [dict(), dict(lo=11), dict(lo=10), dict(lo=12), dict(lo=11, ost=2), dict(lo=11, ost=1)]
gen8.bench('gb', [("gb%s_kernel" % "abcdef"[i], dict(b, **v)) for i, v in enumerate(V)])
```
